```python
import torch

def _softmax(x, axis=-1):
    return torch.softmax(x, dim=axis)

def _gelu(x):
    return torch.nn.functional.gelu(x, approximate='tanh')

def _silu(x):
    return torch.nn.functional.silu(x)

def _sigmoid(x):
    return torch.sigmoid(x)

def _layernorm(x, axis=-1, eps=1e-05):
    m = x.mean(dim=axis, keepdim=True)
    v = x.var(dim=axis, keepdim=True, unbiased=False)
    return (x - m) / torch.sqrt(v + eps)

def _scatter_add(tgt, idx, src, axis=0):
    return tgt.clone().index_add_(axis, idx, src)

def _segment_sum(src, seg, n):
    out = torch.zeros((n,) + src.shape[1:], dtype=src.dtype)
    return out.index_add_(0, seg, src)

def _pad(x, pw):
    flat = tuple((v for pair in reversed(pw) for v in pair))
    return torch.nn.functional.pad(x, flat)
kernel_name = 'sequential_preLN__memory_aug_recurrent_mem_tr__glu_gated_swiglu__prompt'

def setup_inputs():

    _w = lambda a: (lambda t: t.to(torch.bfloat16) if t.is_floating_point() else t)(torch.as_tensor(a))

    def _A_setup():
        B, S, Dm = (1, 2048, 512)
        H, Dh = (32, 128)
        M, seg = (8, 32)
        seg = min(seg, S)
        S = S // seg * seg
        return {'x': _w((lambda *s: torch.randn(*s, dtype=torch.bfloat16) * 0.05)(B, S, Dm)), 'mem0': _w((lambda *s: torch.randn(*s, dtype=torch.bfloat16) * 0.2)(B, M, Dm)), 'Wq': _w((lambda *s: torch.randn(*s, dtype=torch.bfloat16) * 1.6)(Dm, H, Dh) * Dm ** (-0.5)), 'Wk': _w((lambda *s: torch.randn(*s, dtype=torch.bfloat16) * 1.6)(Dm, H, Dh) * Dm ** (-0.5)), 'Wv': _w((lambda *s: torch.randn(*s, dtype=torch.bfloat16) * 0.2)(Dm, H, Dh) * Dm ** (-0.5)), 'Wo': _w((lambda *s: torch.randn(*s, dtype=torch.bfloat16) * 0.2)(H, Dh, Dm) * (H * Dh) ** (-0.5)), 'seg_len': seg}
    _A_in = _A_setup()

    def _B_setup():
        B, S, D, F = (1, 2048, 512, 1792)
        return {'x': _w((lambda *s: torch.randn(*s, dtype=torch.bfloat16) * 0.05)(B, S, D)), 'w1': _w((lambda *s: torch.randn(*s, dtype=torch.bfloat16) * 0.2)(D, F) * (2.0 / D) ** 0.5), 'w3': _w((lambda *s: torch.randn(*s, dtype=torch.bfloat16) * 0.2)(D, F) * (2.0 / D) ** 0.5), 'w2': _w((lambda *s: torch.randn(*s, dtype=torch.bfloat16) * 0.2)(F, D) * (2.0 / F) ** 0.5)}
    _B_in = _B_setup()
    return {'A_x': _A_in['x'], 'A_mem0': _A_in['mem0'], 'A_Wq': _A_in['Wq'], 'A_Wk': _A_in['Wk'], 'A_Wv': _A_in['Wv'], 'A_Wo': _A_in['Wo'], 'A_seg_len': _A_in['seg_len'], 'B_x': _B_in['x'], 'B_w1': _B_in['w1'], 'B_w3': _B_in['w3'], 'B_w2': _B_in['w2']}

def reference(A_x, A_mem0, A_Wq, A_Wk, A_Wv, A_Wo, A_seg_len, B_x, B_w1, B_w3, B_w2):

    def _A_ref(x, mem0, Wq, Wk, Wv, Wo, seg_len):
        B, S, Dm = x.shape
        H, Dh = (Wq.shape[1], Wq.shape[2])
        M = mem0.shape[1]
        scale = Dh ** (-0.5)
        n_seg = S // seg_len
        L = M + seg_len
        idx = torch.arange(L)
        mask = (idx[:, None] < M) | (idx[:, None] >= idx[None, :])
        mem = mem0
        outs = []
        for s in range(n_seg):
            xs = x[:, s * seg_len:(s + 1) * seg_len, :].clone()
            h = torch.concatenate([mem, xs], axis=1)
            q = torch.einsum('btd,dhe->bhte', h, Wq)
            k = torch.einsum('btd,dhe->bhte', h, Wk)
            v = torch.einsum('btd,dhe->bhte', h, Wv)
            scores = torch.einsum('bhqe,bhke->bhqk', q, k) * scale
            scores = torch.where(mask[None, None], scores, -1000000000.0)
            p = _softmax(scores, axis=-1)
            o = torch.einsum('bhqk,bhke->bhqe', p, v)
            o = torch.einsum('bhte,hed->btd', o, Wo)
            mem = o[:, :M, :].clone()
            outs.append(o[:, M:, :])
        return torch.concatenate(outs, axis=1)

    def _B_ref(x, w1, w3, w2):
        gate = torch.einsum('bsd,df->bsf', x, w1)
        up = torch.einsum('bsd,df->bsf', x, w3)
        h = _silu(gate) * up
        out = torch.einsum('bsf,fd->bsd', h, w2)
        return out
    x = A_x
    h = x + _A_ref(_layernorm(x, axis=-1), A_mem0, A_Wq, A_Wk, A_Wv, A_Wo, A_seg_len)
    h2 = h + _B_ref(_layernorm(h, axis=-1), B_w1, B_w3, B_w2)
    return h2
```

```python
import re

def R(pfx, a, n=1):
    return "%s%d" % (pfx, a) if n == 1 else "%s[%d:%d]" % (pfx, a, a + n - 1)
def v(a, n=1): return R("v", a, n)
def a(a_, n=1): return R("a", a_, n)
def s(a_, n=1): return R("s", a_, n)

_reg1 = re.compile(r"^-?\|?([vas])(\d+)\|?$")
_regn = re.compile(r"^-?([vas])\[(\d+):(\d+)\]$")
def regs_of(op):
    op = op.strip()
    if op.startswith("abs(") or op.startswith("-abs("):
        op = op[op.index("(") + 1:-1]
    m = _reg1.match(op)
    if m: return {(m.group(1), int(m.group(2)))}
    m = _regn.match(op)
    if m: return {(m.group(1), i) for i in range(int(m.group(2)), int(m.group(3)) + 1)}
    if op == "vcc": return {("s", "vcc")}
    if op == "exec": return {("s", "exec")}
    if op == "m0": return {("s", "m0")}
    return set()

TRANS = ("v_exp_f32", "v_log_f32", "v_rcp_f32", "v_rsq_f32", "v_sqrt_f32", "v_sin_f32", "v_cos_f32")

class Ins:
    __slots__ = ("text", "mn", "ops", "kind", "wr", "rd", "srcc", "ab", "data", "wide", "dpp", "states")
    def __init__(self, text):
        self.text = text
        t = text.split(";")[0].strip()
        sp = t.split(None, 1)
        self.mn = sp[0]
        rest = sp[1] if len(sp) > 1 else ""
        rest = re.sub(r"quad_perm:\[[^\]]*\]", "quad_perm", rest)
        rest = re.sub(r"(op_sel|op_sel_hi|neg_lo|neg_hi):\[[^\]]*\]", "opsel", rest)
        rest = re.sub(r"hwreg\([^)]*\)", "hwreg", rest)
        parts = [o.split() for o in rest.split(",")] if rest else []
        ops = [p_[0] for p_ in parts if p_]
        mods = [m for p_ in parts for m in p_[1:]]
        self.ops = ops
        mn = self.mn
        self.wr = set(); self.rd = set(); self.srcc = set(); self.ab = set(); self.data = set()
        self.wide = False; self.dpp = ("_dpp" in mn) or any(m.startswith(("row_", "quad_perm")) for m in mods)
        self.states = 1
        rs = [regs_of(o) for o in ops]
        allr = lambda l: set().union(*l) if l else set()
        if mn.startswith("v_mfma") or mn.startswith("v_smfmac"):
            self.kind = "mfma"
            self.wr = rs[0]; self.ab = rs[1] | rs[2]
            if mn.startswith("v_smfmac"):
                self.srcc = rs[0]; self.ab |= rs[3]
            else:
                self.srcc = rs[3]
            self.rd = self.ab | self.srcc
        elif mn.startswith("v_"):
            self.kind = "valu"
            if mn.startswith("v_nop"):
                pass
            elif mn.startswith("v_permlane"):
                self.wr = rs[0] | rs[1]; self.rd = rs[0] | rs[1]
            elif mn.startswith("v_cmpx"):
                raise ValueError("no cmpx")
            elif mn.startswith(("v_add_co", "v_sub_co", "v_addc_co")):
                self.wr = rs[0] | rs[1]; self.rd = allr(rs[2:])
            else:
                self.wr = rs[0]; self.rd = allr(rs[1:])
                if mn.startswith(("v_fmac", "v_dot2c", "v_writelane")) or self.dpp: self.rd |= rs[0]
                if mn.startswith("v_cndmask") and len(ops) == 3: self.rd |= {("s", "vcc")}
        elif mn.startswith(("buffer_", "global_")):
            self.kind = "vmem"
            lds = "lds" in mods or "_lds_" in mn
            if mn in ("buffer_inv", "buffer_wbl2"):
                pass
            elif "atomic" in mn:
                if mn.startswith("global_"):
                    if "sc0" in mods: self.wr = rs[0]; self.rd = allr(rs[1:])
                    else: self.rd = allr(rs)
                else:
                    self.rd = allr(rs)
                    if "sc0" in mods: self.wr = rs[0]
            elif "store" in mn:
                self.rd = allr(rs)
                self.data = rs[1] if mn.startswith("global_") else rs[0]
                self.wide = mn.endswith(("x3", "x4"))
            elif lds:
                self.rd = allr(rs) | {("s", "m0")}
            else:
                self.wr = rs[0]; self.rd = allr(rs[1:])
                if "d16" in mn: self.rd |= rs[0]
        elif mn.startswith("ds_"):
            self.kind = "ds"
            if "read" in mn or "permute" in mn or "swizzle" in mn:
                self.wr = rs[0]; self.rd = allr(rs[1:])
            else:
                self.rd = allr(rs)
        elif mn.startswith("s_"):
            self.kind = "salu"
            if mn == "s_nop":
                self.states = int(ops[0], 0) + 1
            elif mn.startswith(("s_cmp", "s_cbranch", "s_branch", "s_waitcnt", "s_barrier", "s_endpgm", "s_sleep", "s_setprio", "s_bitcmp")):
                self.rd = allr(rs)
                if "vcc" in mn: self.rd |= {("s", "vcc")}
                if "exec" in mn: self.rd |= {("s", "exec")}
            else:
                self.wr = rs[0] if rs else set(); self.rd = allr(rs[1:])
                if "saveexec" in mn: self.wr |= {("s", "exec")}
        else:
            raise ValueError("unknown instruction: " + text)

def passes(mn):
    if "32x32" in mn: return 8
    return 4

def need(p, c):
    n = 0
    isv = lambda S: {r for r in S if r[0] in "va"}
    iss = lambda S: {r for r in S if r[0] == "s"}
    if p.kind == "valu":
        wv = isv(p.wr); ws = iss(p.wr)
        if c.kind == "mfma" and wv & c.rd: n = max(n, 2)
        if c.kind == "valu":
            if c.mn.startswith("v_permlane") and wv & c.rd: n = max(n, 2)
            if c.dpp and wv & c.rd: n = max(n, 2)
            if c.mn.startswith(("v_readlane", "v_readfirstlane")) and wv & c.rd: n = max(n, 1)
            if p.mn.startswith(TRANS) and not c.mn.startswith(TRANS) and wv & c.rd: n = max(n, 1)
            if ws & c.rd:
                n = max(n, 4 if c.mn.startswith(("v_readlane", "v_writelane")) else 2)
        if c.kind == "vmem" and ws & c.rd: n = max(n, 5)
        if c.kind in ("vmem", "ds") and p.mn.startswith(TRANS) and wv & c.rd: n = max(n, 1)
    elif p.kind == "mfma":
        ps = passes(p.mn)
        big = {4: 8, 8: 12}[ps]
        if c.kind == "mfma":
            if p.wr & c.ab: n = max(n, big)
            ov = p.wr & c.srcc
            if ov and not (p.wr == c.srcc and c.mn == p.mn): n = max(n, {4: 6, 8: 10}[ps])
            if (p.wr & c.wr) and not ov: n = max(n, {4: 6, 8: 10}[ps])
        elif c.kind in ("valu", "vmem", "ds"):
            if p.wr & (c.rd | c.wr): n = max(n, big)
            if c.kind == "valu" and (p.srcc & c.wr): n = max(n, {4: 3, 8: 7}[ps])
    elif p.kind == "vmem":
        if p.wide and (p.data & c.wr): n = max(n, 2 if c.kind == "valu" else 1)
    elif p.kind == "salu":
        if ("s", "m0") in p.wr and c.kind == "vmem" and ("s", "m0") in c.rd: n = max(n, 1)
        if ("s", "exec") in p.wr and c.kind == "valu" and (c.dpp or c.mn.startswith("v_permlane")): n = max(n, 1)
    return n

class Sim:
    def __init__(self):
        self.hist = []
        self.t = 0
        self.mf = None
    def earliest(self, c):
        t = self.t
        if c.mn.startswith("s_cbranch_vcc"):
            for p, st in self.hist[-6:]:
                if p.kind == "valu" and ("s", "vcc") in p.wr: t = max(t, st + 5)
        if self.mf:
            st, ps, hold = self.mf
            if c.kind == "mfma": t = max(t, st + ps)
            elif c.kind == "valu": t = max(t, st + hold)
        return t
    def required(self, c):
        t = self.earliest(c); req = t; why = None
        for p, st in self.hist[-40:]:
            n = need(p, c)
            if n and st + n + 1 > req: req = st + n + 1; why = p
        return req - t, why
    def push(self, c):
        t = self.earliest(c)
        self.hist.append((c, t))
        if c.kind == "mfma": self.mf = (t, passes(c.mn), 2)
        self.t = t + c.states

class Asm:
    def __init__(self):
        self.items = []
        self.nlab = 0
    def __call__(self, text):
        for line in text.split("\n"):
            line = line.strip()
            if not line or line.startswith(";"): continue
            if line.endswith(":") or line.startswith("."): self.items.append(line)
            else: self.items.append(Ins(line))
    def lab(self, base="L"):
        self.nlab += 1
        return "%s%d" % (base, self.nlab)
    def finish(self, verbose=False):
        out = []; sim = Sim(); nins = 0
        for it in self.items:
            if isinstance(it, str):
                out.append(it); continue
            k, why = sim.required(it)
            if k > 0:
                if verbose: print("nop %d before [%s] for [%s]" % (k, it.text, why.text))
                while k > 0:
                    kk = min(k, 16); nop = Ins("s_nop %d" % (kk - 1)); sim.push(nop); out.append(nop); k -= kk
                nins += 1
            sim.push(it); out.append(it)
            if it.mn in ("s_branch", "s_endpgm"): sim = Sim()
        labels = {it[:-1]: i for i, it in enumerate(out) if isinstance(it, str) and it.endswith(":")}
        for i, it in enumerate(out):
            if isinstance(it, Ins) and it.mn.startswith(("s_cbranch", "s_branch")):
                tgt = labels[it.ops[0]]
                pre = []
                j = i
                while j >= 0 and len(pre) < 30:
                    if isinstance(out[j], Ins):
                        if pre and out[j].mn in ("s_branch", "s_endpgm"): break
                        pre.append(out[j])
                    j -= 1
                sim = Sim()
                for p in reversed(pre): sim.push(p)
                sim.t += 3
                j = tgt; cnt = 0
                while j < len(out) and cnt < 24:
                    c = out[j]
                    if isinstance(c, Ins):
                        k, why = sim.required(c)
                        if k > 0 and why in pre:
                            raise RuntimeError("hazard across branch %s: [%s] -> [%s] short by %d" % (it.text, why.text, c.text, k))
                        sim.push(c); cnt += 1
                        if c.mn in ("s_branch", "s_endpgm"): break
                    j += 1
        self.out = out
        return "\n".join(x if isinstance(x, str) else " " + x.text for x in out) + "\n"
```

```python
from asmlib import *

NAME = "sequential_preLN__memory_aug_recurrent_mem_tr__glu_gated_swiglu__prompt"
NSEG = 64
WS_XN    = 0x0000000
WS_XN2   = 0x0200000
WS_HB    = 0x0400000
WS_KM    = 0x0600000
WS_PART  = 0x0E00000
WS_MEM   = 0x0F00000
WS_PROG  = 0x0F10000
WS_PART1 = 0x1000000
WS_PART2 = 0x1800000
WS_KV    = 0x2000000
WS_DBG   = 0x4000000
WS_SIZE  = 0x10000000
DBG_DONE = 192
SPIN = 1 << 19
LDS_BYTES = 163840

sW, sRK, sX, sSPIN = 4, 5, 6, 7
pX, pMEM0, pWQ, pWK, pWV, pWO = 8, 10, 12, 14, 16, 18
pW1, pW3, pW2, pOUT, pDBG, pWS = 24, 26, 28, 30, 32, 34
rWS, rA, rB, rC, rD = 36, 40, 44, 48, 52

def srd(A, r, p, size):
    A(f"s_mov_b32 s{r}, s{p}\ns_mov_b32 s{r+1}, s{p+1}\ns_mov_b32 s{r+2}, {size:#x}\ns_mov_b32 s{r+3}, 0x20000")

def S4(r): return s(r, 4)

def spin_init(A): A(f"s_mov_b32 s{sSPIN}, {SPIN}")
def spin_step(A): A(f"s_sub_u32 s{sSPIN}, s{sSPIN}, 1\ns_cbranch_scc1 L_abort")

def signal_done(A, vt0, vt1):
    l = A.lab()
    A(f"""s_cmp_lg_u32 s{sW}, 0
    s_cbranch_scc1 {l}
    v_mov_b32 v{vt0}, {DBG_DONE}
    v_mov_b32 v{vt1}, 1
    s_mov_b64 exec, 1
    global_atomic_add v{vt0}, v{vt1}, s[{pDBG}:{pDBG+1}] sc1
    s_mov_b64 exec, -1
    {l}:""")

def wait_done(A, vt0, vt1, st):
    l = A.lab()
    spin_init(A)
    A(f"v_mov_b32 v{vt0}, {DBG_DONE}\n{l}:\nglobal_load_dword v{vt1}, v{vt0}, s[{pDBG}:{pDBG+1}] sc1")
    spin_step(A)
    A(f"s_waitcnt vmcnt(0)\nv_readfirstlane_b32 s{st}, v{vt1}\ns_cmp_lt_u32 s{st}, 256\ns_cbranch_scc1 {l}")

def lane_fields(A, vlane):
    A(f"v_and_b32 v{vlane}, 63, v0")

def dma_col(A, dst, vlane, t0, t1, st):
    A(f"""v_lshrrev_b32 v{t0}, 4, v{vlane}
    s_lshr_b32 s{st}, s{sW}, 1
    s_lshl_b32 s{st}, s{st}, 2
    v_or_b32 v{t0}, s{st}, v{t0}
    v_bfe_u32 v{t1}, v{vlane}, 1, 3
    v_xor_b32 v{t0}, v{t0}, v{t1}
    v_lshlrev_b32 v{t0}, 5, v{t0}
    v_and_b32 v{t1}, 1, v{vlane}
    v_lshl_or_b32 v{dst}, v{t1}, 4, v{t0}""")

def tr_base(A, dst, vlane, t0, t1):
    A(f"""v_lshrrev_b32 v{t0}, 4, v{vlane}
    v_bfe_u32 v{t1}, v{vlane}, 2, 2
    v_lshl_add_u32 v{dst}, v{t0}, 3, v{t1}
    v_lshlrev_b32 v{dst}, 8, v{dst}
    v_and_b32 v{t0}, 1, v{t0}
    v_lshl_or_b32 v{t0}, v{t0}, 2, v{t1}
    v_lshl_or_b32 v{dst}, v{t0}, 5, v{dst}
    v_and_b32 v{t0}, 3, v{vlane}
    v_lshl_or_b32 v{dst}, v{t0}, 3, v{dst}""")

def tr_tile(A, pfx, d, vaddr):
    for i, off in enumerate((0, 1024, 8192, 9216)):
        A(f"ds_read_b64_tr_b16 {R(pfx, d + 2*i, 2)}, v{vaddr} offset:{off}")

def load_chunks(A, chunks, nslots, depth, slot0, st0, st1, hooks=None, lds0=0, pfd=0, vdummy=None, pre=None):
    n = len(chunks)
    slot = lambda c: lds0 + ((c + slot0) % nslots) * 16384
    V = Cnt(A, "vmcnt")
    A(f"s_lshl_b32 s{st1}, s{sW}, 10")
    def pref(c):
        if pfd and c < n and chunks[c].get("pf"):
            vo, off = chunks[c]["pf"]
            A(f"s_mov_b32 s{st0}, {off}")
            V.op(f"buffer_load_dword v{vdummy}, v{vo}, {S4(chunks[c]['srd'])}, s{st0} offen")
    def issue(c):
        ch = chunks[c]
        for i in range(4):
            A(f"s_add_u32 m0, s{st1}, {slot(c) + i * 4096}")
            if ch.get("sbase") is not None: A(f"s_add_u32 s{st0}, s{ch['sbase']}, {ch['offs'][i]}")
            else: A(f"s_mov_b32 s{st0}, {ch['offs'][i]}")
            V.op(f"buffer_load_dwordx4 v{ch['voff']}, {S4(ch['srd'])}, s{st0} offen lds", c)
    first = min(2, depth) if pfd else depth
    for c in range(first): issue(c)
    if pfd:
        for c in range(first, depth + pfd): pref(c)
        for c in range(first, depth): issue(c)
    for c in range(n):
        if pre and c in pre: pre[c]()
        V.wait(c); A("s_barrier")
        if hooks and c in hooks: hooks[c]()
        if c + depth < n:
            pref(c + depth + pfd); issue(c + depth)
        chunks[c]["extract"](A, slot(c))
        A("s_waitcnt lgkmcnt(0)")

def fill_ones(A, r, n):
    for i in range(0, n, 2): A(f"v_mov_b64 {v(r + i, 2)}, -1")

def clear_region(A, vaddr, vones, soff, nkb, sc, stmp):
    A(f"s_mov_b32 s{stmp}, s{soff}")
    for i in range(nkb):
        if i and i % 4 == 0: A(f"s_add_u32 s{stmp}, s{stmp}, 4096")
        A(f"buffer_store_dwordx4 {v(vones, 4)}, v{vaddr}, {S4(rWS)}, s{stmp} offen offset:{(i % 4) * 1024} {sc}")

def prologue(A, roles):
    A(f"""s_cmp_ge_u32 s2, 256
    s_cbranch_scc1 L_abort
    s_load_dwordx4 s[32:35], s[0:1], 96
    s_load_dwordx16 s[8:23], s[0:1], 0
    s_load_dwordx8 s[24:31], s[0:1], 64
    s_getreg_b32 s{sX}, hwreg(HW_REG_XCC_ID, 0, 4)
    v_lshrrev_b32 v1, 6, v0
    s_lshl_b32 s3, s{sX}, 2
    s_add_u32 s3, s3, 128
    s_cmp_eq_u32 s{sX}, 0
    s_cselect_b32 s3, 0, s3
    v_readfirstlane_b32 s{sW}, v1
    v_mov_b32 v1, s3
    v_mov_b32 v2, 1
    v_mov_b32 v4, 0
    s_waitcnt lgkmcnt(0)""")
    srd(A, rWS, pWS, WS_SIZE)
    A(f"""s_cmp_lg_u32 s{sW}, 0
    s_cbranch_scc1 L_p1
    s_mov_b64 exec, 1
    global_atomic_add v3, v1, v2, s[{pDBG}:{pDBG+1}] sc0 sc1
    s_waitcnt vmcnt(0)
    ds_write_b32 v4, v3
    s_waitcnt lgkmcnt(0)
    s_mov_b64 exec, -1
    L_p1:
    s_barrier
    ds_read_b32 v3, v4
    s_waitcnt lgkmcnt(0)
    v_readfirstlane_b32 s{sRK}, v3
    s_barrier
    s_cmp_ge_u32 s{sRK}, 32
    s_cbranch_scc1 L_abort""")
    cnt = {}
    for x, r in enumerate(roles):
        A(f"s_mov_b32 s3, {cnt.get(r, 0)}\ns_cmp_eq_u32 s{sX}, {x}\ns_cbranch_scc1 L_go_{r}")
        cnt[r] = cnt.get(r, 0) + 1
    A("L_abort:\ns_endpgm")
    for r in cnt: A(f"L_go_{r}:\ns_branch L_{r}")

def timeline(A, cfg, idx, vt, sidx=None):
    if not cfg["PROF"]: return
    A(f"""s_memrealtime s[100:101]
    s_lshl_b32 s3, s{sX}, 5
    s_add_u32 s3, s3, s{sRK}
    s_lshl_b32 s3, s3, 2
    s_add_u32 s3, s3, s{sW}
    s_lshl_b32 s3, s3, 9
    s_add_u32 s3, s3, {WS_DBG + 0x10000 + 4 * idx}""")
    if sidx is not None: A(f"s_lshl_b32 s2, s{sidx}, 2\ns_add_u32 s3, s3, s2")
    A(f"""s_waitcnt lgkmcnt(0)
    v_mov_b32 v{vt}, s100
    s_mov_b64 exec, 1
    buffer_store_dword v{vt}, off, {S4(rWS)}, s3
    s_mov_b64 exec, -1""")

MF = "v_mfma_f32_16x16x32_bf16"
MF16 = "v_mfma_f32_16x16x16_bf16"
C_SCALE = 0x3e0293ee
WS_FLG1 = 0x0F20000
WS_FLG2 = 0x0F21000

class Cnt:
    def __init__(self, A, name): self.A, self.name, self.n, self.tags = A, name, 0, {}
    def op(self, text, tag=None):
        self.A(text); self.n += 1
        if tag is not None: self.tags[tag] = self.n
    def need(self, tag): return self.n - self.tags[tag]
    def wait(self, tag): self.A(f"s_waitcnt {self.name}({min(self.need(tag), 15 if self.name == 'lgkmcnt' else 63)})")

def seg_count(A, sreg, sT, n):
    c = [(NSEG - t + n - 1) // n for t in range(n)]
    A(f"s_mov_b32 s{sreg}, {c[0]}")
    for t in range(1, n):
        if c[t] != c[0]: A(f"s_cmp_eq_u32 s{sT}, {t}\ns_cselect_b32 s{sreg}, {c[t]}, s{sreg}")

def rows_out(A, dst, vcol, vlane, t0, st0, st1):
    A(f"""s_and_b32 s{st0}, s{sW}, 1
    s_lshl_b32 s{st0}, s{st0}, 4
    s_lshr_b32 s{st1}, s{sW}, 1
    s_lshl_b32 s{st1}, s{st1}, 2
    s_add_u32 s{st0}, s{st0}, s{st1}
    v_lshrrev_b32 v{t0}, 4, v{vlane}
    v_add_u32 v{t0}, s{st0}, v{t0}
    v_lshl_add_u32 v{dst}, v{t0}, 10, v{vcol}""")
ROWS_OUT = [32 * (i >> 1) + 8 * (i & 1) for i in range(4)]

def extract8(A, base, w, vT, t0, t1, dst):
    l = A.lab()
    A(f"s_cmp_lg_u32 s{sW}, {w}\ns_cbranch_scc1 {l}\nv_add_u32 v{t0}, {base}, v{vT}")
    for t in range(8):
        A(f"v_xor_b32 v{t1}, {32 * t}, v{t0}")
        tr_tile(A, "a", dst(t), t1)
    A(f"{l}:")

def proj_out(A, nk, wreg, F, ACC, OUT, vSt, sBase):
    ep = []
    for p in range(4):
        for a_ in range(2):
            for b in range(2):
                c = ACC + ((p * 2 + a_) * 2 + b) * 4
                for ks in range(nk):
                    A(f"{MF} {v(c, 4)}, {a(wreg(2 * p + b, ks), 4)}, {v(F + 4 * (a_ * nk + ks), 4)}, {v(c, 4) if ks else 0}")
                    if (b or ks >= 2 or nk == 2 and False) and ep: A(ep.pop(0))
                    if b and ep: A(ep.pop(0))
            while ep: A(ep.pop(0))
            c = ACC + (p * 2 + a_) * 8; o = OUT + 4 * a_
            ep = [f"v_cvt_pk_bf16_f32 v{o + i}, v{c + 2 * i}, v{c + 2 * i + 1}" for i in range(4)]
            ep.append(f"buffer_store_dwordx4 {v(o, 4)}, v{vSt}, {S4(rWS)}, s{sBase + a_} offen offset:{64 * p}")
    while ep: A(ep.pop(0))

def row_consts(A, vlane, vRl, vRow, SELA, t0, t1):
    A(f"""v_lshrrev_b32 v{t0}, 4, v{vlane}
    v_and_b32 v{t1}, 15, v{vlane}
    v_lshlrev_b32 v{vRl}, 4, v{t1}
    v_lshl_or_b32 v{vRl}, v{t0}, 10, v{vRl}
    v_and_b32 v{vRow}, 3, v{vlane}
    v_lshlrev_b32 v{vRow}, 3, v{vRow}
    v_bfe_u32 v{t0}, v{vlane}, 4, 1
    v_lshl_or_b32 v{vRow}, v{t0}, 5, v{vRow}
    v_bfe_u32 v{t0}, v{vlane}, 2, 2
    v_lshl_or_b32 v{vRow}, v{t0}, 6, v{vRow}
    v_lshrrev_b32 v{t0}, 5, v{vlane}
    v_lshl_or_b32 v{vRow}, v{t0}, 8, v{vRow}
    v_and_b32 v{t0}, 1, v{vlane}
    v_lshlrev_b32 v{t0}, 4, v{t0}
    v_lshlrev_b32 v{t0}, v{t0}, v{SELA}
    v_lshrrev_b32 v{t1}, 1, v{t1}""")
    for i in range(8): A(f"v_cmp_eq_u32 vcc, {i}, v{t1}\nv_cndmask_b32 v{SELA + i}, 0, v{t0}, vcc")

def wait_flags(A, vF, vL4, sFlg, sNeed):
    l = A.lab()
    spin_init(A)
    A(f"{l}:\nbuffer_load_dword v{vF}, v{vL4}, {S4(rWS)}, s{sFlg} offen sc1")
    spin_step(A)
    A(f"s_waitcnt vmcnt(0)\nv_cmp_gt_u32 vcc, s{sNeed}, v{vF}\ns_cbranch_vccnz {l}")

def row_sum(A, n4, D, ACC, SELA, vRl, sIn, st):
    V = Cnt(A, "vmcnt")
    A(f"s_mov_b32 s{st}, s{sIn}")
    for i in range(n4):
        if i: A(f"s_add_u32 s{st}, s{st}, 4096")
        for wg in range(4): V.op(f"buffer_load_dwordx4 {v(D + 4 * (4 * i + wg), 4)}, v{vRl}, {S4(rWS)}, s{st} offen offset:{256 * wg} sc1", (i, wg))
    for i in range(n4):
        for wg in (0, 2, 1, 3):
            if wg in (0, 1): V.wait((i, 2 if wg == 0 else 3))
            c = ACC + 4 * (wg >> 1)
            A(f"{MF} {v(c, 4)}, {v(SELA + 4 * (wg & 1), 4)}, {v(D + 4 * (4 * i + wg), 4)}, {v(c, 4) if (i or wg & 1) else 0}")

def wave_sum(A, r, t):
    for k in (8, 4, 2, 1): A(f"v_add_f32_dpp v{r}, v{r}, v{r} row_ror:{k} row_mask:0xf bank_mask:0xf")
    for sw in ("v_permlane16_swap_b32", "v_permlane32_swap_b32"):
        A(f"v_mov_b32 v{t}, v{r}\n{sw} v{r}, v{t}\nv_add_f32 v{r}, v{r}, v{t}")

def unpack(A, dst, src, n):
    for i in range(n): A(f"v_and_b32 v{dst + 2 * i + 1}, 0xffff0000, v{src + i}\nv_lshlrev_b32 v{dst + 2 * i}, 16, v{src + i}")
def pack(A, dst, src, n):
    for i in range(n): A(f"v_cvt_pk_bf16_f32 v{dst + i}, v{src + 2 * i}, v{src + 2 * i + 1}")

def max_chk(A, t, b, n):
    for i in range(0, n, 2): A(f"v_max3_u32 v{t}, v{t if i else b}, v{b + i}, v{b + i + 1}")
    A(f"v_cmp_eq_u32 vcc, -1, v{t}")
```

```python
import sys, json
from common import *
import role_kv, role_ffn, role_chain, role_qo

DEFAULT = dict(ROLES=["chain", "kv", "kv", "qo", "qo", "qo", "ffn", "ffn"], KV_DEPTH=9, QO_DEPTH=2, FFN_DEPTH=2, CH_DEPTH=9, CH_PF=0,
               ENABLE=["chain", "kv", "qo", "ffn"], PROF=0,
               LP=11, NVF=2, EB=4, PRE=0, PREP='n', FD=[32, 24, 20], FL=0, RL=0, SPEC=0, RST=[0, 11], KME=-1, RED=["soAzpAD", "kspzdoADAD"])

HEAD = open("cdna_kernels/%s.s.ref" % NAME).read().split("; Override launch")[0]

def generate(over=None, verbose=False):
    cfg = dict(DEFAULT); cfg.update(over or {})
    for r in ("kv", "qo", "ffn"): cfg["N" + r.upper()] = cfg["ROLES"].count(r)
    A = Asm()
    prologue(A, cfg["ROLES"])
    role_chain.role_chain(A, cfg)
    role_kv.role_kv(A, cfg)
    role_qo.role_qo(A, cfg)
    role_ffn.role_ffn(A, cfg)
    body = A.finish(verbose)
    K = NAME + "_kernel"
    doc = open("header.txt").read()
    return (HEAD + f"; @launch grid=(256,1,1) block=(256,1,1) lds={LDS_BYTES}\n" + doc +
            f'.amdgcn_target "amdgcn-amd-amdhsa--gfx950"\n.text\n.globl {K}\n.p2align 8\n.type {K},@function\n{K}:\n' + body +
            f""".section .rodata,"a"
.p2align 6
.amdhsa_kernel {K}
  .amdhsa_next_free_vgpr 512
  .amdhsa_next_free_sgpr 102
  .amdhsa_accum_offset 256
  .amdhsa_group_segment_fixed_size 0
  .amdhsa_kernarg_size 112
  .amdhsa_user_sgpr_count 2
  .amdhsa_user_sgpr_kernarg_segment_ptr 1
  .amdhsa_system_sgpr_workgroup_id_x 1
  .amdhsa_float_denorm_mode_32 3
.end_amdhsa_kernel
""")

if __name__ == "__main__":
    out = sys.argv[1] if len(sys.argv) > 1 else "cdna_kernels/%s.s" % NAME
    over = json.loads(sys.argv[2]) if len(sys.argv) > 2 else None
    t = generate(over, verbose="-v" in sys.argv)
    open(out, "w").write(t)
    print(out, len(t), "bytes")
```

```python
from common import *

def round_bf(A, r):
    A(f"v_cvt_pk_bf16_f32 v{r}, v{r}, v{r}\nv_and_b32 v{r}, 0xffff0000, v{r}")

def ln_scale(A, vvar, t):
    round_bf(A, vvar)
    A(f"v_add_f32 v{vvar}, 0x3727c5ac, v{vvar}")
    round_bf(A, vvar)
    A(f"v_sqrt_f32 v{vvar}, v{vvar}")
    round_bf(A, vvar)
    A(f"v_rcp_f32 v{vvar}, v{vvar}")

def ln_stage(A, sC, vLane, st0, st1):
    X, F = 8, 64
    va, vb, vm, vs, t0 = 130, 131, 132, 133, 134
    A(f"""s_lshl_b32 s{st0}, s{sC}, 15
    s_lshl_b32 s{st1}, s{sW}, 13
    s_add_u32 s{st0}, s{st0}, s{st1}
    v_lshrrev_b32 v{t0}, 3, v{vLane}
    v_and_b32 v{vb}, 7, v{vLane}
    v_lshlrev_b32 v{va}, 4, v{vb}
    v_lshl_add_u32 v{va}, v{t0}, 10, v{va}""")
    for j in range(8): A(f"buffer_load_dwordx4 {v(X + 4 * j, 4)}, v{va}, {S4(rD)}, s{st0} offen offset:{128 * j}")
    A(f"""s_and_b32 s{st1}, s{sW}, 1
    s_lshl_b32 s{st1}, s{st1}, 7
    v_lshl_add_u32 v{va}, v{t0}, 4, s{st1}
    s_lshr_b32 s{st1}, s{sW}, 1
    s_mul_i32 s{st1}, s{st1}, 17408
    v_add_u32 v{va}, s{st1}, v{va}
    v_lshrrev_b32 v{t0}, 2, v{vb}
    v_mul_u32_u24 v{t0}, 1088, v{t0}
    v_add_u32 v{va}, v{t0}, v{va}
    v_and_b32 v{t0}, 3, v{vb}
    v_mul_u32_u24 v{t0}, 272, v{t0}
    v_add_u32 v{va}, v{t0}, v{va}""")
    def red8(r):
        for m in ("quad_perm:[1,0,3,2]", "quad_perm:[2,3,0,1]", "row_half_mirror"):
            A(f"v_add_f32_dpp v{r}, v{r}, v{r} {m} row_mask:0xf bank_mask:0xf")
    for j in range(8):
        A(f"s_waitcnt vmcnt({7 - j})")
        for i in range(4):
            A(f"v_lshlrev_b32 v{F + 8 * j + 2 * i}, 16, v{X + 4 * j + i}\nv_and_b32 v{F + 8 * j + 2 * i + 1}, 0xffff0000, v{X + 4 * j + i}")
    A(f"v_add_f32 v{vm}, v{F}, v{F + 1}")
    for i in range(2, 64): A(f"v_add_f32 v{vm}, v{vm}, v{F + i}")
    red8(vm)
    A(f"v_mul_f32 v{vm}, 0x3b000000, v{vm}")
    for i in range(64):
        A(f"v_sub_f32 v{t0}, v{F + i}, v{vm}")
        A(f"v_mul_f32 v{vs}, v{t0}, v{t0}" if i == 0 else f"v_fmac_f32 v{vs}, v{t0}, v{t0}")
    red8(vs)
    A(f"v_mul_f32 v{vs}, 0x3b000000, v{vs}")
    ln_scale(A, vs, t0)
    round_bf(A, vm)
    for j in range(8):
        for i in range(4):
            p = F + 8 * j + 2 * i
            A(f"""v_sub_f32 v{p}, v{p}, v{vm}
            v_sub_f32 v{p + 1}, v{p + 1}, v{vm}
            v_cvt_pk_bf16_f32 v{t0}, v{p}, v{p + 1}
            v_lshlrev_b32 v{p}, 16, v{t0}
            v_and_b32 v{p + 1}, 0xffff0000, v{t0}
            v_mul_f32 v{p}, v{p}, v{vs}
            v_mul_f32 v{p + 1}, v{p + 1}, v{vs}
            v_cvt_pk_bf16_f32 v{X + 4 * j + i}, v{p}, v{p + 1}""")
        A(f"ds_write_b128 v{va}, {v(X + 4 * j, 4)} offset:{2176 * j}")
    A(f"""s_lshr_b32 s{st1}, s{sW}, 1
    s_mul_i32 s{st1}, s{st1}, 17408
    v_lshrrev_b32 v{t0}, 4, v{vLane}
    v_mul_u32_u24 v{t0}, 272, v{t0}
    v_and_b32 v{va}, 15, v{vLane}
    v_lshl_add_u32 v{va}, v{va}, 4, v{t0}
    v_add_u32 v{va}, s{st1}, v{va}
    s_and_b32 s{st1}, s{sW}, 1
    s_mul_i32 s{st1}, s{st1}, {8 * 1088}
    v_add_u32 v{va}, s{st1}, v{va}
    v_lshlrev_b32 v{vb}, 4, v{vLane}
    s_waitcnt lgkmcnt(0)
    s_barrier""")
    for i in range(8): A(f"ds_read_b128 {v(X + 4 * i, 4)}, v{va} offset:{1088 * i}")
    if WS_XN: A(f"s_add_u32 s{st0}, s{st0}, {WS_XN}")
    for i in range(8):
        if i == 4: A(f"s_add_u32 s{st0}, s{st0}, 4096")
        A(f"s_waitcnt lgkmcnt({7 - i})\nbuffer_store_dwordx4 {v(X + 4 * i, 4)}, v{vb}, {S4(rWS)}, s{st0} offen offset:{(i % 4) * 1024} sc1")
```

```python
from common import *

SMF = "v_smfmac_f32_16x16x64_bf16"

def role_chain(A, cfg):
    NKV, PROF = cfg["NKV"], cfg["PROF"] >= 2
    assert NKV in (1, 2)
    M, G, QA, VA, KMQ, PM = 0, 32, 64, 80, 88, 92
    vIdx, vWl0, vWl1, vKr, vVr, vMr, vPartSt, vMemSt, vQw, vQr, vOw, vOr, vSel, vProg, vT, vMw = range(96, 112)
    vZ = PM + 1
    L_KV, L_Q, L_O, L_M = 112 * 1024, 144 * 1024, 148 * 1024, 150 * 1024
    PUBX = "0x000f000f"
    sSTEP, sX0, sX1, sX2, sPW, sPR, sPZ, sMN, sMZ, sKVS, sKVL, sKM, sPG, sNEED, sC, sME, sML, cME, sWO = range(56, 75)
    cPW, cPZ, cMD = 40, 41, 42
    sONE, sMSK = 76, 78
    sPX = 86
    st0, st1 = 100, 101
    sTS = 8
    def wreg(i): return ("a", 8 * i) if i < 32 else ("v", 112 + 8 * (i - 32))
    WQ = lambda p, b: wreg(2 * p + b)
    WK = lambda p, b: wreg(16 + p + b)
    WV = lambda p, b: wreg(24 + 2 * p + b)
    WO = lambda t, u: wreg(40 + 2 * t + u) if t < 5 else ("v", 32 + 8 * (2 * (t - 5) + u))
    W8 = lambda w: R(w[0], w[1], 8)
    def stamp(i, force=False):
        if PROF and (force or not cfg.get("QS") or i < 4): A(f"{'s_memrealtime' if cfg.get('RT') else 's_memtime'} s[{sTS + 2 * i}:{sTS + 2 * i + 1}]")
    def delay(n):
        while n > 0:
            A(f"s_nop {min(n, 16) - 1}"); n -= 16

    A("L_chain:")
    timeline(A, cfg, 0, 1)
    srd(A, rA, pWQ, 1 << 22); srd(A, rB, pWK, 1 << 22); srd(A, rC, pWV, 1 << 22); srd(A, rD, pWO, 1 << 22)
    vLane, vOffA, vOffO, vT0, t0, t1, t2, vPF, vDum = range(20, 29)
    lane_fields(A, vLane)
    dma_col(A, vOffA, vLane, t0, t1, st0)
    A(f"""v_bfe_u32 v{t0}, v{vLane}, 4, 1
    v_lshrrev_b32 v{t1}, 5, v{vLane}
    s_and_b32 s{st0}, s{sW}, 1
    s_lshr_b32 s{st1}, s{sW}, 1
    v_lshl_add_u32 v{t2}, v{t1}, 5, v{t0}
    s_lshl_b32 s3, s{st1}, 4
    v_add_u32 v{t2}, s3, v{t2}
    s_lshl_b32 s3, s{st0}, 1
    v_add_u32 v{t2}, s3, v{t2}
    v_lshl_add_u32 v{vOffO}, v{t2}, 10, v{vOffA}
    v_lshlrev_b32 v{t0}, 4, v{t0}
    v_lshl_add_u32 v{t2}, v{t1}, 2, v{t0}
    v_add_u32 v{t2}, s{sW}, v{t2}
    v_lshl_add_u32 v{vOffA}, v{t2}, 13, v{vOffA}
    s_lshl_b32 s{sKVS}, s{sRK}, 8
    s_lshl_b32 s3, s{sRK}, 1
    s_add_u32 s3, s3, s{st1}
    s_lshr_b32 s{st1}, s3, 5
    s_lshl_b32 s{st1}, s{st1}, 7
    s_and_b32 s3, s3, 31
    s_add_u32 s3, s3, s{st1}
    s_lshl_b32 s3, s3, 13
    s_lshl_b32 s{st0}, s{st0}, 12
    s_add_u32 s3, s3, s{st0}
    v_lshl_add_u32 v{vPF}, v{vLane}, 6, s3
    s_lshl_b32 s{st0}, s{sW}, 12
    v_lshl_add_u32 v{vWl0}, v{vLane}, 4, s{st0}
    s_mul_i32 s{st0}, s{sW}, 12288
    s_add_u32 s{st0}, s{st0}, 0x10000
    v_lshl_add_u32 v{vWl1}, v{vLane}, 4, s{st0}""")
    tr_base(A, vT, vLane, t0, t1)
    A(f"s_lshl_b32 s{st0}, s{sW}, 6\nv_xor_b32 v{vT0}, s{st0}, v{vT}")
    for i in range(4):
        A(f"""s_add_u32 s{st0}, s{sRK}, {i}
        s_and_b32 s{sMSK + 4 + i}, s{st0}, 3
        s_lshl_b32 s{st0}, s{sMSK + 4 + i}, 8
        s_lshl_b32 s{st1}, s{sRK}, 17
        s_add_u32 s{sMSK + i}, s{st0}, s{st1}""")

    def startup():
        fill_ones(A, 0, 4)
        A(f"""s_lshl_b32 s{sPZ}, s{sRK}, 13
        s_add_u32 s{sPZ}, s{sPZ}, {WS_PART}
        s_lshl_b32 s{st0}, s{sW}, 11
        s_sub_u32 s{sPZ}, s{sPZ}, s{st0}
        v_bfe_u32 v{t0}, v{vLane}, 4, 1
        v_and_b32 v{t1}, 3, v{vLane}
        s_and_b32 s3, s{sRK}, 6
        v_add_u32 v{t2}, s3, v{t0}
        v_lshlrev_b32 v{t2}, 10, v{t2}
        v_lshl_add_u32 v{t2}, v{t1}, 2, v{t2}
        s_lshr_b32 s{st0}, s{sRK}, 3
        s_lshl_b32 s{sX0}, s{st0}, 8
        s_lshl_b32 s{sX1}, s{sW}, 6
        s_add_u32 s{sX0}, s{sX0}, s{sX1}
        s_and_b32 s{sX2}, s{sRK}, 1
        s_lshl_b32 s{sX1}, s{sX2}, 4
        s_add_u32 s{sX0}, s{sX0}, s{sX1}
        v_add_u32 v{t2}, s{sX0}, v{t2}""")
        for i, o in enumerate((0, 32, 2, 34)): A(f"global_load_ushort v{8 + i}, v{t2}, s[{pMEM0}:{pMEM0 + 1}] offset:{o}")
        for sl in range(3):
            A(f"s_add_u32 s{sX1}, s{sPZ}, {sl * 262144}")
            for i in range(2): A(f"buffer_store_dwordx4 {v(0, 4)}, v{vWl0}, {S4(rWS)}, s{sX1} offen offset:{i * 1024}")
        A(f"""s_lshl_b32 s{sX0}, s{sW}, 1
        s_lshr_b32 s{sX1}, s{st0}, 1
        s_add_u32 s{sX0}, s{sX0}, s{sX1}
        s_lshl_b32 s{sX0}, s{sX0}, 2
        s_and_b32 s{st0}, s{st0}, 1
        s_lshl_b32 s{st0}, s{st0}, 1
        s_add_u32 s{sX0}, s{sX0}, s{st0}
        s_add_u32 s{sX0}, s{sX0}, s{sX2}
        s_lshl_b32 s{sX0}, s{sX0}, 8
        s_lshl_b32 s3, s3, 5
        s_add_u32 s{sX0}, s{sX0}, s3
        v_lshlrev_b32 v{vMemSt}, 4, v{t0}
        v_lshrrev_b32 v{t0}, 1, v{t1}
        v_lshl_or_b32 v{vMemSt}, v{t0}, 5, v{vMemSt}
        v_and_b32 v{t0}, 1, v{t1}
        v_lshl_or_b32 v{vMemSt}, v{t0}, 3, v{vMemSt}
        v_add_u32 v{vMemSt}, s{sX0}, v{vMemSt}
        s_mov_b32 s{st0}, {WS_MEM}
        s_waitcnt vmcnt(6)
        v_lshl_or_b32 v8, v9, 16, v8
        v_lshl_or_b32 v9, v11, 16, v10
        v_min_u32 v8, -2, v8
        v_min_u32 v9, -2, v9
        s_mov_b64 exec, {PUBX}
        buffer_store_dwordx2 v[8:9], v{vMemSt}, {S4(rWS)}, s{st0} offen
        s_add_u32 s{st0}, s{st0}, 8192
        buffer_store_dwordx2 v[0:1], v{vMemSt}, {S4(rWS)}, s{st0} offen
        s_add_u32 s{st0}, s{st0}, 8192
        buffer_store_dwordx2 v[0:1], v{vMemSt}, {S4(rWS)}, s{st0} offen
        s_mov_b64 exec, -1""")
    startup()
    chunks = []
    def two(d0, d1):
        def ex(A, base):
            A(f"v_add_u32 v{t0}, {base}, v{vT0}\nv_xor_b32 v{t1}, 32, v{t0}")
            tr_tile(A, d0[0], d0[1], t0); tr_tile(A, d1[0], d1[1], t1)
        return ex
    def cha(r, p, ex):
        base = (256 * (p & 1) + 32 * (p >> 1)) * 8192
        chunks.append(dict(srd=r, voff=vOffA, sbase=sKVS, offs=[base + (128 * (i >> 1) + 8 * (i & 1)) * 8192 for i in range(4)], extract=ex, pf=(vPF, base)))
    for u in range(2):
        for k in range(4):
            def ex(A, base, u=u, k=k):
                l = A.lab()
                A(f"s_cmp_lg_u32 s{sW}, s{sMSK + 4 + k}\ns_cbranch_scc1 {l}\nv_add_u32 v{t0}, {base}, v{vT}")
                for t in range(8):
                    A(f"v_xor_b32 v{t1}, {32 * t}, v{t0}")
                    tr_tile(A, WO(t, u)[0], WO(t, u)[1], t1)
                A(f"{l}:")
            chunks.append(dict(srd=rD, voff=vOffO, sbase=sMSK + k, offs=[(64 * u + 4 * i) * 1024 for i in range(4)], extract=ex))
    for p in range(8): cha(rA, p, two(WQ(p, 0), WQ(p, 1)))
    for p in range(0, 8, 2): cha(rB, p, two(WK(p, 0), WK(p, 1)))
    for p in range(8): cha(rC, p, two(WV(p, 0), WV(p, 1)))
    def inplace(A, base):
        two(("v", 0), ("v", 8))(A, base)
        A(f"v_add_u32 v{t0}, {base}, v{vWl0}\ns_waitcnt lgkmcnt(0)\ns_barrier")
        for i in range(4): A(f"ds_write_b128 v{t0}, {v(4 * i, 4)} offset:{1024 * i}")
    for p in range(1, 8, 2): cha(rB, p, inplace)

    def prog_addr(seg):
        A(f"s_lshl_b32 s{sPG}, s{sRK}, 7\ns_add_u32 s{sPG}, s{sPG}, {WS_PROG + (seg % NKV) * 4096}\ns_mov_b32 s{sNEED}, {seg // NKV + 1}")
    prog_ld = lambda r: f"buffer_load_dword v{r}, v{vZ}, {S4(rWS)}, s{sPG} offen sc1"
    def prog_spin():
        l, l2 = A.lab(), A.lab()
        spin_init(A)
        A(f"{l}:\nv_readfirstlane_b32 s{st0}, v{vProg}\ns_cmp_ge_u32 s{st0}, s{sNEED}\ns_cbranch_scc1 {l2}\n" + prog_ld(vProg))
        spin_step(A)
        A(f"s_waitcnt vmcnt(0)\ns_branch {l}\n{l2}:")
    def done_probe():
        A(f"v_mov_b32 v{vZ}, 0\nv_mov_b32 v16, {DBG_DONE}\nglobal_load_dword v17, v16, s[{pDBG}:{pDBG + 1}] sc1")
    def first_probe():
        l = A.lab()
        A(f"v_readfirstlane_b32 s{st0}, v17\ns_cmp_ge_u32 s{st0}, 256\ns_cbranch_scc1 {l}")
        wait_done(A, 16, 17, st0)
        A(f"{l}:")
        prog_addr(1); A(prog_ld(18)); prog_addr(0); A(prog_ld(vProg))
    def first_kv():
        prog_spin()
        A(f"""s_lshl_b32 s{sKVS}, s{sRK}, 14
        s_add_u32 s{sKVS}, s{sKVS}, {WS_KV}
        s_lshl_b32 s{sKVL}, s{sW}, 12
        s_add_u32 s{sKVL}, s{sKVL}, {L_KV}
        s_mov_b32 m0, s{sKVL}""")
        A(f"v_mov_b32 v{vProg}, v18")
        for i in range(4): A(f"buffer_load_dwordx4 v{vWl0}, {S4(rWS)}, s{sKVS} offen offset:{1024 * i} sc1 lds")
    load_chunks(A, chunks, 10, cfg["CH_DEPTH"], 2, st0, st1, hooks={0: lambda: signal_done(A, t0, t1), 31: first_kv},
                pfd=cfg["CH_PF"], vdummy=vDum, pre={30 - cfg['CH_DEPTH']: done_probe, 31: first_probe})
    for i in range(12): A(f"ds_write_b128 v{vWl1}, {v(32 + 4 * i, 4)} offset:{1024 * i}")
    timeline(A, cfg, 1, t0)
    if cfg["PROF"] == -1:
        A(f"s_or_b32 s3, s{sRK}, s{sW}\ns_cmp_lg_u32 s3, 0\ns_cbranch_scc1 L_dg1\nv_mov_b32 v{t0}, s98\ns_mov_b64 exec, 1\nglobal_store_dword v{vZ}, v{t0}, s[{pDBG}:{pDBG + 1}] offset:4 sc1\ns_mov_b64 exec, -1\nL_dg1:")
    if "chain" not in cfg["ENABLE"]:
        A("s_endpgm"); return
    for i in range(8): A(f"s_mov_b32 s{sMSK + i}, {0x11111111 << (i >> 1):#x}")
    A(f"""v_and_b32 v{t0}, 15, v{vLane}
    v_lshrrev_b32 v{t1}, 4, v{vLane}
    v_mov_b32 v{vIdx}, 0x4444
    v_mov_b32 v{t2}, 0xeeee
    s_mov_b32 vcc_lo, 0xcccccccc
    s_mov_b32 vcc_hi, 0xcccccccc
    v_cndmask_b32 v{vIdx}, v{vIdx}, v{t2}, vcc
    v_mov_b32 v{vSel}, 0x3f80
    v_mov_b32 v{t2}, 1.0
    s_mov_b32 vcc_lo, 0xf0f0f0f0
    s_mov_b32 vcc_hi, 0xf0f0f0f0
    v_cndmask_b32 v{vSel}, v{vSel}, v{t2}, vcc
    s_mov_b32 s{sONE}, 0x3f803f80
    s_mov_b32 s{sONE + 1}, 0x3f803f80
    s_mov_b32 s{sC}, {C_SCALE:#x}
    v_mov_b32 v{vZ + 1}, 0
    v_lshrrev_b32 v27, 2, v{t0}
    v_and_b32 v28, 1, v{t0}
    v_lshl_or_b32 v27, v27, 1, v28
    v_bfe_u32 v28, v{t0}, 1, 1
    v_lshlrev_b32 v{vMr}, 4, v{vLane}
    v_add_u32 v{vKr}, {L_KV}, v{vMr}
    v_add_u32 v{vVr}, {L_KV}, v{vWl0}
    v_add_u32 v{vMr}, {L_M}, v{vMr}
    s_lshl_b32 s{st0}, s{sW}, 11
    v_add_u32 v{vMw}, s{st0}, v{vMr}
    s_add_u32 s{cMD}, s{st0}, {L_M}
    s_sub_u32 s{cME}, {WS_MEM}, s{st0}
    s_mov_b32 s{sME}, s{cME}
    s_lshl_b32 s{st0}, s{sW}, 10
    s_add_u32 s{st0}, s{st0}, {L_Q}
    v_lshlrev_b32 v{t2}, 2, v{t0}
    v_lshl_or_b32 v{t2}, v{t1}, 7, v{t2}
    v_add_u32 v{vQw}, s{st0}, v{t2}
    v_lshrrev_b32 v{t2}, 3, v{t0}
    v_lshl_or_b32 v{t2}, v{t1}, 1, v{t2}
    s_lshl_b32 s{st0}, s{sW}, 3
    v_add_u32 v{t2}, s{st0}, v{t2}
    v_and_b32 v29, 7, v{t0}
    v_lshlrev_b32 v29, 3, v29
    v_lshl_or_b32 v{vPartSt}, v{t2}, 13, v29
    v_lshlrev_b32 v{t2}, 4, v{t1}
    v_lshl_or_b32 v{t2}, v27, 6, v{t2}
    v_add_u32 v{vQr}, {L_Q}, v{t2}
    v_lshlrev_b32 v{t2}, 4, v27
    v_lshl_or_b32 v{t2}, v{t1}, 8, v{t2}
    s_lshr_b32 s{st0}, s{sW}, 1
    s_lshl_b32 s{st0}, s{st0}, 10
    s_and_b32 s{st1}, s{sW}, 1
    s_lshl_b32 s{st1}, s{st1}, 7
    s_add_u32 s{st0}, s{st0}, s{st1}
    s_add_u32 s{st0}, s{st0}, {L_O}
    v_add_u32 v{vOw}, s{st0}, v{t2}
    v_lshl_or_b32 v{t2}, v28, 7, v{t2}
    v_add_u32 v{vOr}, {L_O}, v{t2}
    s_mul_i32 s{st0}, s{sW}, 3072
    s_lshl_b32 s{sKM}, s{sRK}, 12
    s_add_u32 s{sKM}, s{sKM}, {WS_KM}
    s_sub_u32 s{sKM}, s{sKM}, s{st0}
    s_lshl_b32 s{cPW}, s{sRK}, 6
    s_add_u32 s{cPW}, s{cPW}, {WS_PART}
    s_mov_b32 s{cPZ}, s{sPZ}
    s_mov_b32 s{sSTEP}, 0
    s_mov_b32 s{sX0}, 0
    s_mov_b32 s{sX1}, 8192
    s_mov_b32 s{sX2}, 16384
    s_cmp_lt_u32 s{sW}, {cfg['PRE']}
    s_cselect_b64 s[{sPX}:{sPX + 1}], -1, 0""")
    prog_addr(1); prog_spin()
    if PROF: A(f"s_mov_b32 s{sTS + 23}, 0\ns_mov_b32 s{sTS + 22}, 0\ns_mov_b32 s2, 0")

    def lw(j, half):
        return f"ds_read_b128 {v(G + 8 * (j % 4) + 4 * half, 4)}, v{vWl0} offset:{(j // 2) * 16384 + (j & 1) * 2048 + half * 1024}"
    def zero_acc():
        for i in range(QA, VA + 8, 2): A(f"v_mov_b64 {v(i, 2)}, 0")
    def preload():
        for j in range(4):
            for hf in range(2): A(lw(j, hf))
    sc_part = [f"s_lshl_b32 s{st0}, s{sX0}, 5", f"s_add_u32 s{sPW}, s{st0}, s{cPW}", f"s_add_u32 s{sWO}, s{sPW}, 4096",
               f"s_add_u32 s{sPR}, s{st0}, s{cPZ}", f"s_lshl_b32 s{st0}, s{sX2}, 5", f"s_add_u32 s{sPZ}, s{st0}, s{cPZ}",
               f"s_add_u32 s{sMN}, s{sX1}, {WS_MEM}", f"s_add_u32 s{sMZ}, s{sX0}, {WS_MEM}",
               f"s_add_u32 s{sKVS}, s{sKVS}, {32 * 16384}", f"s_xor_b32 s{sKVL}, s{sKVL}, 0x3c000"] + \
              ([f"s_lshr_b32 s{sNEED}, s{sSTEP}, 1", f"s_add_u32 s{sNEED}, s{sNEED}, 2"] if NKV == 2 else
               [f"s_add_u32 s{sNEED}, s{sSTEP}, 3"]) + \
              [f"s_cmp_gt_u32 s{sSTEP}, {NSEG - 3}\ns_cselect_b32 s{sNEED}, 0, s{sNEED}"]
    sc_next = [f"s_add_u32 s{sME}, s{sX1}, s{cME}",
               f"s_mov_b32 s{st0}, s{sX0}", f"s_mov_b32 s{sX0}, s{sX1}", f"s_mov_b32 s{sX1}, s{sX2}", f"s_mov_b32 s{sX2}, s{st0}",
               f"s_add_u32 s{sSTEP}, s{sSTEP}, 1"]
    sq = []
    def sal(n):
        for _ in range(n):
            if sq: A(sq.pop(0))
    SEL, RA, RD, ES = M, M + 4, M + 16, M + 24
    A("s_waitcnt lgkmcnt(0)")
    zero_acc(); preload()
    fill_ones(A, ES, 8)
    prog_addr(2); A(prog_ld(vProg))
    timeline(A, cfg, 2, vT)
    A("s_branch L_fetch")

    eld = "\n".join(f"buffer_load_dwordx4 {v(ES + 4 * i, 4)}, v{vWl0}, {S4(rWS)}, s{sME} offen offset:{1024 * i} sc1" for i in range(2))
    lld = eld + "\n" + "\n".join(f"buffer_load_dwordx4 v{vWl0}, {S4(rWS)}, s{sME} offen offset:{1024 * i} sc1 lds" for i in range(2))
    ewr = f"ds_write_b128 v{vMw}, {v(ES, 4)}\nds_write_b128 v{vMw}, {v(ES + 4, 4)} offset:1024"
    masked = lambda x: "s_mov_b64 exec, vcc\n" + x + "\ns_mov_b64 exec, -1"
    def mx(b, n): return [f"v_max3_u32 v{vT}, v{vT if i else b}, v{b + i}, v{b + i + 1}" for i in range(0, n, 2)]
    CMP = f"v_cmp_eq_u32 vcc, -1, v{vT}"
    dmakv = lambda i: f"buffer_load_dwordx4 v{vWl0}, {S4(rWS)}, s{sKVS} offen offset:{1024 * i} sc1 lds" if not cfg.get("NODMA") else "s_nop 0"
    A("L_lr:")
    spin_init(A)
    A("L_lr1:")
    if PROF: A(f"s_add_u32 s{sTS + 22}, s{sTS + 22}, 1")
    A(lld); spin_step(A)
    A("s_waitcnt vmcnt(0)")
    for x in mx(ES, 8) + [CMP]: A(x)
    A("s_cbranch_vccnz L_lr1\ns_branch L_lk")
    A(f"L_fl:\ns_mov_b32 m0, s{cMD}")
    stamp(10)
    A("s_barrier\n" + lld + "\ns_branch L_b0")
    A(f".p2align 6\nL_fetch:\ns_cmp_ge_u32 s{sW}, 2\ns_cbranch_scc1 L_fl")
    spin_init(A)
    for i, d in enumerate(cfg["FD"]):
        if i: A(eld)
        delay(d)
    A("s_mov_b64 vcc, -1\nL_er:\n" + masked(eld))
    if PROF: A("s_add_u32 s2, s2, 1")
    spin_step(A)
    A(f"s_waitcnt vmcnt({2 * (len(cfg['FD']) - 1)})")
    for x in mx(ES, 8) + [CMP]: A(x)
    A("s_cbranch_vccnz L_er")
    if not cfg["SPEC"]: A(ewr)
    stamp(10)
    A("s_barrier\nL_b0:")
    L = Cnt(A, "lgkmcnt")
    def mrd(p): L.op(f"ds_read_b128 {v(M + 4 * p, 4)}, v{vMr} offset:{1024 * p}", ("m", p))
    def lwr(j, hf): L.op(lw(j, hf), ("w", j))
    def kfr(kf): L.op(f"ds_read_b128 {v(M + 4 * kf, 4)}, v{vKr} offset:{(kf >> 1) * 4096 + 2048 + (kf & 1) * 1024}", ("K", kf))
    def frag(k, t):
        if k == "K": kfr(t)
        elif k == "V": L.op(f"ds_read_b128 {v(G + 4 * t, 4)}, v{vVr} offset:{1024 * t}", ("V", t))
        else: L.op(f"ds_read_b128 {v(G + 8 * t + (4 if k == 'k' else 0), 4)}, v{vQr} offset:{t * 1024 + (512 if k == 'k' else 0)}", (k, t))
    A("s_waitcnt lgkmcnt(0)\ns_barrier")
    stamp(0)
    for p in range(4): mrd(p)
    sq.extend(sc_part); sal(4)
    L.wait(("m", 0))
    stamp(1)
    NV = cfg["NVF"]
    qk = lambda p: [(QA, p, W8(WQ(p, 0))), (QA + 4, p, W8(WQ(p, 1)))] + \
                   [(QA + 8 + 4 * b, p, W8(WK(p, b)) if p % 2 == 0 else v(G + 8 * ((p - 1 + b) % 4), 8)) for b in range(2)]
    vv = lambda p: [(VA + 4 * b, p, W8(WV(p, b))) for b in range(2)]
    seq = sum((qk(p) for p in range(4)), []) + sum((vv(p) for p in range(NV)), []) + sum((qk(p) for p in range(4, 8)), [])
    H = 16 + 2 * NV
    gap = {}; val = {}
    def at(k, fn): gap.setdefault(k, []).append(fn)
    for k, (j, hf) in zip((6, 8, 9, 10), ((4, 0), (4, 1), (5, 0), (5, 1))): at(k, lambda j=j, hf=hf: lwr(j, hf))
    LP = cfg["LP"]
    at(LP, lambda: A("s_waitcnt vmcnt(0)"))
    for i, x in enumerate(mx(ES, 8) + [CMP]): val.setdefault(LP + (i + 1) // 2, []).append(x)
    at(LP + 4, lambda: A("s_cbranch_vccnz L_lr\nL_lk:\ns_barrier"))
    for i in range(4): at(LP + 4 + (i if i < 2 else 2 * i), lambda i=i: mrd(4 + i))
    at(LP + 5, lambda: A(f"s_mov_b32 m0, s{sKVL}"))
    for i in range(4): at(LP + 6 + 4 * i, lambda i=i: A(dmakv(i)))
    NEG = QA + 12
    rst = lambda i: f"buffer_store_dwordx4 {v(NEG, 4)}, v{vWl0}, {S4(rWS)}, s{sPZ} offen offset:{1024 * i}"
    for k, (j, hf) in zip((H + 1, H + 2, H + 5, H + 6), ((6, 0), (6, 1), (7, 0), (7, 1))): at(k, lambda j=j, hf=hf: lwr(j, hf))
    at(H + 5, lambda: L.wait(("w", 5))); at(H + 13, lambda: L.wait(("w", 7)))
    for i in range(NV): at(H + 9 + 2 * i, lambda i=i: kfr(i))
    for k, (acc, p, wop) in enumerate(seq):
        A(f"{SMF} {v(acc, 4)}, {v(M + 4 * p, 4)}, {wop}, v{vIdx}")
        g = gap.get(k, [])
        for fn in g: fn()
        n = len(g)
        if k + 1 < len(seq) and seq[k + 1][0] == QA: L.wait(("m", seq[k + 1][1])); n += 1
        if cfg.get("QS") and k in cfg["QS"]: stamp(4 + cfg["QS"].index(k), True)
        sal((2 if k in val else 3) - n)
        for x in val.get(k, []): A(x)
    assert not sq
    stamp(2)
    qd = G + 16
    def addh(d): return [f"v_add_f32 v{d}, v{d}, v{d + 2}", f"v_add_f32 v{d + 1}, v{d + 1}, v{d + 3}"]
    for x in addh(QA) + addh(QA + 4): A(x)
    A(f"v_cvt_pk_bf16_f32 v{qd}, v{QA}, v{QA + 4}\nv_cvt_pk_bf16_f32 v{qd + 1}, v{QA + 1}, v{QA + 5}")
    L.op(f"ds_write2_b32 v{vQw}, v{qd}, v{qd + 1} offset1:16")
    for x in addh(QA + 8) + addh(QA + 12): A(x)
    A(f"v_cvt_pk_bf16_f32 v{KMQ}, v{QA + 8}, v{QA + 12}\nv_cvt_pk_bf16_f32 v{KMQ + 1}, v{QA + 9}, v{QA + 13}")
    L.op(f"ds_write2_b32 v{vQw}, v{KMQ}, v{KMQ + 1} offset0:128 offset1:144", "wk")
    if cfg.get("QS") and 99 in cfg["QS"]: stamp(4 + cfg["QS"].index(99), True)
    rq = [("q", 0), ("k", 0), ("q", 1), ("k", 1), ("K", 4), ("q", 2), ("K", 5), ("k", 2), ("K", 6), ("q", 3), ("K", 7), ("k", 3), ("V", 0), ("V", 1)]
    rest = sum((vv(p) for p in range(NV, 8)), [])
    EB = cfg["EB"]
    for e, (acc, p, wop) in enumerate(rest):
        A(f"{SMF} {v(acc, 4)}, {v(M + 4 * p, 4)}, {wop}, v{vIdx}")
        if (e & 1) and p < 4: kfr(p)
        if e == EB: L.wait("wk"); A("s_barrier")
        if e > EB and rq and (rq[0][0] != "K" or rq[0][1] < p + (e & 1)): frag(*rq.pop(0))
        if e < 2: A(f"v_mov_b64 {v(NEG + 2 * e, 2)}, -1")
        if cfg.get("QS") and 100 + e in cfg["QS"]: stamp(4 + cfg["QS"].index(100 + e), True)
    stamp(3)
    kmst = f"buffer_store_dwordx4 {v(KMQ, 4)}, v{vWl0}, {S4(rWS)}, s{sKM} offen sc1"
    Sm, S0, S1 = QA, QA + 4, QA + 8
    vq = addh(VA) + addh(VA + 4) + [f"v_cvt_pk_bf16_f32 v{KMQ + 2}, v{VA}, v{VA + 1}", f"v_cvt_pk_bf16_f32 v{KMQ + 3}, v{VA + 4}, v{VA + 5}"]
    zq = [f"v_mov_b64 {v(M + i, 2)}, 0" for i in range(0, 32, 2)]
    def z(n):
        for _ in range(n):
            if zq: A(zq.pop(0))
    for t in range(4):
        need = [("q", t), ("k", t), ("K", 2 * t), ("K", 2 * t + 1)]
        while any(x not in L.tags for x in need): frag(*rq.pop(0))
        L.wait(min((L.need(x), x) for x in need)[1])
        for i, (d, a_) in enumerate(((S0, M + 8 * t), (S1, M + 8 * t + 4), (Sm, G + 8 * t + 4))):
            A(f"{MF} {v(d, 4)}, {v(a_, 4)}, {v(G + 8 * t, 4)}, {v(d, 4) if t else 0}")
            e = 3 * t + i
            if rq and (rq[0][0] != "V" or e >= 2): frag(*rq.pop(0))
            if 2 <= e <= 4: A(vq[2 * (e - 2)] + "\n" + vq[2 * (e - 2) + 1])
            if e == 4: A(f"s_cmp_eq_u32 s{sSTEP}, {cfg.get('LAST', NSEG - 1)}")
            if e == 5 and not cfg.get("XL"): A("s_cbranch_scc1 L_ch_exit")
            if e in cfg["RST"]: A(rst(cfg["RST"].index(e)))
            if e == 6 and cfg["KME"] < 0: A(kmst + f"\ns_add_u32 s{sKM}, s{sKM}, {32 * 4096}")
            if e == 7: A(f"v_mov_b64 {v(G + 8, 2)}, s[{sONE}:{sONE + 1}]\nv_mov_b64 {v(G + 10, 2)}, s[{sONE}:{sONE + 1}]")
            if e >= 8: z(2)
    assert not rq
    stamp(4)
    if cfg.get("XL"): A(f"s_cmp_eq_u32 s{sSTEP}, {NSEG - 1}\ns_cbranch_scc1 L_ch_exit")
    m1, m2, m3, tt = G + 28, G + 29, G + 30, G + 31
    z(1)
    A(f"""v_max3_f32 v{m1}, v{S0}, v{S0 + 1}, v{S0 + 2}
    v_max3_f32 v{m2}, v{S0 + 3}, v{S1}, v{S1 + 1}
    v_max3_f32 v{m3}, v{S1 + 2}, v{S1 + 3}, v{m1}
    v_max3_f32 v{m1}, v{Sm}, v{Sm + 1}, v{m2}
    v_max_f32 v{m2}, v{m1}, v{m3}
    v_max_f32 v{tt}, v{m1}, v{m3}""")
    z(2)
    A(f"v_permlane16_swap_b32 v{m2}, v{tt}\nv_max_f32 v{m1}, v{m2}, v{tt}\nv_max_f32 v{m3}, v{m2}, v{tt}")
    z(2)
    A(f"v_permlane32_swap_b32 v{m1}, v{m3}\nv_max_f32 v{m1}, v{m1}, v{m3}\nv_mul_f32 v{m1}, s{sC}, v{m1}")
    sv = [Sm, Sm + 1] + [S0 + i for i in range(8)]
    P = G + 12
    O0, O1, SU = G + 16, G + 20, G + 24
    fm = lambda x: f"v_fma_f32 v{x}, v{x}, s{sC}, -v{m1}"
    A(fm(sv[0]))
    for i in range(10):
        if i + 1 < 10: A(fm(sv[i + 1]))
        A(f"v_exp_f32 v{sv[i]}, v{sv[i]}")
        if i == 2: A(f"v_cvt_pk_bf16_f32 v{PM}, v{Sm}, v{Sm + 1}\nv_cvt_pk_bf16_f32 v{PM + 3}, v{Sm}, v{Sm + 1}")
        if i in (4, 6, 8): A(f"v_cvt_pk_bf16_f32 v{P + (i - 4) // 2}, v{sv[i - 2]}, v{sv[i - 1]}")
        if i == 3: A(f"{MF16} {v(SU, 4)}, {v(G + 8, 2)}, {v(PM, 2)}, 0")
        if i == 5: A(f"{MF16} {v(O0, 4)}, {v(KMQ + 2, 2)}, {v(PM, 2)}, 0")
        if i == 7: A(f"{MF16} {v(O1, 4)}, {v(KMQ + 2, 2)}, {v(PM + 2, 2)}, 0")
    L.wait(("V", 1))
    A(f"v_cvt_pk_bf16_f32 v{P + 3}, v{sv[8]}, v{sv[9]}")
    stamp(5)
    z(2)
    A(f"{MF} {v(SU, 4)}, {v(G + 8, 4)}, {v(P, 4)}, {v(SU, 4)}"); z(2)
    A(f"{MF} {v(O0, 4)}, {v(G, 4)}, {v(P, 4)}, {v(O0, 4)}")
    A(f"{MF} {v(O1, 4)}, {v(G + 4, 4)}, {v(P, 4)}, {v(O1, 4)}")
    ost = lambda k: (VA, G, QA + 8, G + 24, G + 8, VA)[k]
    def owr(k, hf): L.op(f"ds_read_b128 {v(ost(k) + 4 * hf, 4)}, v{vWl1} offset:{k * 2048 + hf * 1024}", ("ow", k))
    owr(0, 0)
    A(f"v_rcp_f32 v{SU}, v{SU}")
    owr(0, 1)
    for o in (O0, O1):
        for i in range(4): A(f"v_mul_f32 v{o + i}, v{o + i}, v{SU}")
        for i in range(2): A(f"v_cvt_pk_bf16_f32 v{P + (o - O0) // 2 + i}, v{o + 2 * i}, v{o + 2 * i + 1}")
    assert not zq
    L.op(f"ds_write_b128 v{vOw}, {v(P, 4)}", "ow")
    owr(1, 0); owr(1, 1)
    L.wait("ow"); A("s_barrier")
    L.op(f"ds_read_b128 {v(QA, 4)}, v{vOr}", "o0"); L.op(f"ds_read_b128 {v(QA + 4, 4)}, v{vOr} offset:1024", "o1")
    stamp(6)
    L.wait("o0")
    OQ = G + 16
    tile = lambda t: addh(M + 4 * t) + [f"v_cvt_pk_bf16_f32 v{OQ + t}, v{M + 4 * t}, v{M + 4 * t + 1}"]
    def pstore(p): A(f"buffer_store_dwordx2 {v(OQ + 2 * p, 2)}, v{vPartSt}, {S4(rWS)}, s{sPW if p < 2 else sWO} offen offset:{2048 * (p & 1)}")
    rl = "\n".join(f"buffer_load_dwordx4 {v(RD + 4 * i, 4)}, v{vWl0}, {S4(rWS)}, s{sPR} offen offset:{1024 * i} sc1" for i in range(2))
    sq.extend(sc_next)
    for e in range(16):
        t, u = e >> 1, e & 1
        A(f"{SMF} {v(M + 4 * t, 4)}, {v(QA + 4 * u, 4)}, {W8(WO(t, u)) if t < 5 else v(ost(e - 10), 8)}, v{vIdx}")
        if e == 0: L.wait("o1")
        if e == cfg["KME"]: A(kmst + f"\ns_add_u32 s{sKM}, s{sKM}, {32 * 4096}")
        if e < 6: owr(2 + e // 2, e & 1)
        if e == 10: owr(5, 0); owr(5, 1)
        if e == 9: L.wait(("ow", 4))
        if e == 14: L.wait(("ow", 5))
        if e in (7, 11) or (e == 15 and cfg['PREP'] != 'c'): pstore((e - 7) // 4)
        if e >= 1: sal(1)
        if e in (1, 2): A(f"v_xor_b32 v{vKr if e == 1 else vVr}, 0x3c000, v{vKr if e == 1 else vVr}")
        if e >= 3 and (e & 1): A(tile((e - 3) // 2)[0] + "\n" + tile((e - 3) // 2)[1])
        if e >= 4 and not (e & 1): A(tile((e - 4) // 2)[2])
    assert not sq
    A(tile(6)[2])
    for i in range(0, 8, 2): A(f"v_mov_b64 {v(RD + i, 2)}, -1")
    pre = f"s_mov_b64 exec, s[{sPX}:{sPX + 1}]\n{rl}\ns_mov_b64 exec, -1"
    if cfg["PREP"] == "c": A(pre); pstore(2)
    for x in tile(7): A(x)
    if cfg["PREP"] == "a": A(pre)
    pstore(3)
    stamp(7)
    rmf = lambda i: f"{MF} {v(RA, 4)}, {v(SEL, 4)}, {v(RD + 4 * i, 4)}, {v(RA, 4) if i else 0}"
    def steplog():
        if PROF:
            A(f"""s_memrealtime s[100:101]
            s_waitcnt lgkmcnt(0)
            s_bitcmp1_b32 s{sW}, 0
            s_cselect_b32 s3, s100, s{sTS + 14}
            v_mov_b32 v{vT}, s3
            s_lshl_b32 s{st0}, s{sRK}, 6
            s_add_u32 s{st0}, s{st0}, s{sSTEP}
            s_lshl_b32 s{st0}, s{st0}, 2
            s_add_u32 s{st0}, s{st0}, {WS_DBG + 0x8000}
            s_lshl_b32 s3, s{sW}, 13
            s_add_u32 s{st0}, s{st0}, s3
            s_mov_b64 exec, 1
            buffer_store_dword v{vT}, off, {S4(rWS)}, s{st0}
            s_mov_b64 exec, -1""")
    def progchk():
        prog_spin()
        if NKV == 2: A(f"s_xor_b32 s{sPG}, s{sPG}, 4096")
        A(prog_ld(vProg)); steplog()
    def odd(n):
        l = A.lab()
        A(f"s_bitcmp1_b32 s{sW}, 0\ns_cbranch_scc0 {l}"); delay(n); A(f"{l}:")
    chores = {"s": lambda: [A(f"v_cndmask_b32 v{SEL + i}, 0, v{vSel}, s[{sMSK + 2 * i}:{sMSK + 2 * i + 1}]") for i in range(4)] +
                           [fill_ones(A, ES, 8)],
              "p": preload, "z": zero_acc, "A": lambda: A(rl), "e": lambda: delay(4), "d": lambda: delay(8), "D": lambda: delay(16),
              "k": progchk, "o": lambda: odd(8), "O": lambda: odd(16)}
    A(f"s_cmp_lt_u32 s{sW}, 2\ns_cbranch_scc1 L_early")
    for ch in cfg["RED"][1]: chores[ch]()
    A("s_branch L_red0\nL_early:")
    for ch in cfg["RED"][0]: chores[ch]()
    A("L_red0:")
    spin_init(A)
    def unit():
        for x in mx(RD, 8) + [CMP, rmf(0), rmf(1)]: A(x)
        A("s_cbranch_vccz L_pub")
    A("s_mov_b64 vcc, -1\nL_red:\n" + masked(rl))
    if PROF: A(f"s_add_u32 s{sTS + 23}, s{sTS + 23}, 1")
    spin_step(A)
    A(f"s_waitcnt vmcnt({2 * cfg['RED'][0].count('A')})")
    for x in mx(RD, 8) + [CMP, rmf(0), rmf(1)]: A(x)
    A("s_cbranch_vccnz L_red")
    stamp(8)
    for r in (4, 8):
        for i in range(4): A(f"v_add_f32_dpp v{RA + i}, v{RA + i}, v{RA + i} row_ror:{r} row_mask:0xf bank_mask:0xf")
    A(f"""v_cvt_pk_bf16_f32 v{RA}, v{RA}, v{RA + 1}
    s_mov_b64 exec, {PUBX}
    v_cvt_pk_bf16_f32 v{RA + 1}, v{RA + 2}, v{RA + 3}
    buffer_store_dwordx2 {v(RA, 2)}, v{vMemSt}, {S4(rWS)}, s{sMN} offen
    buffer_store_dwordx2 {v(ES, 2)}, v{vMemSt}, {S4(rWS)}, s{sMZ} offen
    s_mov_b64 exec, -1""")
    stamp(9)
    A("s_branch L_fetch")
    A("L_ch_exit:\n" + kmst)
    timeline(A, cfg, 3, vT)
    if PROF:
        A(f"""s_waitcnt lgkmcnt(0)
        s_lshl_b32 s{st0}, s{sRK}, 2
        s_add_u32 s{st0}, s{st0}, s{sW}
        s_lshl_b32 s{st0}, s{st0}, 7
        s_add_u32 s{st0}, s{st0}, {WS_DBG}
        s_mov_b64 exec, 1""")
        for i, r in enumerate([sTS + 2 * i for i in range(11)] + [sTS + 23, 2, sTS + 22]): A(f"v_mov_b32 v0, s{r}\nbuffer_store_dword v0, v{vZ}, {S4(rWS)}, s{st0} offen offset:{4 * i}")
    A("s_endpgm")
```

```python
from common import *
from ln import *

def role_ffn(A, cfg):
    NF = cfg["NFFN"]
    sT, sC, sCNT, sI, sSEG, sFLG, sIN, sPW, sPW1, sB1, sB2, sROW, sL2E, st0, st1, st2 = range(56, 72)
    vLane, vOff1, vOff2, vT, vT0, vL16, vXw, vXr, vHw, vSt, vRl, vRow, vL4, vZ, t0, t1, t2, vPG = range(200, 218)
    SELA = 224
    L_H = 36864
    A(f"L_ffn:\ns_mov_b32 s{sT}, s3")
    timeline(A, cfg, 0, 1)
    srd(A, rD, pX, 1 << 21)
    lane_fields(A, vLane)
    A(f"""v_lshlrev_b32 v{vL16}, 4, v{vLane}
    v_mov_b32 v{vZ}, 0
    s_lshl_b32 s{sC}, s{sT}, 5
    s_add_u32 s{sC}, s{sC}, s{sRK}
    s_cmp_ge_u32 s{sC}, 64
    s_cbranch_scc1 L_ffn_noln""")
    ln_stage(A, sC, vLane, st0, st1)
    A("L_ffn_noln:")
    A(f"""
    s_lshl_b32 s{sFLG}, s{sT}, 8
    s_add_u32 s{sFLG}, s{sFLG}, {WS_FLG2}
    s_lshl_b32 s{st0}, s{sRK}, 2
    s_add_u32 s{st0}, s{st0}, s{sFLG}
    s_mov_b64 exec, 1
    buffer_store_dword v{vZ}, v{vZ}, {S4(rWS)}, s{st0} offen
    s_mov_b64 exec, -1
    s_waitcnt vmcnt(0)
    s_barrier""")
    timeline(A, cfg, 1, t0)
    signal_done(A, t0, t1)
    if "ffn" not in cfg["ENABLE"]:
        A("s_endpgm"); return
    srd(A, rA, pW1, 512 * 3584); srd(A, rB, pW3, 512 * 3584); srd(A, rC, pW2, 1792 * 1024); srd(A, rD, pOUT, 1 << 21)
    seg_count(A, sCNT, sT, NF)
    A(f"v_mov_b32 v{SELA}, 0x3f80")
    row_consts(A, vLane, vRl, vRow, SELA, t0, t1)
    A(f"""v_lshrrev_b32 v{t0}, 2, v{vLane}
    v_mul_u32_u24 v{t0}, 1088, v{t0}
    v_and_b32 v{t1}, 3, v{vLane}
    v_mul_u32_u24 v{t1}, 272, v{t1}
    s_lshr_b32 s{st0}, s{sW}, 1
    s_mul_i32 s{st0}, s{st0}, 17408
    s_and_b32 s{st1}, s{sW}, 1
    s_lshl_b32 s{st2}, s{st1}, 7
    s_add_u32 s{st0}, s{st0}, s{st2}
    v_add3_u32 v{vXw}, v{t0}, v{t1}, s{st0}
    v_and_b32 v{t0}, 15, v{vLane}
    v_lshrrev_b32 v{t1}, 4, v{vLane}
    v_mul_u32_u24 v{t2}, 272, v{t1}
    v_lshl_add_u32 v{vXr}, v{t0}, 4, v{t2}
    s_lshr_b32 s{st0}, s{sW}, 1
    s_lshl_b32 s{st0}, s{st0}, 10
    s_lshl_b32 s{st1}, s{st1}, 3
    s_add_u32 s{st0}, s{st0}, s{st1}
    v_add_u32 v{vHw}, s{st0}, v{vL16}
    s_lshl_b32 s{st0}, s{sW}, 8
    v_lshlrev_b32 v{t2}, 4, v{t1}
    v_lshl_or_b32 v{t2}, v{t0}, 15, v{t2}
    v_add_u32 v{vSt}, s{st0}, v{t2}
    s_mov_b32 s{sL2E}, 0xbfb8aa3b""")
    A(f"""v_and_b32 v{vL4}, 31, v{vLane}
    v_lshlrev_b32 v{vPG}, 7, v{vL4}
    v_lshlrev_b32 v{vL4}, 2, v{vL4}
    s_mov_b32 s{sI}, 0
    s_mov_b32 s{sSEG}, s{sT}
    s_cmp_ge_u32 s{sRK}, 28
    s_cbranch_scc1 L_ffn_go""")
    dma_col(A, t2, vLane, t0, t1, st0)
    rows_out(A, vOff2, t2, vLane, t0, st0, st1)
    A(f"""s_and_b32 s{st0}, s{sW}, 1
    s_lshl_b32 s{st0}, s{st0}, 8
    s_lshr_b32 s{st1}, s{sW}, 1
    s_lshl_b32 s{st1}, s{st1}, 2
    s_add_u32 s{st0}, s{st0}, s{st1}
    v_lshrrev_b32 v{t0}, 4, v{vLane}
    v_add_u32 v{t0}, s{st0}, v{t0}
    v_lshrrev_b32 v{t1}, 7, v{t2}
    v_lshl_add_u32 v{t0}, v{t1}, 6, v{t0}
    v_mul_u32_u24 v{t0}, 3584, v{t0}
    v_and_b32 v{t2}, 127, v{t2}
    v_add_u32 v{vOff1}, v{t0}, v{t2}
    s_lshl_b32 s{sB1}, s{sRK}, 7
    s_lshl_b32 s{sB2}, s{sRK}, 16""")
    tr_base(A, vT, vLane, t0, t1)
    A(f"s_lshl_b32 s{st0}, s{sW}, 5\nv_xor_b32 v{vT0}, s{st0}, v{vT}")
    chunks = []
    for SC in range(4):
        for m, r in ((0, rA), (1, rB)):
            def ex(A, base, m=m, SC=SC):
                A(f"v_add_u32 v{t0}, {base}, v{vT0}\nv_xor_b32 v{t1}, 128, v{t0}")
                tr_tile(A, "a", 64 * m + 16 * SC, t0); tr_tile(A, "a", 64 * m + 16 * SC + 8, t1)
            chunks.append(dict(srd=r, voff=vOff1, sbase=sB1, offs=[(8 * (i & 1) + 32 * (i >> 1) + 16 * (SC & 1) + 128 * (SC >> 1)) * 3584 for i in range(4)], extract=ex))
    for w in range(4):
        chunks.append(dict(srd=rC, voff=vOff2, sbase=sB2, offs=[r * 1024 + w * 256 for r in ROWS_OUT],
                           extract=lambda A, base, w=w: extract8(A, base, w, vT, t0, t1, lambda t: 128 + 8 * t)))
    load_chunks(A, chunks, 10, cfg["FFN_DEPTH"], 0, st0, st1)
    A("L_ffn_go:")
    timeline(A, cfg, 2, t0)
    wait_done(A, t0, t1, st0)
    A("s_barrier")

    A("L_ffn_loop:")
    A(f"""s_and_b32 s{st0}, s{sI}, 1
    s_lshl_b32 s{st0}, s{st0}, 20
    s_lshl_b32 s{st1}, s{sT}, 21
    s_add_u32 s{st0}, s{st0}, s{st1}
    s_add_u32 s{st0}, s{st0}, {WS_PART2}
    s_lshl_b32 s{st1}, s{sRK}, 10
    s_add_u32 s{sPW}, s{st0}, s{st1}
    s_add_u32 s{sPW1}, s{sPW}, {16 * 32768}
    s_lshl_b32 s{st1}, s{sRK}, 15
    s_add_u32 s{sIN}, s{st0}, s{st1}
    s_lshl_b32 s{sROW}, s{sSEG}, 15
    s_add_u32 s{sI}, s{sI}, 1""")
    if cfg["NKV"] == 2: A(f"s_and_b32 s{st0}, s{sSEG}, 1\ns_lshl_b32 s{st0}, s{st0}, 12\ns_add_u32 s{st0}, s{st0}, {WS_PROG}\ns_lshr_b32 s{st1}, s{sSEG}, 1\ns_add_u32 s{st1}, s{st1}, 1")
    else: A(f"s_mov_b32 s{st0}, {WS_PROG}\ns_add_u32 s{st1}, s{sSEG}, 1")
    wait_flags(A, t0, vPG, st0, st1)
    A(f"""s_cmp_ge_u32 s{sRK}, 28
    s_cbranch_scc1 L_ffn_flag
    s_lshl_b32 s{st1}, s{sW}, 13
    s_add_u32 s{st1}, s{st1}, s{sROW}
    s_add_u32 s{st1}, s{st1}, {WS_XN2}
    s_add_u32 s{st2}, s{st1}, 4096""")
    XR = 64
    spin_init(A)
    A("L_ffn_x:")
    for i in range(8): A(f"buffer_load_dwordx4 {v(XR + 4 * i, 4)}, v{vL16}, {S4(rWS)}, s{st1 if i < 4 else st2} offen offset:{(i % 4) * 1024} sc1")
    spin_step(A)
    for i in range(8):
        A(f"s_waitcnt vmcnt({7 - i})\nds_write_b128 v{vXw}, {v(XR + 4 * i, 4)} offset:{16 * i}")
        for k in range(2): A(f"v_max3_u32 v{t0}, v{t0 if i or k else XR}, v{XR + 4 * i + 2 * k}, v{XR + 4 * i + 2 * k + 1}")
    A(f"v_cmp_eq_u32 vcc, -1, v{t0}\ns_cbranch_vccnz L_ffn_x\ns_waitcnt lgkmcnt(0)\ns_barrier")
    timeline(A, cfg, 72, t0)
    NB = 4
    xf = lambda ks, a_: 16 + ((ks % NB) * 2 + a_) * 4
    def rd(ks):
        for a_ in range(2): A(f"ds_read_b128 {v(xf(ks, a_), 4)}, v{vXr} offset:{a_ * 17408 + ks * 1088}")
    rd(0); rd(1); rd(2)
    for ks in range(16):
        A(f"s_waitcnt lgkmcnt({min(4, 2 * (15 - ks))})")
        for k, (a_, m) in enumerate(((0, 0), (0, 1), (1, 0), (1, 1))):
            c = (2 * m + a_) * 4
            A(f"{MF} {v(c, 4)}, {a(m * 64 + 4 * ks, 4)}, {v(xf(ks, a_), 4)}, {v(c, 4) if ks else 0}")
            if k == 0 and ks + 3 < 16: rd(ks + 3)
    E = 16
    for a_ in range(2):
        g, u = 4 * a_, 8 + 4 * a_
        for j in range(4): A(f"v_mul_f32 v{E + j}, s{sL2E}, v{g + j}\nv_exp_f32 v{E + j}, v{E + j}")
        for j in range(4): A(f"v_mul_f32 v{u + j}, v{u + j}, v{g + j}\nv_add_f32 v{E + j}, 1.0, v{E + j}\nv_rcp_f32 v{E + j}, v{E + j}")
        for j in range(4): A(f"v_mul_f32 v{u + j}, v{u + j}, v{E + j}")
        pack(A, 24 + 2 * a_, u, 2)
        A(f"ds_write_b64 v{vHw}, {v(24 + 2 * a_, 2)} offset:{L_H + 2048 * a_}")
    A("s_waitcnt lgkmcnt(0)\ns_barrier")
    HF, ACC, OUT = 32, 64, 16
    for i in range(4): A(f"ds_read_b128 {v(HF + 4 * i, 4)}, v{vL16} offset:{L_H + 1024 * i}")
    A("s_waitcnt lgkmcnt(0)")
    proj_out(A, 2, lambda t, ks: 128 + 8 * t + 4 * ks, HF, ACC, OUT, vSt, sPW)
    A(f"""s_waitcnt vmcnt(0)
    L_ffn_flag:
    v_mov_b32 v{t0}, s{sI}
    s_lshl_b32 s{st0}, s{sRK}, 2
    s_add_u32 s{st0}, s{st0}, s{sFLG}
    s_barrier
    s_cmp_lg_u32 s{sW}, 0
    s_cbranch_scc1 L_ffn_next
    s_mov_b64 exec, 1
    buffer_store_dword v{t0}, v{vZ}, {S4(rWS)}, s{st0} offen
    s_mov_b64 exec, -1
    s_lshl_b32 s{st0}, s{sRK}, 10
    s_add_u32 s{sROW}, s{sROW}, s{st0}""")
    timeline(A, cfg, 73, t0)
    wait_flags(A, t0, vL4, sFLG, sI)
    D, R, X, H = 0, 128, 136, 144
    A(f"s_add_u32 s{st1}, s{sROW}, {WS_HB}\nbuffer_load_dwordx4 {v(H, 4)}, v{vL16}, {S4(rWS)}, s{st1} offen sc1")
    row_sum(A, 7, D, R, SELA, vRl, sIN, st0)
    spin_init(A)
    A("L_ffn_h:")
    max_chk(A, t0, H, 4)
    A(f"s_cbranch_vccz L_ffn_hok\nbuffer_load_dwordx4 {v(H, 4)}, v{vL16}, {S4(rWS)}, s{st1} offen sc1")
    spin_step(A)
    A("s_waitcnt vmcnt(0)\ns_branch L_ffn_h\nL_ffn_hok:")
    unpack(A, X, H, 4)
    pack(A, H, R, 4); unpack(A, R, H, 4)
    for i in range(8): A(f"v_add_f32 v{R + i}, v{R + i}, v{X + i}")
    pack(A, H, R, 4)
    for i in range(2): A(f"buffer_store_dwordx2 {v(H + 2 * i, 2)}, v{vRow}, {S4(rD)}, s{sROW} offen offset:{512 * i}")
    timeline(A, cfg, 7, t0, sI)
    A(f"""L_ffn_next:
    s_add_u32 s{sSEG}, s{sSEG}, {NF}
    s_cmp_lt_u32 s{sI}, s{sCNT}
    s_cbranch_scc1 L_ffn_loop
    s_endpgm""")
```

```python
from common import *

def role_kv(A, cfg):
    NKV = cfg["NKV"]
    sT, sCNT, sI, sSEG, sHB, sXB, sKVO, sPROG, st0, st1, st2, sCL = range(56, 68)
    vLane, vOff, vT0, vT1, vL16, vXr, t0, t1, t2 = 100, 101, 102, 103, 104, 105, 106, 107, 108
    A(f"L_kv:\ns_mov_b32 s{sT}, s3")
    timeline(A, cfg, 0, 1)
    srd(A, rA, pWK, 1 << 22); srd(A, rB, pWV, 1 << 22)
    lane_fields(A, vLane)
    A(f"""s_lshl_b32 s{sPROG}, s{sT}, 5
    s_add_u32 s{sPROG}, s{sPROG}, s{sRK}
    s_lshl_b32 s{sPROG}, s{sPROG}, 7
    s_add_u32 s{sPROG}, s{sPROG}, {WS_PROG}
    v_mov_b32 v{t2}, 0
    s_mov_b64 exec, 1
    buffer_store_dword v{t2}, v{t2}, {S4(rWS)}, s{sPROG} offen sc1
    s_mov_b64 exec, -1""")
    dma_col(A, vOff, vLane, t0, t1, st0)
    A(f"""v_lshrrev_b32 v{t0}, 4, v{vLane}
    s_lshl_b32 s{st0}, s{sW}, 2
    v_add_u32 v{t0}, s{st0}, v{t0}
    v_lshl_add_u32 v{vOff}, v{t0}, 13, v{vOff}
    s_lshl_b32 s{sHB}, s{sRK}, 8""")
    tr_base(A, vT0, vLane, t0, t1)
    A(f"""s_lshl_b32 s{st0}, s{sW}, 6
    v_xor_b32 v{vT0}, s{st0}, v{vT0}
    v_lshlrev_b32 v{vL16}, 4, v{vLane}""")
    chunks = []
    for C in range(8):
        for m, r in ((0, rA), (1, rB)):
            def ex(A, base, m=m, C=C):
                A(f"v_add_u32 v{t0}, {base}, v{vT0}\nv_xor_b32 v{t1}, 32, v{t0}")
                tr_tile(A, "a", m * 128 + C * 8, t0)
                tr_tile(A, "a", m * 128 + 64 + C * 8, t1)
            chunks.append(dict(srd=r, voff=vOff, sbase=sHB, offs=[(64 * C + 16 * i) * 8192 for i in range(4)], extract=ex))
    load_chunks(A, chunks, 10, cfg["KV_DEPTH"], 0, st0, st1, hooks={0: lambda: signal_done(A, t0, t1)})
    timeline(A, cfg, 1, t0)
    wait_done(A, t0, t1, st0)
    timeline(A, cfg, 2, t0)
    A("s_barrier")
    cnt_expr = [(NSEG - t + NKV - 1) // NKV for t in range(NKV)]
    A(f"s_mov_b32 s{sCNT}, {cnt_expr[0]}")
    for t in range(1, NKV):
        if cnt_expr[t] != cnt_expr[0]: A(f"s_cmp_eq_u32 s{sT}, {t}\ns_cselect_b32 s{sCNT}, {cnt_expr[t]}, s{sCNT}")
    def dma_x(segreg, bufreg):
        A(f"""s_lshl_b32 s{st0}, s{segreg}, 15
        s_lshl_b32 s{st1}, s{sW}, 13
        s_add_u32 s{st0}, s{st0}, s{st1}
        s_add_u32 m0, s{bufreg}, s{st1}""")
        if WS_XN: A(f"s_add_u32 s{st0}, s{st0}, {WS_XN}")
        else: A("s_nop 0")
        for i in range(8):
            if i == 4: A(f"s_add_u32 s{st0}, s{st0}, 4096\ns_add_u32 m0, m0, 4096\ns_nop 0")
            A(f"buffer_load_dwordx4 v{vL16}, {S4(rWS)}, s{st0} offen offset:{(i % 4) * 1024} sc1 lds")
    A(f"""s_mov_b32 s{sI}, 0
    s_mov_b32 s{sSEG}, s{sT}
    s_mov_b32 s{sXB}, 0
    v_mov_b32 v{vXr}, v{vL16}""")
    dma_x(sSEG, sXB)
    fill_ones(A, 80, 4)
    A(f"""s_lshl_b32 s{sCL}, s{sRK}, 10
    s_and_b32 s{st0}, s{sW}, 1
    s_mul_i32 s{st0}, s{st0}, {WS_HB - WS_XN2}
    s_add_u32 s{sCL}, s{sCL}, s{st0}
    s_add_u32 s{sCL}, s{sCL}, {WS_XN2}
    s_waitcnt vmcnt(0)""")
    A("L_kv_loop:\ns_waitcnt vmcnt(6)\ns_barrier")
    A(f"""s_add_u32 s{st2}, s{sSEG}, {NKV}
    s_min_u32 s{st2}, s{st2}, {NSEG - 1}
    s_xor_b32 s{sXB}, s{sXB}, 32768""")
    NB = 3
    xf = lambda ks, a_: 32 + ((ks % NB) * 2 + a_) * 4
    def rd(ks):
        for a_ in range(2): A(f"ds_read_b128 {v(xf(ks, a_), 4)}, v{vXr} offset:{(a_ * 16 + ks) * 1024}")
    rd(0); rd(1)
    dma_x(st2, sXB)
    for ks in range(16):
        if ks == 8:
            l = A.lab()
            A(f"""s_waitcnt vmcnt(8)
            s_barrier
            s_cmp_lg_u32 s{sW}, 0
            s_cbranch_scc1 {l}
            v_mov_b32 v{t0}, s{sI}
            s_mov_b64 exec, 1
            buffer_store_dword v{t0}, v{t2}, {S4(rWS)}, s{sPROG} offen sc1
            s_mov_b64 exec, -1
            {l}:""")
        A(f"s_waitcnt lgkmcnt({2 if ks < 15 else 0})")
        k = 0
        for a_ in range(2):
            for b in range(2):
                c = (2 * b + a_) * 4
                A(f"v_mfma_f32_16x16x32_bf16 {v(c, 4)}, {a(b * 64 + 4 * ks, 4)}, {v(xf(ks, a_), 4)}, {v(c, 4) if ks else 0}")
                c = 16 + (2 * b + a_) * 4
                A(f"v_mfma_f32_16x16x32_bf16 {v(c, 4)}, {v(xf(ks, a_), 4)}, {a(128 + b * 64 + 4 * ks, 4)}, {v(c, 4) if ks else 0}")
                k += 1
                if cfg.get('KVNOP'): A(f"s_nop {cfg['KVNOP'] - 1}")
                if k == 1 and ks + 2 < 16: rd(ks + 2)
    A(f"""s_lshl_b32 s{sKVO}, s{sSEG}, 5
    s_add_u32 s{sKVO}, s{sKVO}, s{sRK}
    s_lshl_b32 s{sKVO}, s{sKVO}, 2
    s_add_u32 s{sKVO}, s{sKVO}, s{sW}
    s_lshl_b32 s{st0}, s{sKVO}, 10
    s_add_u32 s{st0}, s{st0}, {WS_KM}
    s_lshl_b32 s{st1}, s{sSEG}, 15
    s_add_u32 s{st1}, s{st1}, s{sCL}
    buffer_store_dwordx4 v[80:83], v{vL16}, {S4(rWS)}, s{st0} offen sc1
    buffer_store_dwordx4 v[80:83], v{vL16}, {S4(rWS)}, s{st1} offen sc1
    s_lshl_b32 s{sKVO}, s{sKVO}, 12
    s_add_u32 s{sKVO}, s{sKVO}, {WS_KV}
    v_xor_b32 v{vXr}, 32768, v{vXr}""")
    for a_ in range(2):
        for j in range(4): A(f"v_cvt_pk_bf16_f32 v{72 + 4 * a_ + j}, v{a_ * 4 + j}, v{(2 + a_) * 4 + j}")
        A(f"buffer_store_dwordx4 {v(72 + 4 * a_, 4)}, v{vL16}, {S4(rWS)}, s{sKVO} offen offset:{2048 + a_ * 1024} sc1")
    for b in range(2):
        for a_ in range(2):
            c = 16 + (2 * b + a_) * 4
            for j in range(2): A(f"v_cvt_pk_bf16_f32 v{64 + 4 * b + 2 * a_ + j}, v{c + 2 * j}, v{c + 2 * j + 1}")
        A(f"buffer_store_dwordx4 {v(64 + 4 * b, 4)}, v{vL16}, {S4(rWS)}, s{sKVO} offen offset:{b * 1024} sc1")
    timeline(A, cfg, 8, t0, sI)
    A(f"""s_add_u32 s{sI}, s{sI}, 1
    s_add_u32 s{sSEG}, s{sSEG}, {NKV}
    s_cmp_lt_u32 s{sI}, s{sCNT}
    s_cbranch_scc1 L_kv_loop
    s_waitcnt vmcnt(0)
    s_barrier
    v_mov_b32 v{t0}, s{sI}
    s_mov_b64 exec, 1
    buffer_store_dword v{t0}, v{t2}, {S4(rWS)}, s{sPROG} offen sc1
    s_endpgm""")
```

```python
from common import *
from ln import round_bf, ln_scale

def role_qo(A, cfg):
    NQO, NKV = cfg["NQO"], cfg["NKV"]
    sT, sCNT, sI, sSEG, sHB, sFLG, sIN, sPW, sPW1, sKM, sNEED, sPG, sC, sROW, st0, st1, st2 = range(56, 73)
    sMSK = 74
    L_X, L_KV, L_Q, L_KMK, L_KMV, L_O = 0, 32768, 49152, 57344, 59392, 0
    vLane, vOffQ, vOffO, vT, vT0, vL16, vWl0, vWk, vWv, vRk, vRv, vSt, vRl, vRow, vL4, vQr, vVr, vZ, t0, t1, t2 = range(200, 221)
    SELA, ONES, PM, KMD = 224, 232, 236, 240
    A(f"L_qo:\ns_mov_b32 s{sT}, s3")
    timeline(A, cfg, 0, 1)
    srd(A, rA, pWQ, 1 << 22); srd(A, rB, pWO, 1 << 22); srd(A, rD, pX, 1 << 21)
    lane_fields(A, vLane)
    A(f"""v_lshlrev_b32 v{vL16}, 4, v{vLane}
    s_lshl_b32 s{st0}, s{sW}, 12
    v_add_u32 v{vWl0}, s{st0}, v{vL16}
    v_mov_b32 v{vZ}, 0""")
    seg_count(A, sCNT, sT, NQO)
    A(f"""s_lshl_b32 s{sKM}, s{sT}, 5
    s_add_u32 s{sKM}, s{sKM}, s{sRK}
    s_lshl_b32 s{sKM}, s{sKM}, 2
    s_add_u32 s{sKM}, s{sKM}, s{sW}
    s_lshl_b32 s{sKM}, s{sKM}, 10
    s_add_u32 s{sKM}, s{sKM}, {WS_KM}
    s_lshl_b32 s{sFLG}, s{sT}, 8
    s_add_u32 s{sFLG}, s{sFLG}, {WS_FLG1}
    s_lshl_b32 s{st0}, s{sRK}, 2
    s_add_u32 s{st0}, s{st0}, s{sFLG}
    s_mov_b64 exec, 1
    buffer_store_dword v{vZ}, v{vZ}, {S4(rWS)}, s{st0} offen
    s_mov_b64 exec, -1
    s_waitcnt vmcnt(0)
    s_barrier""")
    signal_done(A, t0, t1)
    if "qo" not in cfg["ENABLE"]:
        A("s_endpgm"); return
    dma_col(A, t2, vLane, t0, t1, st0)
    A(f"""v_lshrrev_b32 v{t0}, 4, v{vLane}
    s_lshl_b32 s{st0}, s{sW}, 2
    v_add_u32 v{t0}, s{st0}, v{t0}
    v_lshl_add_u32 v{vOffQ}, v{t0}, 13, v{t2}
    s_lshl_b32 s{sHB}, s{sRK}, 8
    s_lshl_b32 s{sIN}, s{sRK}, 17""")
    rows_out(A, vOffO, t2, vLane, t0, st0, st1)
    tr_base(A, vT, vLane, t0, t1)
    A(f"s_lshl_b32 s{st0}, s{sW}, 6\nv_xor_b32 v{vT0}, s{st0}, v{vT}")
    chunks = []
    for C in range(8):
        def ex(A, base, C=C):
            A(f"v_add_u32 v{t0}, {base}, v{vT0}\nv_xor_b32 v{t1}, 32, v{t0}")
            tr_tile(A, "a", C * 8, t0); tr_tile(A, "a", 64 + C * 8, t1)
        chunks.append(dict(srd=rA, voff=vOffQ, sbase=sHB, offs=[(64 * C + 16 * i) * 8192 for i in range(4)], extract=ex))
    for u in range(2):
        for w in range(4):
            chunks.append(dict(srd=rB, voff=vOffO, sbase=sIN, offs=[(64 * u + r) * 1024 + w * 256 for r in ROWS_OUT],
                               extract=lambda A, base, u=u, w=w: extract8(A, base, w, vT, t0, t1, lambda t: 128 + 16 * t + 8 * u)))
    load_chunks(A, chunks, 10, cfg["QO_DEPTH"], 0, st0, st1)
    timeline(A, cfg, 1, t0)
    A(f"v_mov_b32 v{SELA}, 0x3f80")
    row_consts(A, vLane, vRl, vRow, SELA, t0, t1)
    A(f"""v_and_b32 v{t0}, 15, v{vLane}
    v_lshrrev_b32 v{t1}, 4, v{vLane}
    v_and_b32 v{vL4}, 31, v{vLane}
    v_lshlrev_b32 v{vL4}, 2, v{vL4}
    s_lshl_b32 s{st0}, s{sW}, 9
    v_lshlrev_b32 v{t2}, 2, v{t0}
    v_lshl_or_b32 v{t2}, v{t1}, 7, v{t2}
    v_add_u32 v{t2}, s{st0}, v{t2}
    v_add_u32 v{vWk}, {L_KMK}, v{t2}
    v_lshl_add_u32 v{vWv}, v{vLane}, 3, s{st0}
    v_add_u32 v{vWv}, {L_KMV}, v{vWv}
    v_lshrrev_b32 v{t2}, 2, v{t0}
    v_lshlrev_b32 v{t2}, 7, v{t2}
    v_and_b32 v{vRk}, 1, v{t0}
    v_lshl_or_b32 v{t2}, v{vRk}, 6, v{t2}
    v_lshl_or_b32 v{t2}, v{t1}, 4, v{t2}
    v_add_u32 v{vRk}, {L_KMK}, v{t2}
    s_lshr_b32 s{st1}, s{sW}, 1
    s_lshl_b32 s{st0}, s{st1}, 10
    s_add_u32 s{st0}, s{st0}, {L_KMV}
    v_lshl_add_u32 v{vRv}, v{vLane}, 3, s{st0}
    s_lshl_b32 s{st0}, s{st1}, 13
    s_add_u32 s{st0}, s{st0}, {L_KV}
    v_add_u32 v{vVr}, s{st0}, v{vL16}
    s_and_b32 s{st1}, s{sW}, 1
    s_lshl_b32 s{st0}, s{st1}, 12
    v_add_u32 v{vQr}, s{st0}, v{vL16}
    s_lshl_b32 s{st0}, s{sW}, 8
    v_lshlrev_b32 v{t2}, 4, v{t1}
    v_lshl_or_b32 v{t2}, v{t0}, 15, v{t2}
    v_add_u32 v{vSt}, s{st0}, v{t2}
    s_lshl_b32 s{st1}, s{st1}, 4
    v_add_u32 v{t0}, s{st1}, v{t0}
    v_lshlrev_b32 v{t1}, 2, v{t1}
    v_sub_u32 v{t0}, v{t0}, v{t1}
    s_mov_b32 s{sC}, {C_SCALE:#x}
    v_mov_b32 v{PM + 1}, 0
    v_mov_b32 v{PM + 2}, 0""")
    for i in range(8): A(f"v_cmp_le_i32 s[{sMSK + 2 * i}:{sMSK + 2 * i + 1}], {16 * (i >> 2) + (i & 3)}, v{t0}")
    for i in range(4): A(f"v_mov_b32 v{ONES + i}, 0x3f803f80")
    wait_done(A, t0, t1, st0)
    A(f"s_mov_b32 s{sI}, 0\ns_mov_b32 s{sSEG}, s{sT}\ns_barrier")

    A("L_qo_loop:")
    if NKV == 2: A(f"s_and_b32 s{sPG}, s{sSEG}, 1\ns_lshl_b32 s{sPG}, s{sPG}, 5\ns_add_u32 s{sPG}, s{sPG}, s{sRK}\ns_lshr_b32 s{sNEED}, s{sSEG}, 1")
    else: A(f"s_mov_b32 s{sPG}, s{sRK}\ns_mov_b32 s{sNEED}, s{sSEG}")
    A(f"""s_lshl_b32 s{sPG}, s{sPG}, 7
    s_add_u32 s{sPG}, s{sPG}, {WS_PROG}
    s_lshl_b32 s{st0}, s{sSEG}, 15
    s_lshl_b32 s{st1}, s{sW}, 13
    s_add_u32 s{st0}, s{st0}, s{st1}
    s_add_u32 m0, s{st1}, {L_X}
    s_add_u32 s{st0}, s{st0}, {WS_XN}""")
    for i in range(8):
        if i == 4: A(f"s_add_u32 s{st0}, s{st0}, 4096\ns_add_u32 m0, m0, 4096\ns_nop 0")
        A(f"buffer_load_dwordx4 v{vL16}, {S4(rWS)}, s{st0} offen offset:{(i % 4) * 1024} sc1 lds")
    spin_init(A)
    A(f"L_qo_pg:\nbuffer_load_dword v{t0}, v{vZ}, {S4(rWS)}, s{sPG} offen sc1")
    spin_step(A)
    A(f"""s_waitcnt vmcnt(0)
    v_readfirstlane_b32 s{st0}, v{t0}
    s_cmp_le_u32 s{st0}, s{sNEED}
    s_cbranch_scc1 L_qo_pg
    s_lshl_b32 s{st0}, s{sSEG}, 5
    s_add_u32 s{st0}, s{st0}, s{sRK}
    s_lshl_b32 s{st0}, s{st0}, 14
    s_add_u32 s{st0}, s{st0}, {WS_KV}
    s_lshl_b32 s{st1}, s{sW}, 12
    s_add_u32 m0, s{st1}, {L_KV}
    s_barrier""")
    for i in range(4): A(f"buffer_load_dwordx4 v{vWl0}, {S4(rWS)}, s{st0} offen offset:{1024 * i} sc1 lds")
    NB = 3
    xf = lambda ks, a_: 16 + ((ks % NB) * 2 + a_) * 4
    def rd(ks):
        for a_ in range(2): A(f"ds_read_b128 {v(xf(ks, a_), 4)}, v{vL16} offset:{L_X + (a_ * 16 + ks) * 1024}")
    rd(0); rd(1)
    for ks in range(16):
        A(f"s_waitcnt lgkmcnt({2 if ks < 15 else 0})")
        for k, (a_, b) in enumerate(((0, 0), (0, 1), (1, 0), (1, 1))):
            c = (2 * b + a_) * 4
            A(f"{MF} {v(c, 4)}, {a(b * 64 + 4 * ks, 4)}, {v(xf(ks, a_), 4)}, {v(c, 4) if ks else 0}")
            if k == 0 and ks + 2 < 16: rd(ks + 2)
    A(f"s_lshl_b32 s{st0}, s{sW}, 10\nv_add_u32 v{t2}, s{st0}, v{vL16}")
    for a_ in range(2):
        for j in range(4): A(f"v_cvt_pk_bf16_f32 v{16 + 4 * a_ + j}, v{a_ * 4 + j}, v{(2 + a_) * 4 + j}")
        A(f"ds_write_b128 v{t2}, {v(16 + 4 * a_, 4)} offset:{L_Q + a_ * 4096}")
    A("s_waitcnt vmcnt(0) lgkmcnt(0)\ns_barrier")
    QF, KF, VF, MFR, VM = 32, 48, 80, 96, 112
    S0, Sm, P, O, SU = 0, 8, 12, 116, 132
    for t in range(4):
        A(f"ds_read_b128 {v(QF + 4 * t, 4)}, v{vQr} offset:{L_Q + 1024 * t}")
        for c in range(2): A(f"ds_read_b128 {v(KF + 4 * (2 * t + c), 4)}, v{vL16} offset:{L_KV + 4096 * t + 2048 + 1024 * c}")
    for t in range(4):
        A(f"s_waitcnt lgkmcnt({9 - 3 * t})")
        for c in range(2): A(f"{MF} {v(S0 + 4 * c, 4)}, {v(KF + 4 * (2 * t + c), 4)}, {v(QF + 4 * t, 4)}, {v(S0 + 4 * c, 4) if t else 0}")
    for be in range(4): A(f"ds_read_b128 {v(VF + 4 * be, 4)}, v{vVr} offset:{4096 * (be >> 1) + 1024 * (be & 1)}")
    A(f"""s_and_b32 s{st0}, s{sI}, 1
    s_lshl_b32 s{st0}, s{st0}, 20
    s_lshl_b32 s{st1}, s{sT}, 21
    s_add_u32 s{st0}, s{st0}, s{st1}
    s_add_u32 s{st0}, s{st0}, {WS_PART1}
    s_lshl_b32 s{st1}, s{sRK}, 10
    s_add_u32 s{sPW}, s{st0}, s{st1}
    s_add_u32 s{sPW1}, s{sPW}, {16 * 32768}
    s_lshl_b32 s{st1}, s{sRK}, 15
    s_add_u32 s{sIN}, s{st0}, s{st1}
    s_lshl_b32 s{sROW}, s{sSEG}, 5
    s_add_u32 s{sROW}, s{sROW}, s{sRK}
    s_lshl_b32 s{sROW}, s{sROW}, 10
    v_mov_b32 v{t2}, 0xd028965f""")
    for i in range(8): A(f"v_cndmask_b32 v{S0 + i}, v{t2}, v{S0 + i}, s[{sMSK + 2 * i}:{sMSK + 2 * i + 1}]")
    m1, m2, m3, tt = 136, 137, 138, 139
    A(f"""v_max3_f32 v{m1}, v{S0}, v{S0 + 1}, v{S0 + 2}
    v_max3_f32 v{m2}, v{S0 + 3}, v{S0 + 4}, v{S0 + 5}
    v_max3_f32 v{m3}, v{S0 + 6}, v{S0 + 7}, v{m1}""")
    for i in range(2): A(f"buffer_load_dwordx2 {v(KMD + 4 + 2 * i, 2)}, v{vRow}, {S4(rD)}, s{sROW} offen offset:{512 * i}")
    timeline(A, cfg, 72, t0)
    spin_init(A)
    A(f"L_qo_km:\nbuffer_load_dwordx4 {v(KMD, 4)}, v{vL16}, {S4(rWS)}, s{sKM} offen sc1")
    spin_step(A)
    A("s_waitcnt vmcnt(0)")
    max_chk(A, t0, KMD, 4)
    A(f"""ds_write2_b32 v{vWk}, v{KMD}, v{KMD + 1} offset1:16
    ds_write_b64 v{vWv}, {v(KMD + 2, 2)}
    s_cbranch_vccnz L_qo_km
    s_waitcnt lgkmcnt(0)
    s_barrier""")
    timeline(A, cfg, 73, t0)
    for t in range(4): A(f"ds_read_b128 {v(MFR + 4 * t, 4)}, v{vRk} offset:{512 * t}")
    for i in range(2): A(f"ds_read_b64 {v(VM + 2 * i, 2)}, v{vRv} offset:{512 * i}")
    for t in range(4): A(f"s_waitcnt lgkmcnt({5 - t})\n{MF} {v(Sm, 4)}, {v(MFR + 4 * t, 4)}, {v(QF + 4 * t, 4)}, {v(Sm, 4) if t else 0}")
    A(f"""s_add_u32 s{sKM}, s{sKM}, {NQO * 131072}
    v_max3_f32 v{m1}, v{Sm}, v{Sm + 1}, v{m2}
    v_max_f32 v{m2}, v{m1}, v{m3}
    v_max_f32 v{tt}, v{m1}, v{m3}
    v_permlane16_swap_b32 v{m2}, v{tt}
    v_max_f32 v{m1}, v{m2}, v{tt}
    v_max_f32 v{m3}, v{m2}, v{tt}
    v_permlane32_swap_b32 v{m1}, v{m3}
    v_max_f32 v{m1}, v{m1}, v{m3}
    v_mul_f32 v{m1}, s{sC}, v{m1}""")
    for i in range(10): A(f"v_fma_f32 v{S0 + i}, v{S0 + i}, s{sC}, -v{m1}\nv_exp_f32 v{S0 + i}, v{S0 + i}")
    pack(A, P, S0, 4)
    A(f"v_cvt_pk_bf16_f32 v{PM}, v{Sm}, v{Sm + 1}\nv_cvt_pk_bf16_f32 v{PM + 3}, v{Sm}, v{Sm + 1}\ns_waitcnt lgkmcnt(0)")
    A(f"{MF} {v(SU, 4)}, {v(ONES, 4)}, {v(P, 4)}, 0")
    for be in range(4): A(f"{MF} {v(O + 4 * be, 4)}, {v(VF + 4 * be, 4)}, {v(P, 4)}, 0")
    A(f"{MF16} {v(SU, 4)}, {v(ONES, 2)}, {v(PM, 2)}, {v(SU, 4)}")
    for be in range(4): A(f"{MF16} {v(O + 4 * be, 4)}, {v(VM + 2 * (be >> 1), 2)}, {v(PM + 2 * (be & 1), 2)}, {v(O + 4 * be, 4)}")
    A(f"""v_rcp_f32 v{SU}, v{SU}
    s_lshr_b32 s{st0}, s{sW}, 1
    s_lshl_b32 s{st0}, s{st0}, 11
    v_add_u32 v{t2}, s{st0}, v{vQr}""")
    for x in range(2):
        for i in range(8): A(f"v_mul_f32 v{O + 8 * x + i}, v{O + 8 * x + i}, v{SU}")
        pack(A, 16 + 4 * x, O + 8 * x, 4)
        A(f"ds_write_b128 v{t2}, {v(16 + 4 * x, 4)} offset:{L_O + 1024 * x}")
    A("s_waitcnt lgkmcnt(0)\ns_barrier")
    OF, ACC, OUT = 32, 64, 16
    for i in range(8): A(f"ds_read_b128 {v(OF + 4 * i, 4)}, v{vL16} offset:{L_O + 1024 * i}")
    A("s_waitcnt lgkmcnt(0)")
    proj_out(A, 4, lambda t, ks: 128 + 16 * t + 4 * ks, OF, ACC, OUT, vSt, sPW)
    A(f"""s_add_u32 s{sI}, s{sI}, 1
    v_mov_b32 v{t0}, s{sI}
    s_lshl_b32 s{st0}, s{sRK}, 2
    s_add_u32 s{st0}, s{st0}, s{sFLG}
    s_waitcnt vmcnt(0)
    s_barrier
    s_cmp_lg_u32 s{sW}, 0
    s_cbranch_scc1 L_qo_next
    s_mov_b64 exec, 1
    buffer_store_dword v{t0}, v{vZ}, {S4(rWS)}, s{st0} offen
    s_mov_b64 exec, -1""")
    timeline(A, cfg, 74, t0)
    wait_flags(A, t0, vL4, sFLG, sI)
    D, R, X, H = 0, 128, 136, 144
    row_sum(A, 8, D, R, SELA, vRl, sIN, st0)
    unpack(A, X, KMD + 4, 4)
    pack(A, H, R, 4); unpack(A, R, H, 4)
    for i in range(8): A(f"v_add_f32 v{R + i}, v{R + i}, v{X + i}")
    pack(A, H, R, 4); unpack(A, R, H, 4)
    vm, vs = 150, 151
    A(f"v_add_f32 v{vm}, v{R}, v{R + 1}")
    for i in range(2, 8): A(f"v_add_f32 v{vm}, v{vm}, v{R + i}")
    for i in range(4): A(f"v_min_u32 v{H + i}, -2, v{H + i}")
    A(f"s_add_u32 s{st0}, s{sROW}, {WS_HB}\nbuffer_store_dwordx4 {v(H, 4)}, v{vL16}, {S4(rWS)}, s{st0} offen sc1")
    wave_sum(A, vm, t0)
    A(f"v_mul_f32 v{vm}, 0x3b000000, v{vm}")
    for i in range(8): A(f"v_sub_f32 v{X + i}, v{R + i}, v{vm}")
    A(f"v_mul_f32 v{vs}, v{X}, v{X}")
    for i in range(1, 8): A(f"v_fmac_f32 v{vs}, v{X + i}, v{X + i}")
    round_bf(A, vm)
    wave_sum(A, vs, t0)
    A(f"v_mul_f32 v{vs}, 0x3b000000, v{vs}")
    ln_scale(A, vs, t0)
    for i in range(8): A(f"v_sub_f32 v{R + i}, v{R + i}, v{vm}")
    pack(A, X, R, 4); unpack(A, R, X, 4)
    for i in range(8): A(f"v_mul_f32 v{R + i}, v{R + i}, v{vs}")
    pack(A, X, R, 4)
    for i in range(4): A(f"v_min_u32 v{X + i}, -2, v{X + i}")
    A(f"s_add_u32 s{st0}, s{sROW}, {WS_XN2}\nbuffer_store_dwordx4 {v(X, 4)}, v{vL16}, {S4(rWS)}, s{st0} offen sc1")
    timeline(A, cfg, 7, t0, sI)
    A(f"""L_qo_next:
    s_add_u32 s{sSEG}, s{sSEG}, {NQO}
    s_cmp_lt_u32 s{sI}, s{sCNT}
    s_cbranch_scc1 L_qo_loop
    s_endpgm""")
```

```python
import json, sys, gen
V = eval(sys.argv[1])
json.dump(V, open("variants.json", "w"))
for i, c in enumerate(V):
    cc = dict(PROF=int(sys.argv[2]) if len(sys.argv) > 2 else 2); cc.update(c)
    open("v%d.s" % i, "w").write(gen.generate(cc))
print(len(V), "variants")
```

```python
from asmlib import *

NAME = "sequential_preLN__memory_aug_recurrent_mem_tr__glu_gated_swiglu__prompt"
NSEG = 64
WS_XN    = 0x0000000
WS_XN2   = 0x0200000
WS_HB    = 0x0400000
WS_KM    = 0x0600000
WS_PART  = 0x0E00000
WS_MEM   = 0x0F00000
WS_PROG  = 0x0F10000
WS_PART1 = 0x1000000
WS_PART2 = 0x1800000
WS_KV    = 0x2000000
WS_DBG   = 0x4000000
WS_SIZE  = 0x10000000
DBG_DONE = 192
SPIN = 1 << 19
LDS_BYTES = 163840

sW, sRK, sX, sSPIN = 4, 5, 6, 7
pX, pMEM0, pWQ, pWK, pWV, pWO = 8, 10, 12, 14, 16, 18
pW1, pW3, pW2, pOUT, pDBG, pWS = 24, 26, 28, 30, 32, 34
rWS, rA, rB, rC, rD = 36, 40, 44, 48, 52

def srd(A, r, p, size):
    A(f"s_mov_b32 s{r}, s{p}\ns_mov_b32 s{r+1}, s{p+1}\ns_mov_b32 s{r+2}, {size:#x}\ns_mov_b32 s{r+3}, 0x20000")

def S4(r): return s(r, 4)

def spin_init(A): A(f"s_mov_b32 s{sSPIN}, {SPIN}")
def spin_step(A): A(f"s_sub_u32 s{sSPIN}, s{sSPIN}, 1\ns_cbranch_scc1 L_abort")

def signal_done(A, vt0, vt1):
    l = A.lab()
    A(f"""s_cmp_lg_u32 s{sW}, 0
    s_cbranch_scc1 {l}
    v_mov_b32 v{vt0}, {DBG_DONE}
    v_mov_b32 v{vt1}, 1
    s_mov_b64 exec, 1
    global_atomic_add v{vt0}, v{vt1}, s[{pDBG}:{pDBG+1}] sc1
    s_mov_b64 exec, -1
    {l}:""")

def wait_done(A, vt0, vt1, st):
    l = A.lab()
    spin_init(A)
    A(f"v_mov_b32 v{vt0}, {DBG_DONE}\n{l}:\nglobal_load_dword v{vt1}, v{vt0}, s[{pDBG}:{pDBG+1}] sc1")
    spin_step(A)
    A(f"s_waitcnt vmcnt(0)\nv_readfirstlane_b32 s{st}, v{vt1}\ns_cmp_lt_u32 s{st}, 256\ns_cbranch_scc1 {l}")

def lane_fields(A, vlane):
    A(f"v_and_b32 v{vlane}, 63, v0")

def dma_col(A, dst, vlane, t0, t1, st):
    A(f"""v_lshrrev_b32 v{t0}, 4, v{vlane}
    s_lshr_b32 s{st}, s{sW}, 1
    s_lshl_b32 s{st}, s{st}, 2
    v_or_b32 v{t0}, s{st}, v{t0}
    v_bfe_u32 v{t1}, v{vlane}, 1, 3
    v_xor_b32 v{t0}, v{t0}, v{t1}
    v_lshlrev_b32 v{t0}, 5, v{t0}
    v_and_b32 v{t1}, 1, v{vlane}
    v_lshl_or_b32 v{dst}, v{t1}, 4, v{t0}""")

def tr_base(A, dst, vlane, t0, t1):
    A(f"""v_lshrrev_b32 v{t0}, 4, v{vlane}
    v_bfe_u32 v{t1}, v{vlane}, 2, 2
    v_lshl_add_u32 v{dst}, v{t0}, 3, v{t1}
    v_lshlrev_b32 v{dst}, 8, v{dst}
    v_and_b32 v{t0}, 1, v{t0}
    v_lshl_or_b32 v{t0}, v{t0}, 2, v{t1}
    v_lshl_or_b32 v{dst}, v{t0}, 5, v{dst}
    v_and_b32 v{t0}, 3, v{vlane}
    v_lshl_or_b32 v{dst}, v{t0}, 3, v{dst}""")

def tr_tile(A, pfx, d, vaddr):
    for i, off in enumerate((0, 1024, 8192, 9216)):
        A(f"ds_read_b64_tr_b16 {R(pfx, d + 2*i, 2)}, v{vaddr} offset:{off}")

def load_chunks(A, chunks, nslots, depth, slot0, st0, st1, hooks=None, lds0=0, pfd=0, vdummy=None, pre=None):
    n = len(chunks)
    slot = lambda c: lds0 + ((c + slot0) % nslots) * 16384
    V = Cnt(A, "vmcnt")
    A(f"s_lshl_b32 s{st1}, s{sW}, 10")
    def pref(c):
        if pfd and c < n and chunks[c].get("pf"):
            vo, off = chunks[c]["pf"]
            A(f"s_mov_b32 s{st0}, {off}")
            V.op(f"buffer_load_dword v{vdummy}, v{vo}, {S4(chunks[c]['srd'])}, s{st0} offen")
    def issue(c):
        ch = chunks[c]
        for i in range(4):
            A(f"s_add_u32 m0, s{st1}, {slot(c) + i * 4096}")
            if ch.get("sbase") is not None: A(f"s_add_u32 s{st0}, s{ch['sbase']}, {ch['offs'][i]}")
            else: A(f"s_mov_b32 s{st0}, {ch['offs'][i]}")
            V.op(f"buffer_load_dwordx4 v{ch['voff']}, {S4(ch['srd'])}, s{st0} offen lds", c)
    first = min(2, depth) if pfd else depth
    for c in range(first): issue(c)
    if pfd:
        for c in range(first, depth + pfd): pref(c)
        for c in range(first, depth): issue(c)
    for c in range(n):
        if pre and c in pre: pre[c]()
        V.wait(c); A("s_barrier")
        if hooks and c in hooks: hooks[c]()
        if c + depth < n:
            pref(c + depth + pfd); issue(c + depth)
        chunks[c]["extract"](A, slot(c))
        A("s_waitcnt lgkmcnt(0)")

def fill_ones(A, r, n):
    for i in range(0, n, 2): A(f"v_mov_b64 {v(r + i, 2)}, -1")

def clear_region(A, vaddr, vones, soff, nkb, sc, stmp):
    A(f"s_mov_b32 s{stmp}, s{soff}")
    for i in range(nkb):
        if i and i % 4 == 0: A(f"s_add_u32 s{stmp}, s{stmp}, 4096")
        A(f"buffer_store_dwordx4 {v(vones, 4)}, v{vaddr}, {S4(rWS)}, s{stmp} offen offset:{(i % 4) * 1024} {sc}")

def prologue(A, roles, prof=0):
    if prof == -1: A("s_memrealtime s[98:99]")
    A(f"""s_cmp_ge_u32 s2, 256
    s_cbranch_scc1 L_abort
    s_load_dwordx4 s[32:35], s[0:1], 96
    s_load_dwordx16 s[8:23], s[0:1], 0
    s_load_dwordx8 s[24:31], s[0:1], 64
    s_getreg_b32 s{sX}, hwreg(HW_REG_XCC_ID, 0, 4)
    v_lshrrev_b32 v1, 6, v0
    s_lshl_b32 s3, s{sX}, 2
    s_add_u32 s3, s3, 128
    s_cmp_eq_u32 s{sX}, 0
    s_cselect_b32 s3, 0, s3
    v_readfirstlane_b32 s{sW}, v1
    v_mov_b32 v1, s3
    v_mov_b32 v2, 1
    v_mov_b32 v4, 0
    s_waitcnt lgkmcnt(0)""")
    srd(A, rWS, pWS, WS_SIZE)
    A(f"""s_cmp_lg_u32 s{sW}, 0
    s_cbranch_scc1 L_p1
    s_mov_b64 exec, 1
    global_atomic_add v3, v1, v2, s[{pDBG}:{pDBG+1}] sc0 sc1
    s_waitcnt vmcnt(0)
    ds_write_b32 v4, v3
    s_waitcnt lgkmcnt(0)
    s_mov_b64 exec, -1
    L_p1:
    s_barrier
    ds_read_b32 v3, v4
    s_waitcnt lgkmcnt(0)
    v_readfirstlane_b32 s{sRK}, v3
    s_barrier
    s_cmp_ge_u32 s{sRK}, 32
    s_cbranch_scc1 L_abort""")
    cnt = {}
    for x, r in enumerate(roles):
        A(f"s_mov_b32 s3, {cnt.get(r, 0)}\ns_cmp_eq_u32 s{sX}, {x}\ns_cbranch_scc1 L_go_{r}")
        cnt[r] = cnt.get(r, 0) + 1
    A("L_abort:\ns_endpgm")
    for r in cnt: A(f"L_go_{r}:\ns_branch L_{r}")

def timeline(A, cfg, idx, vt, sidx=None):
    if cfg["PROF"] == -1:
        slot = cfg["_dbg"].get((cfg["_role"], idx))
        if slot is None: return
        l = A.lab()
        A(f"""s_memrealtime s[100:101]
        s_or_b32 s3, s{sRK}, s{sW}
        s_cmp_lg_u32 s3, 0
        s_cbranch_scc1 {l}
        s_waitcnt lgkmcnt(0)
        v_mov_b32 v{vt}, s100
        s_mov_b64 exec, 1
        global_store_dword v{cfg['_vz']}, v{vt}, s[{pDBG}:{pDBG + 1}] offset:{4 * slot} sc1
        s_mov_b64 exec, -1
        {l}:""")
        return
    if not cfg["PROF"]: return
    A(f"""s_memrealtime s[100:101]
    s_lshl_b32 s3, s{sX}, 5
    s_add_u32 s3, s3, s{sRK}
    s_lshl_b32 s3, s3, 2
    s_add_u32 s3, s3, s{sW}
    s_lshl_b32 s3, s3, 9
    s_add_u32 s3, s3, {WS_DBG + 0x10000 + 4 * idx}""")
    if sidx is not None: A(f"s_lshl_b32 s2, s{sidx}, 2\ns_add_u32 s3, s3, s2")
    A(f"""s_waitcnt lgkmcnt(0)
    v_mov_b32 v{vt}, s100
    s_mov_b64 exec, 1
    buffer_store_dword v{vt}, off, {S4(rWS)}, s3
    s_mov_b64 exec, -1""")

MF = "v_mfma_f32_16x16x32_bf16"
MF16 = "v_mfma_f32_16x16x16_bf16"
C_SCALE = 0x3e0293ee
WS_FLG1 = 0x0F20000
WS_FLG2 = 0x0F21000

class Cnt:
    def __init__(self, A, name): self.A, self.name, self.n, self.tags = A, name, 0, {}
    def op(self, text, tag=None):
        self.A(text); self.n += 1
        if tag is not None: self.tags[tag] = self.n
    def need(self, tag): return self.n - self.tags[tag]
    def wait(self, tag): self.A(f"s_waitcnt {self.name}({min(self.need(tag), 15 if self.name == 'lgkmcnt' else 63)})")

def seg_count(A, sreg, sT, n):
    c = [(NSEG - t + n - 1) // n for t in range(n)]
    A(f"s_mov_b32 s{sreg}, {c[0]}")
    for t in range(1, n):
        if c[t] != c[0]: A(f"s_cmp_eq_u32 s{sT}, {t}\ns_cselect_b32 s{sreg}, {c[t]}, s{sreg}")

def rows_out(A, dst, vcol, vlane, t0, st0, st1):
    A(f"""s_and_b32 s{st0}, s{sW}, 1
    s_lshl_b32 s{st0}, s{st0}, 4
    s_lshr_b32 s{st1}, s{sW}, 1
    s_lshl_b32 s{st1}, s{st1}, 2
    s_add_u32 s{st0}, s{st0}, s{st1}
    v_lshrrev_b32 v{t0}, 4, v{vlane}
    v_add_u32 v{t0}, s{st0}, v{t0}
    v_lshl_add_u32 v{dst}, v{t0}, 10, v{vcol}""")
ROWS_OUT = [32 * (i >> 1) + 8 * (i & 1) for i in range(4)]

def extract8(A, base, w, vT, t0, t1, dst):
    l = A.lab()
    A(f"s_cmp_lg_u32 s{sW}, {w}\ns_cbranch_scc1 {l}\nv_add_u32 v{t0}, {base}, v{vT}")
    for t in range(8):
        A(f"v_xor_b32 v{t1}, {32 * t}, v{t0}")
        tr_tile(A, "a", dst(t), t1)
    A(f"{l}:")

def proj_out(A, nk, wreg, F, ACC, OUT, vSt, sBase):
    ep = []
    for p in range(4):
        for a_ in range(2):
            for b in range(2):
                c = ACC + ((p * 2 + a_) * 2 + b) * 4
                for ks in range(nk):
                    A(f"{MF} {v(c, 4)}, {a(wreg(2 * p + b, ks), 4)}, {v(F + 4 * (a_ * nk + ks), 4)}, {v(c, 4) if ks else 0}")
                    if (b or ks >= 2 or nk == 2 and False) and ep: A(ep.pop(0))
                    if b and ep: A(ep.pop(0))
            while ep: A(ep.pop(0))
            c = ACC + (p * 2 + a_) * 8; o = OUT + 4 * a_
            ep = [f"v_cvt_pk_bf16_f32 v{o + i}, v{c + 2 * i}, v{c + 2 * i + 1}" for i in range(4)]
            ep.append(f"buffer_store_dwordx4 {v(o, 4)}, v{vSt}, {S4(rWS)}, s{sBase + a_} offen offset:{64 * p}")
    while ep: A(ep.pop(0))

def row_consts(A, vlane, vRl, vRow, SELA, t0, t1):
    A(f"""v_lshrrev_b32 v{t0}, 4, v{vlane}
    v_and_b32 v{t1}, 15, v{vlane}
    v_lshlrev_b32 v{vRl}, 4, v{t1}
    v_lshl_or_b32 v{vRl}, v{t0}, 10, v{vRl}
    v_and_b32 v{vRow}, 3, v{vlane}
    v_lshlrev_b32 v{vRow}, 3, v{vRow}
    v_bfe_u32 v{t0}, v{vlane}, 4, 1
    v_lshl_or_b32 v{vRow}, v{t0}, 5, v{vRow}
    v_bfe_u32 v{t0}, v{vlane}, 2, 2
    v_lshl_or_b32 v{vRow}, v{t0}, 6, v{vRow}
    v_lshrrev_b32 v{t0}, 5, v{vlane}
    v_lshl_or_b32 v{vRow}, v{t0}, 8, v{vRow}
    v_and_b32 v{t0}, 1, v{vlane}
    v_lshlrev_b32 v{t0}, 4, v{t0}
    v_lshlrev_b32 v{t0}, v{t0}, v{SELA}
    v_lshrrev_b32 v{t1}, 1, v{t1}""")
    for i in range(8): A(f"v_cmp_eq_u32 vcc, {i}, v{t1}\nv_cndmask_b32 v{SELA + i}, 0, v{t0}, vcc")

def wait_flags(A, vF, vL4, sFlg, sNeed):
    l = A.lab()
    spin_init(A)
    A(f"{l}:\nbuffer_load_dword v{vF}, v{vL4}, {S4(rWS)}, s{sFlg} offen sc1")
    spin_step(A)
    A(f"s_waitcnt vmcnt(0)\nv_cmp_gt_u32 vcc, s{sNeed}, v{vF}\ns_cbranch_vccnz {l}")

def row_sum(A, n4, D, ACC, SELA, vRl, sIn, st):
    V = Cnt(A, "vmcnt")
    A(f"s_mov_b32 s{st}, s{sIn}")
    for i in range(n4):
        if i: A(f"s_add_u32 s{st}, s{st}, 4096")
        for wg in range(4): V.op(f"buffer_load_dwordx4 {v(D + 4 * (4 * i + wg), 4)}, v{vRl}, {S4(rWS)}, s{st} offen offset:{256 * wg} sc1", (i, wg))
    for i in range(n4):
        for wg in (0, 2, 1, 3):
            if wg in (0, 1): V.wait((i, 2 if wg == 0 else 3))
            c = ACC + 4 * (wg >> 1)
            A(f"{MF} {v(c, 4)}, {v(SELA + 4 * (wg & 1), 4)}, {v(D + 4 * (4 * i + wg), 4)}, {v(c, 4) if (i or wg & 1) else 0}")

def wave_sum(A, r, t):
    for k in (8, 4, 2, 1): A(f"v_add_f32_dpp v{r}, v{r}, v{r} row_ror:{k} row_mask:0xf bank_mask:0xf")
    for sw in ("v_permlane16_swap_b32", "v_permlane32_swap_b32"):
        A(f"v_mov_b32 v{t}, v{r}\n{sw} v{r}, v{t}\nv_add_f32 v{r}, v{r}, v{t}")

def unpack(A, dst, src, n):
    for i in range(n): A(f"v_and_b32 v{dst + 2 * i + 1}, 0xffff0000, v{src + i}\nv_lshlrev_b32 v{dst + 2 * i}, 16, v{src + i}")
def pack(A, dst, src, n):
    for i in range(n): A(f"v_cvt_pk_bf16_f32 v{dst + i}, v{src + 2 * i}, v{src + 2 * i + 1}")

def max_chk(A, t, b, n):
    for i in range(0, n, 2): A(f"v_max3_u32 v{t}, v{t if i else b}, v{b + i}, v{b + i + 1}")
    A(f"v_cmp_eq_u32 vcc, -1, v{t}")
```

```python
import sys, json
from common import *
import role_kv, role_ffn, role_chain, role_qo

DEFAULT = dict(ROLES=["chain", "kv", "kv", "qo", "qo", "qo", "ffn", "ffn"], KV_DEPTH=9, QO_DEPTH=2, FFN_DEPTH=2, CH_DEPTH=9, CH_PF=0,
               ENABLE=["chain", "kv", "qo", "ffn"], PROF=0, SLEEP=0, S_QO=99, S_FFN=99,
               LP=11, NVF=2, EB=4, PRE=0, PREP='n', FD=[24, 16, 16], SPEC=0, VS=dict(km=17, d0=0, d1=4, d2=8, d3=12, r0=30, r1=100), KVST='sc1', KVLD='sc1', RED=["soAzp", "kspzdoAD"])

HEAD = open("cdna_kernels/%s.s.ref" % NAME).read().split("; Override launch")[0]

def generate(over=None, verbose=False):
    cfg = dict(DEFAULT); cfg.update(over or {})
    for r in ("kv", "qo", "ffn"): cfg["N" + r.upper()] = cfg["ROLES"].count(r)
    A = Asm()
    prologue(A, cfg["ROLES"], cfg["PROF"])
    cfg["_dbg"] = {("chain", 1): 2, ("chain", 2): 3, ("chain", 3): 4, ("kv", 1): 5, ("kv", 2): 6, ("qo", 1): 7, ("qo", 73): 8, ("qo", 7): 9,
                   ("ffn", 1): 10, ("ffn", 2): 11, ("ffn", 72): 12, ("ffn", 7): 13, ("chain", 9): 14}
    for r, m, vz in (("chain", role_chain.role_chain, 93), ("kv", role_kv.role_kv, 108), ("qo", role_qo.role_qo, 217), ("ffn", role_ffn.role_ffn, 213)):
        cfg["_role"] = r; cfg["_vz"] = vz
        m(A, cfg)
    body = A.finish(verbose)
    K = NAME + "_kernel"
    doc = open("header.txt").read()
    return (HEAD + f"; @launch grid=(256,1,1) block=(256,1,1) lds={LDS_BYTES}\n" + doc +
            f'.amdgcn_target "amdgcn-amd-amdhsa--gfx950"\n.text\n.globl {K}\n.p2align 8\n.type {K},@function\n{K}:\n' + body +
            f""".section .rodata,"a"
.p2align 6
.amdhsa_kernel {K}
  .amdhsa_next_free_vgpr 512
  .amdhsa_next_free_sgpr 102
  .amdhsa_accum_offset 256
  .amdhsa_group_segment_fixed_size 0
  .amdhsa_kernarg_size 112
  .amdhsa_user_sgpr_count 2
  .amdhsa_user_sgpr_kernarg_segment_ptr 1
  .amdhsa_system_sgpr_workgroup_id_x 1
  .amdhsa_float_denorm_mode_32 3
.end_amdhsa_kernel
""")

if __name__ == "__main__":
    out = sys.argv[1] if len(sys.argv) > 1 else "cdna_kernels/%s.s" % NAME
    over = json.loads(sys.argv[2]) if len(sys.argv) > 2 else None
    t = generate(over, verbose="-v" in sys.argv)
    open(out, "w").write(t)
    print(out, len(t), "bytes")
```

```python
from asmlib import *

NAME = "sequential_preLN__memory_aug_recurrent_mem_tr__glu_gated_swiglu__prompt"
NSEG = 64
WS_XN    = 0x0000000
WS_XN2   = 0x0200000
WS_HB    = 0x0400000
WS_KM    = 0x0600000
WS_PART  = 0x0E00000
WS_MEM   = 0x0F00000
WS_PROG  = 0x0F10000
WS_PART1 = 0x1000000
WS_PART2 = 0x1800000
WS_KV    = 0x2000000
WS_DBG   = 0x4000000
WS_SIZE  = 0x10000000
DBG_DONE = 192
SPIN = 1 << 19
LDS_BYTES = 163840

sW, sRK, sX, sSPIN = 4, 5, 6, 7
pX, pMEM0, pWQ, pWK, pWV, pWO = 8, 10, 12, 14, 16, 18
pW1, pW3, pW2, pOUT, pDBG, pWS = 24, 26, 28, 30, 32, 34
rWS, rA, rB, rC, rD = 36, 40, 44, 48, 52

def srd(A, r, p, size):
    A(f"s_mov_b32 s{r}, s{p}\ns_mov_b32 s{r+1}, s{p+1}\ns_mov_b32 s{r+2}, {size:#x}\ns_mov_b32 s{r+3}, 0x20000")

def S4(r): return s(r, 4)

def spin_init(A): A(f"s_mov_b32 s{sSPIN}, {SPIN}")
def spin_step(A): A(f"s_sub_u32 s{sSPIN}, s{sSPIN}, 1\ns_cbranch_scc1 L_abort")

def signal_done(A, vt0, vt1):
    l = A.lab()
    A(f"""s_cmp_lg_u32 s{sW}, 0
    s_cbranch_scc1 {l}
    v_mov_b32 v{vt0}, {DBG_DONE}
    v_mov_b32 v{vt1}, 1
    s_mov_b64 exec, 1
    global_atomic_add v{vt0}, v{vt1}, s[{pDBG}:{pDBG+1}] sc1
    s_mov_b64 exec, -1
    {l}:""")

def wait_done(A, vt0, vt1, st):
    l = A.lab()
    spin_init(A)
    A(f"v_mov_b32 v{vt0}, {DBG_DONE}\n{l}:\nglobal_load_dword v{vt1}, v{vt0}, s[{pDBG}:{pDBG+1}] sc1")
    spin_step(A)
    A(f"s_waitcnt vmcnt(0)\nv_readfirstlane_b32 s{st}, v{vt1}\ns_cmp_lt_u32 s{st}, 256\ns_cbranch_scc1 {l}")

def lane_fields(A, vlane):
    A(f"v_and_b32 v{vlane}, 63, v0")

def dma_col(A, dst, vlane, t0, t1, st):
    A(f"""v_lshrrev_b32 v{t0}, 4, v{vlane}
    s_lshr_b32 s{st}, s{sW}, 1
    s_lshl_b32 s{st}, s{st}, 2
    v_or_b32 v{t0}, s{st}, v{t0}
    v_bfe_u32 v{t1}, v{vlane}, 1, 3
    v_xor_b32 v{t0}, v{t0}, v{t1}
    v_lshlrev_b32 v{t0}, 5, v{t0}
    v_and_b32 v{t1}, 1, v{vlane}
    v_lshl_or_b32 v{dst}, v{t1}, 4, v{t0}""")

def tr_base(A, dst, vlane, t0, t1):
    A(f"""v_lshrrev_b32 v{t0}, 4, v{vlane}
    v_bfe_u32 v{t1}, v{vlane}, 2, 2
    v_lshl_add_u32 v{dst}, v{t0}, 3, v{t1}
    v_lshlrev_b32 v{dst}, 8, v{dst}
    v_and_b32 v{t0}, 1, v{t0}
    v_lshl_or_b32 v{t0}, v{t0}, 2, v{t1}
    v_lshl_or_b32 v{dst}, v{t0}, 5, v{dst}
    v_and_b32 v{t0}, 3, v{vlane}
    v_lshl_or_b32 v{dst}, v{t0}, 3, v{dst}""")

def tr_tile(A, pfx, d, vaddr):
    for i, off in enumerate((0, 1024, 8192, 9216)):
        A(f"ds_read_b64_tr_b16 {R(pfx, d + 2*i, 2)}, v{vaddr} offset:{off}")

def load_chunks(A, chunks, nslots, depth, slot0, st0, st1, hooks=None, lds0=0, pfd=0, vdummy=None, pre=None):
    n = len(chunks)
    slot = lambda c: lds0 + ((c + slot0) % nslots) * 16384
    V = Cnt(A, "vmcnt")
    A(f"s_lshl_b32 s{st1}, s{sW}, 10")
    def pref(c):
        if pfd and c < n and chunks[c].get("pf"):
            vo, off = chunks[c]["pf"]
            A(f"s_mov_b32 s{st0}, {off}")
            V.op(f"buffer_load_dword v{vdummy}, v{vo}, {S4(chunks[c]['srd'])}, s{st0} offen")
    def issue(c):
        ch = chunks[c]
        for i in range(4):
            A(f"s_add_u32 m0, s{st1}, {slot(c) + i * 4096}")
            if ch.get("sbase") is not None: A(f"s_add_u32 s{st0}, s{ch['sbase']}, {ch['offs'][i]}")
            else: A(f"s_mov_b32 s{st0}, {ch['offs'][i]}")
            V.op(f"buffer_load_dwordx4 v{ch['voff']}, {S4(ch['srd'])}, s{st0} offen lds", c)
    first = min(2, depth) if pfd else depth
    for c in range(first): issue(c)
    if pfd:
        for c in range(first, depth + pfd): pref(c)
        for c in range(first, depth): issue(c)
    for c in range(n):
        if pre and c in pre: pre[c]()
        V.wait(c); A("s_barrier")
        if hooks and c in hooks: hooks[c]()
        if c + depth < n:
            pref(c + depth + pfd); issue(c + depth)
        chunks[c]["extract"](A, slot(c))
        A("s_waitcnt lgkmcnt(0)")

def fill_ones(A, r, n):
    for i in range(0, n, 2): A(f"v_mov_b64 {v(r + i, 2)}, -1")

def clear_region(A, vaddr, vones, soff, nkb, sc, stmp):
    A(f"s_mov_b32 s{stmp}, s{soff}")
    for i in range(nkb):
        if i and i % 4 == 0: A(f"s_add_u32 s{stmp}, s{stmp}, 4096")
        A(f"buffer_store_dwordx4 {v(vones, 4)}, v{vaddr}, {S4(rWS)}, s{stmp} offen offset:{(i % 4) * 1024} {sc}")

def prologue(A, roles, prof=0):
    if prof == -1: A("s_memrealtime s[98:99]")
    A(f"""s_cmp_ge_u32 s2, 256
    s_cbranch_scc1 L_abort
    s_load_dwordx4 s[32:35], s[0:1], 96
    s_load_dwordx16 s[8:23], s[0:1], 0
    s_load_dwordx8 s[24:31], s[0:1], 64
    s_getreg_b32 s{sX}, hwreg(HW_REG_XCC_ID, 0, 4)
    v_lshrrev_b32 v1, 6, v0
    s_lshl_b32 s3, s{sX}, 2
    s_add_u32 s3, s3, 128
    s_cmp_eq_u32 s{sX}, 0
    s_cselect_b32 s3, 0, s3
    v_readfirstlane_b32 s{sW}, v1
    v_mov_b32 v1, s3
    v_mov_b32 v2, 1
    v_mov_b32 v4, 0
    s_waitcnt lgkmcnt(0)""")
    srd(A, rWS, pWS, WS_SIZE)
    A(f"""s_cmp_lg_u32 s{sW}, 0
    s_cbranch_scc1 L_p1
    s_mov_b64 exec, 1
    global_atomic_add v3, v1, v2, s[{pDBG}:{pDBG+1}] sc0 sc1
    s_waitcnt vmcnt(0)
    ds_write_b32 v4, v3
    s_waitcnt lgkmcnt(0)
    s_mov_b64 exec, -1
    L_p1:
    s_barrier
    ds_read_b32 v3, v4
    s_waitcnt lgkmcnt(0)
    v_readfirstlane_b32 s{sRK}, v3
    s_barrier
    s_cmp_ge_u32 s{sRK}, 32
    s_cbranch_scc1 L_abort""")
    cnt = {}
    for x, r in enumerate(roles):
        A(f"s_mov_b32 s3, {cnt.get(r, 0)}\ns_cmp_eq_u32 s{sX}, {x}\ns_cbranch_scc1 L_go_{r}")
        cnt[r] = cnt.get(r, 0) + 1
    A("L_abort:\ns_endpgm")
    for r in cnt: A(f"L_go_{r}:\ns_branch L_{r}")

def timeline(A, cfg, idx, vt, sidx=None):
    if cfg["PROF"] == -1:
        slot = cfg["_dbg"].get((cfg["_role"], idx))
        if slot is None: return
        l = A.lab()
        A(f"""s_memrealtime s[100:101]
        s_or_b32 s3, s{sRK}, s{sW}
        s_cmp_lg_u32 s3, 0
        s_cbranch_scc1 {l}
        s_waitcnt lgkmcnt(0)
        v_mov_b32 v{vt}, s100
        s_mov_b64 exec, 1
        global_store_dword v{cfg['_vz']}, v{vt}, s[{pDBG}:{pDBG + 1}] offset:{4 * slot} sc1
        s_mov_b64 exec, -1
        {l}:""")
        return
    if not cfg["PROF"]: return
    A(f"""s_memrealtime s[100:101]
    s_lshl_b32 s3, s{sX}, 5
    s_add_u32 s3, s3, s{sRK}
    s_lshl_b32 s3, s3, 2
    s_add_u32 s3, s3, s{sW}
    s_lshl_b32 s3, s3, 9
    s_add_u32 s3, s3, {WS_DBG + 0x10000 + 4 * idx}""")
    if sidx is not None: A(f"s_lshl_b32 s2, s{sidx}, 2\ns_add_u32 s3, s3, s2")
    A(f"""s_waitcnt lgkmcnt(0)
    v_mov_b32 v{vt}, s100
    s_mov_b64 exec, 1
    buffer_store_dword v{vt}, off, {S4(rWS)}, s3
    s_mov_b64 exec, -1""")

MF = "v_mfma_f32_16x16x32_bf16"
MF16 = "v_mfma_f32_16x16x16_bf16"
C_SCALE = 0x3e0293ee
WS_FLG1 = 0x0F20000
WS_FLG2 = 0x0F21000

class Cnt:
    def __init__(self, A, name): self.A, self.name, self.n, self.tags = A, name, 0, {}
    def op(self, text, tag=None):
        self.A(text); self.n += 1
        if tag is not None: self.tags[tag] = self.n
    def need(self, tag): return self.n - self.tags[tag]
    def wait(self, tag): self.A(f"s_waitcnt {self.name}({min(self.need(tag), 15 if self.name == 'lgkmcnt' else 63)})")

def seg_count(A, sreg, sT, n):
    c = [(NSEG - t + n - 1) // n for t in range(n)]
    A(f"s_mov_b32 s{sreg}, {c[0]}")
    for t in range(1, n):
        if c[t] != c[0]: A(f"s_cmp_eq_u32 s{sT}, {t}\ns_cselect_b32 s{sreg}, {c[t]}, s{sreg}")

def rows_out(A, dst, vcol, vlane, t0, st0, st1):
    A(f"""s_and_b32 s{st0}, s{sW}, 1
    s_lshl_b32 s{st0}, s{st0}, 4
    s_lshr_b32 s{st1}, s{sW}, 1
    s_lshl_b32 s{st1}, s{st1}, 2
    s_add_u32 s{st0}, s{st0}, s{st1}
    v_lshrrev_b32 v{t0}, 4, v{vlane}
    v_add_u32 v{t0}, s{st0}, v{t0}
    v_lshl_add_u32 v{dst}, v{t0}, 10, v{vcol}""")
ROWS_OUT = [32 * (i >> 1) + 8 * (i & 1) for i in range(4)]

def extract8(A, base, w, vT, t0, t1, dst):
    l = A.lab()
    A(f"s_cmp_lg_u32 s{sW}, {w}\ns_cbranch_scc1 {l}\nv_add_u32 v{t0}, {base}, v{vT}")
    for t in range(8):
        A(f"v_xor_b32 v{t1}, {32 * t}, v{t0}")
        tr_tile(A, "a", dst(t), t1)
    A(f"{l}:")

def proj_out(A, nk, wreg, F, ACC, OUT, vSt, sBase):
    ep = []
    for p in range(4):
        for a_ in range(2):
            for b in range(2):
                c = ACC + ((p * 2 + a_) * 2 + b) * 4
                for ks in range(nk):
                    A(f"{MF} {v(c, 4)}, {a(wreg(2 * p + b, ks), 4)}, {v(F + 4 * (a_ * nk + ks), 4)}, {v(c, 4) if ks else 0}")
                    if (b or ks >= 2 or nk == 2 and False) and ep: A(ep.pop(0))
                    if b and ep: A(ep.pop(0))
            while ep: A(ep.pop(0))
            c = ACC + (p * 2 + a_) * 8; o = OUT + 4 * a_
            ep = [f"v_cvt_pk_bf16_f32 v{o + i}, v{c + 2 * i}, v{c + 2 * i + 1}" for i in range(4)]
            ep.append(f"buffer_store_dwordx4 {v(o, 4)}, v{vSt}, {S4(rWS)}, s{sBase + a_} offen offset:{64 * p}")
    while ep: A(ep.pop(0))

def row_consts(A, vlane, vRl, vRow, SEL, sHX, t0, t1, st):
    A(f"""v_lshrrev_b32 v{t0}, 4, v{vlane}
    v_and_b32 v{t1}, 15, v{vlane}
    v_lshlrev_b32 v{vRl}, 4, v{t1}
    v_lshl_or_b32 v{vRl}, v{t0}, 10, v{vRl}
    s_lshl_b32 s{st}, s{sW}, 8
    v_add_u32 v{vRl}, s{st}, v{vRl}
    v_and_b32 v{vRow}, 3, v{vlane}
    v_lshlrev_b32 v{vRow}, 3, v{vRow}
    v_bfe_u32 v{t0}, v{vlane}, 4, 1
    v_lshl_or_b32 v{vRow}, v{t0}, 5, v{vRow}
    v_bfe_u32 v{t0}, v{vlane}, 2, 2
    v_lshl_or_b32 v{vRow}, v{t0}, 6, v{vRow}
    v_lshrrev_b32 v{t0}, 5, v{vlane}
    v_lshl_or_b32 v{vRow}, v{t0}, 8, v{vRow}
    v_and_b32 v{t0}, 1, v{vlane}
    v_lshlrev_b32 v{t0}, 4, v{t0}
    v_mov_b32 v{SEL}, 0x3f80
    v_lshlrev_b32 v{t0}, v{t0}, v{SEL}
    v_lshrrev_b32 v{t1}, 1, v{t1}
    s_and_b32 s{st}, s{sW}, 1
    s_lshl_b32 s{st}, s{st}, 2
    v_subrev_u32 v{t1}, s{st}, v{t1}
    s_bitcmp1_b32 s{sW}, 0
    s_cselect_b32 s{sHX}, 0, -1
    s_cselect_b32 s{sHX + 1}, -1, 0""")
    for i in range(4): A(f"v_cmp_eq_u32 vcc, {i}, v{t1}\nv_cndmask_b32 v{SEL + i}, 0, v{t0}, vcc")

def inbox_ops(n4, D, vRl, sIn, st, store):
    ops = []
    for i in range(n4):
        x = f"buffer_store_dwordx4 {v(D, 4)}" if store else f"buffer_load_dwordx4 {v(D + 4 * i, 4)}"
        ops.append((f"s_add_u32 s{st}, s{sIn}, {4096 * i}\n" if i else "") + x + f", v{vRl}, {S4(rWS)}, s{st if i else sIn} offen" + ("" if store else " sc1"))
    return ops

def row_sum(A, n4, D, ACC, SEL, vRl, sIn, st, t):
    l = A.lab()
    spin_init(A)
    A(f"s_mov_b64 vcc, -1\n{l}:\ns_mov_b64 exec, vcc")
    for x in inbox_ops(n4, D, vRl, sIn, st, False): A(x)
    A("s_mov_b64 exec, -1")
    spin_step(A)
    for i in range(n4):
        A(f"s_waitcnt vmcnt({n4 - 1 - i})\n{MF} {v(ACC, 4)}, {v(SEL, 4)}, {v(D + 4 * i, 4)}, {v(ACC, 4) if i else 0}")
        for k in range(2): A(f"v_max3_u32 v{t}, v{t if i or k else D}, v{D + 4 * i + 2 * k}, v{D + 4 * i + 2 * k + 1}")
    A(f"v_cmp_eq_u32 vcc, -1, v{t}\ns_cbranch_vccnz {l}")

def inbox_reset(A, n4, NEG, vRl, sIn, st):
    for x in inbox_ops(n4, NEG, vRl, sIn, st, True): A(x)

def wait_flags(A, vF, vL4, sFlg, sNeed):
    l = A.lab()
    spin_init(A)
    A(f"{l}:\nbuffer_load_dword v{vF}, v{vL4}, {S4(rWS)}, s{sFlg} offen sc1")
    spin_step(A)
    A(f"s_waitcnt vmcnt(0)\nv_cmp_gt_u32 vcc, s{sNeed}, v{vF}\ns_cbranch_vccnz {l}")

def wave_sum(A, r, t):
    for k in (8, 4, 2, 1): A(f"v_add_f32_dpp v{r}, v{r}, v{r} row_ror:{k} row_mask:0xf bank_mask:0xf")
    for sw in ("v_permlane16_swap_b32", "v_permlane32_swap_b32"):
        A(f"v_mov_b32 v{t}, v{r}\n{sw} v{r}, v{t}\nv_add_f32 v{r}, v{r}, v{t}")

def unpack(A, dst, src, n):
    for i in range(n): A(f"v_and_b32 v{dst + 2 * i + 1}, 0xffff0000, v{src + i}\nv_lshlrev_b32 v{dst + 2 * i}, 16, v{src + i}")
def pack(A, dst, src, n):
    for i in range(n): A(f"v_cvt_pk_bf16_f32 v{dst + i}, v{src + 2 * i}, v{src + 2 * i + 1}")

def max_chk(A, t, b, n):
    for i in range(0, n, 2): A(f"v_max3_u32 v{t}, v{t if i else b}, v{b + i}, v{b + i + 1}")
    A(f"v_cmp_eq_u32 vcc, -1, v{t}")
```

```python
from common import *

SMF = "v_smfmac_f32_16x16x64_bf16"

def role_chain(A, cfg):
    NKV, PROF = cfg["NKV"], cfg["PROF"] >= 2
    assert NKV in (1, 2)
    M, G, QA, VA, KMQ, PM = 0, 32, 64, 80, 88, 92
    vIdx, vWl0, vWl1, vKr, vVr, vMr, vPartSt, vMemSt, vQw, vQr, vOw, vOr, vSel, vProg, vT, vMw = range(96, 112)
    vZ = PM + 1
    L_KV, L_Q, L_O, L_M = 112 * 1024, 144 * 1024, 148 * 1024, 150 * 1024
    PUBX = "0x000f000f"
    sSTEP, sX0, sX1, sX2, sPW, sPR, sPZ, sMN, sMZ, sKVS, sKVL, sKM, sPG, sNEED, sC, sME, sML, cME, sWO = range(56, 75)
    cPW, cPZ, cMD = 40, 41, 42
    sONE, sMSK = 76, 78
    sKP = 75
    sPX = 86
    st0, st1 = 100, 101
    sTS = 8
    def wreg(i): return ("a", 8 * i) if i < 32 else ("v", 112 + 8 * (i - 32))
    WQ = lambda p, b: wreg(2 * p + b)
    WK = lambda p, b: wreg(16 + p + b)
    WV = lambda p, b: wreg(24 + 2 * p + b)
    WO = lambda t, u: wreg(40 + 2 * t + u) if t < 5 else ("v", 32 + 8 * (2 * (t - 5) + u))
    W8 = lambda w: R(w[0], w[1], 8)
    def stamp(i, force=False):
        if PROF and (force or not cfg.get("QS") or i < 4): A(f"{'s_memrealtime' if cfg.get('RT') else 's_memtime'} s[{sTS + 2 * i}:{sTS + 2 * i + 1}]")
    def delay(n):
        while n > 0:
            A(f"s_nop {min(n, 16) - 1}"); n -= 16

    A("L_chain:")
    timeline(A, cfg, 0, 1)
    srd(A, rA, pWQ, 1 << 22); srd(A, rB, pWK, 1 << 22); srd(A, rC, pWV, 1 << 22); srd(A, rD, pWO, 1 << 22)
    vLane, vOffA, vOffO, vT0, t0, t1, t2, vPF, vDum = range(20, 29)
    lane_fields(A, vLane)
    dma_col(A, vOffA, vLane, t0, t1, st0)
    A(f"""v_bfe_u32 v{t0}, v{vLane}, 4, 1
    v_lshrrev_b32 v{t1}, 5, v{vLane}
    s_and_b32 s{st0}, s{sW}, 1
    s_lshr_b32 s{st1}, s{sW}, 1
    v_lshl_add_u32 v{t2}, v{t1}, 5, v{t0}
    s_lshl_b32 s3, s{st1}, 4
    v_add_u32 v{t2}, s3, v{t2}
    s_lshl_b32 s3, s{st0}, 1
    v_add_u32 v{t2}, s3, v{t2}
    v_lshl_add_u32 v{vOffO}, v{t2}, 10, v{vOffA}
    v_lshlrev_b32 v{t0}, 4, v{t0}
    v_lshl_add_u32 v{t2}, v{t1}, 2, v{t0}
    v_add_u32 v{t2}, s{sW}, v{t2}
    v_lshl_add_u32 v{vOffA}, v{t2}, 13, v{vOffA}
    s_lshl_b32 s{sKVS}, s{sRK}, 8
    s_lshl_b32 s3, s{sRK}, 1
    s_add_u32 s3, s3, s{st1}
    s_lshr_b32 s{st1}, s3, 5
    s_lshl_b32 s{st1}, s{st1}, 7
    s_and_b32 s3, s3, 31
    s_add_u32 s3, s3, s{st1}
    s_lshl_b32 s3, s3, 13
    s_lshl_b32 s{st0}, s{st0}, 12
    s_add_u32 s3, s3, s{st0}
    v_lshl_add_u32 v{vPF}, v{vLane}, 6, s3
    s_lshl_b32 s{st0}, s{sW}, 12
    v_lshl_add_u32 v{vWl0}, v{vLane}, 4, s{st0}
    s_mul_i32 s{st0}, s{sW}, 12288
    s_add_u32 s{st0}, s{st0}, 0x10000
    v_lshl_add_u32 v{vWl1}, v{vLane}, 4, s{st0}""")
    tr_base(A, vT, vLane, t0, t1)
    A(f"s_lshl_b32 s{st0}, s{sW}, 6\nv_xor_b32 v{vT0}, s{st0}, v{vT}")
    for i in range(4):
        A(f"""s_add_u32 s{st0}, s{sRK}, {i}
        s_and_b32 s{sMSK + 4 + i}, s{st0}, 3
        s_lshl_b32 s{st0}, s{sMSK + 4 + i}, 8
        s_lshl_b32 s{st1}, s{sRK}, 17
        s_add_u32 s{sMSK + i}, s{st0}, s{st1}""")

    def startup():
        fill_ones(A, 0, 4)
        A(f"""s_lshl_b32 s{sPZ}, s{sRK}, 13
        s_add_u32 s{sPZ}, s{sPZ}, {WS_PART}
        s_lshl_b32 s{st0}, s{sW}, 11
        s_sub_u32 s{sPZ}, s{sPZ}, s{st0}
        v_bfe_u32 v{t0}, v{vLane}, 4, 1
        v_and_b32 v{t1}, 3, v{vLane}
        s_and_b32 s3, s{sRK}, 6
        v_add_u32 v{t2}, s3, v{t0}
        v_lshlrev_b32 v{t2}, 10, v{t2}
        v_lshl_add_u32 v{t2}, v{t1}, 2, v{t2}
        s_lshr_b32 s{st0}, s{sRK}, 3
        s_lshl_b32 s{sX0}, s{st0}, 8
        s_lshl_b32 s{sX1}, s{sW}, 6
        s_add_u32 s{sX0}, s{sX0}, s{sX1}
        s_and_b32 s{sX2}, s{sRK}, 1
        s_lshl_b32 s{sX1}, s{sX2}, 4
        s_add_u32 s{sX0}, s{sX0}, s{sX1}
        v_add_u32 v{t2}, s{sX0}, v{t2}""")
        for i, o in enumerate((0, 32, 2, 34)): A(f"global_load_ushort v{8 + i}, v{t2}, s[{pMEM0}:{pMEM0 + 1}] offset:{o}")
        for sl in range(3):
            A(f"s_add_u32 s{sX1}, s{sPZ}, {sl * 262144}")
            for i in range(2): A(f"buffer_store_dwordx4 {v(0, 4)}, v{vWl0}, {S4(rWS)}, s{sX1} offen offset:{i * 1024}")
        A(f"""s_lshl_b32 s{sX0}, s{sW}, 1
        s_lshr_b32 s{sX1}, s{st0}, 1
        s_add_u32 s{sX0}, s{sX0}, s{sX1}
        s_lshl_b32 s{sX0}, s{sX0}, 2
        s_and_b32 s{st0}, s{st0}, 1
        s_lshl_b32 s{st0}, s{st0}, 1
        s_add_u32 s{sX0}, s{sX0}, s{st0}
        s_add_u32 s{sX0}, s{sX0}, s{sX2}
        s_lshl_b32 s{sX0}, s{sX0}, 8
        s_lshl_b32 s3, s3, 5
        s_add_u32 s{sX0}, s{sX0}, s3
        v_lshlrev_b32 v{vMemSt}, 4, v{t0}
        v_lshrrev_b32 v{t0}, 1, v{t1}
        v_lshl_or_b32 v{vMemSt}, v{t0}, 5, v{vMemSt}
        v_and_b32 v{t0}, 1, v{t1}
        v_lshl_or_b32 v{vMemSt}, v{t0}, 3, v{vMemSt}
        v_add_u32 v{vMemSt}, s{sX0}, v{vMemSt}
        s_mov_b32 s{st0}, {WS_MEM}
        s_waitcnt vmcnt(6)
        v_lshl_or_b32 v8, v9, 16, v8
        v_lshl_or_b32 v9, v11, 16, v10
        v_min_u32 v8, -2, v8
        v_min_u32 v9, -2, v9
        s_mov_b64 exec, {PUBX}
        buffer_store_dwordx2 v[8:9], v{vMemSt}, {S4(rWS)}, s{st0} offen
        s_add_u32 s{st0}, s{st0}, 8192
        buffer_store_dwordx2 v[0:1], v{vMemSt}, {S4(rWS)}, s{st0} offen
        s_add_u32 s{st0}, s{st0}, 8192
        buffer_store_dwordx2 v[0:1], v{vMemSt}, {S4(rWS)}, s{st0} offen
        s_mov_b64 exec, -1""")
    startup()
    chunks = []
    def two(d0, d1):
        def ex(A, base):
            A(f"v_add_u32 v{t0}, {base}, v{vT0}\nv_xor_b32 v{t1}, 32, v{t0}")
            tr_tile(A, d0[0], d0[1], t0); tr_tile(A, d1[0], d1[1], t1)
        return ex
    def cha(r, p, ex):
        base = (256 * (p & 1) + 32 * (p >> 1)) * 8192
        chunks.append(dict(srd=r, voff=vOffA, sbase=sKVS, offs=[base + (128 * (i >> 1) + 8 * (i & 1)) * 8192 for i in range(4)], extract=ex, pf=(vPF, base)))
    for u in range(2):
        for k in range(4):
            def ex(A, base, u=u, k=k):
                l = A.lab()
                A(f"s_cmp_lg_u32 s{sW}, s{sMSK + 4 + k}\ns_cbranch_scc1 {l}\nv_add_u32 v{t0}, {base}, v{vT}")
                for t in range(8):
                    A(f"v_xor_b32 v{t1}, {32 * t}, v{t0}")
                    tr_tile(A, WO(t, u)[0], WO(t, u)[1], t1)
                A(f"{l}:")
            chunks.append(dict(srd=rD, voff=vOffO, sbase=sMSK + k, offs=[(64 * u + 4 * i) * 1024 for i in range(4)], extract=ex))
    for p in range(8): cha(rA, p, two(WQ(p, 0), WQ(p, 1)))
    for p in range(0, 8, 2): cha(rB, p, two(WK(p, 0), WK(p, 1)))
    for p in range(8): cha(rC, p, two(WV(p, 0), WV(p, 1)))
    def inplace(A, base):
        two(("v", 0), ("v", 8))(A, base)
        A(f"v_add_u32 v{t0}, {base}, v{vWl0}\ns_waitcnt lgkmcnt(0)\ns_barrier")
        for i in range(4): A(f"ds_write_b128 v{t0}, {v(4 * i, 4)} offset:{1024 * i}")
    for p in range(1, 8, 2): cha(rB, p, inplace)

    def prog_addr(seg):
        A(f"s_lshl_b32 s{sPG}, s{sRK}, 7\ns_add_u32 s{sPG}, s{sPG}, {WS_PROG + (seg % NKV) * 4096}\ns_mov_b32 s{sNEED}, {seg // NKV + 1}")
    prog_ld = lambda r: f"buffer_load_dword v{r}, v{vZ}, {S4(rWS)}, s{sPG} offen sc1"
    def prog_spin():
        l, l2 = A.lab(), A.lab()
        spin_init(A)
        A(f"{l}:\nv_readfirstlane_b32 s{st0}, v{vProg}\ns_cmp_ge_u32 s{st0}, s{sNEED}\ns_cbranch_scc1 {l2}\n" + prog_ld(vProg))
        spin_step(A)
        A(f"s_waitcnt vmcnt(0)\ns_branch {l}\n{l2}:")
    def done_probe():
        A(f"v_mov_b32 v{vZ}, 0\nv_mov_b32 v16, {DBG_DONE}\nglobal_load_dword v17, v16, s[{pDBG}:{pDBG + 1}] sc1")
    def first_probe():
        l = A.lab()
        A(f"v_readfirstlane_b32 s{st0}, v17\ns_cmp_ge_u32 s{st0}, 256\ns_cbranch_scc1 {l}")
        wait_done(A, 16, 17, st0)
        A(f"{l}:")
        prog_addr(1); A(prog_ld(18)); prog_addr(0); A(prog_ld(vProg))
    def first_kv():
        prog_spin()
        A(f"""s_lshl_b32 s{sKVS}, s{sRK}, 14
        s_add_u32 s{sKVS}, s{sKVS}, {WS_KV}
        s_lshl_b32 s{sKVL}, s{sW}, 12
        s_add_u32 s{sKVL}, s{sKVL}, {L_KV}
        s_mov_b32 m0, s{sKVL}""")
        A(f"v_mov_b32 v{vProg}, v18")
        for i in range(4): A(f"buffer_load_dwordx4 v{vWl0}, {S4(rWS)}, s{sKVS} offen offset:{1024 * i} sc1 lds")
    load_chunks(A, chunks, 10, cfg["CH_DEPTH"], 2, st0, st1, hooks={0: lambda: signal_done(A, t0, t1), 31: first_kv},
                pfd=cfg["CH_PF"], vdummy=vDum, pre={30 - cfg['CH_DEPTH']: done_probe, 31: first_probe})
    for i in range(12): A(f"ds_write_b128 v{vWl1}, {v(32 + 4 * i, 4)} offset:{1024 * i}")
    timeline(A, cfg, 1, t0)
    if cfg["PROF"] == -1:
        A(f"s_or_b32 s3, s{sRK}, s{sW}\ns_cmp_lg_u32 s3, 0\ns_cbranch_scc1 L_dg1\nv_mov_b32 v{t0}, s98\ns_mov_b64 exec, 1\nglobal_store_dword v{vZ}, v{t0}, s[{pDBG}:{pDBG + 1}] offset:4 sc1\ns_mov_b64 exec, -1\nL_dg1:")
    if "chain" not in cfg["ENABLE"]:
        A("s_endpgm"); return
    for i in range(8): A(f"s_mov_b32 s{sMSK + i}, {0x11111111 << (i >> 1):#x}")
    A(f"""v_and_b32 v{t0}, 15, v{vLane}
    v_lshrrev_b32 v{t1}, 4, v{vLane}
    v_mov_b32 v{vIdx}, 0x4444
    v_mov_b32 v{t2}, 0xeeee
    s_mov_b32 vcc_lo, 0xcccccccc
    s_mov_b32 vcc_hi, 0xcccccccc
    v_cndmask_b32 v{vIdx}, v{vIdx}, v{t2}, vcc
    v_mov_b32 v{vSel}, 0x3f80
    v_mov_b32 v{t2}, 1.0
    s_mov_b32 vcc_lo, 0xf0f0f0f0
    s_mov_b32 vcc_hi, 0xf0f0f0f0
    v_cndmask_b32 v{vSel}, v{vSel}, v{t2}, vcc
    s_mov_b32 s{sONE}, 0x3f803f80
    s_mov_b32 s{sONE + 1}, 0x3f803f80
    s_mov_b32 s{sC}, {C_SCALE:#x}
    v_mov_b32 v{vZ + 1}, 0
    v_lshrrev_b32 v27, 2, v{t0}
    v_and_b32 v28, 1, v{t0}
    v_lshl_or_b32 v27, v27, 1, v28
    v_bfe_u32 v28, v{t0}, 1, 1
    v_lshlrev_b32 v{vMr}, 4, v{vLane}
    v_add_u32 v{vKr}, {L_KV}, v{vMr}
    v_add_u32 v{vVr}, {L_KV}, v{vWl0}
    v_add_u32 v{vMr}, {L_M}, v{vMr}
    s_lshl_b32 s{st0}, s{sW}, 11
    v_add_u32 v{vMw}, s{st0}, v{vMr}
    s_add_u32 s{cMD}, s{st0}, {L_M}
    s_sub_u32 s{cME}, {WS_MEM}, s{st0}
    s_mov_b32 s{sME}, s{cME}
    s_lshl_b32 s{st0}, s{sW}, 10
    s_add_u32 s{st0}, s{st0}, {L_Q}
    v_lshlrev_b32 v{t2}, 2, v{t0}
    v_lshl_or_b32 v{t2}, v{t1}, 7, v{t2}
    v_add_u32 v{vQw}, s{st0}, v{t2}
    v_lshrrev_b32 v{t2}, 3, v{t0}
    v_lshl_or_b32 v{t2}, v{t1}, 1, v{t2}
    s_lshl_b32 s{st0}, s{sW}, 3
    v_add_u32 v{t2}, s{st0}, v{t2}
    v_and_b32 v29, 7, v{t0}
    v_lshlrev_b32 v29, 3, v29
    v_lshl_or_b32 v{vPartSt}, v{t2}, 13, v29
    v_lshlrev_b32 v{t2}, 4, v{t1}
    v_lshl_or_b32 v{t2}, v27, 6, v{t2}
    v_add_u32 v{vQr}, {L_Q}, v{t2}
    v_lshlrev_b32 v{t2}, 4, v27
    v_lshl_or_b32 v{t2}, v{t1}, 8, v{t2}
    s_lshr_b32 s{st0}, s{sW}, 1
    s_lshl_b32 s{st0}, s{st0}, 10
    s_and_b32 s{st1}, s{sW}, 1
    s_lshl_b32 s{st1}, s{st1}, 7
    s_add_u32 s{st0}, s{st0}, s{st1}
    s_add_u32 s{st0}, s{st0}, {L_O}
    v_add_u32 v{vOw}, s{st0}, v{t2}
    v_lshl_or_b32 v{t2}, v28, 7, v{t2}
    v_add_u32 v{vOr}, {L_O}, v{t2}
    s_mul_i32 s{st0}, s{sW}, 3072
    s_lshl_b32 s{sKM}, s{sRK}, 12
    s_add_u32 s{sKM}, s{sKM}, {WS_KM}
    s_sub_u32 s{sKM}, s{sKM}, s{st0}
    s_lshl_b32 s{cPW}, s{sRK}, 6
    s_add_u32 s{cPW}, s{cPW}, {WS_PART}
    s_mov_b32 s{cPZ}, s{sPZ}
    s_mov_b32 s{sKP}, {WS_SIZE}
    s_mov_b32 s{sSTEP}, 0
    s_mov_b32 s{sX0}, 0
    s_mov_b32 s{sX1}, 8192
    s_mov_b32 s{sX2}, 16384
    s_cmp_lt_u32 s{sW}, {cfg['PRE']}
    s_cselect_b64 s[{sPX}:{sPX + 1}], -1, 0""")
    prog_addr(1); prog_spin()
    if PROF: A(f"s_mov_b32 s{sTS + 23}, 0\ns_mov_b32 s{sTS + 22}, 0\ns_mov_b32 s2, 0")

    def lw(j, half):
        return f"ds_read_b128 {v(G + 8 * (j % 4) + 4 * half, 4)}, v{vWl0} offset:{(j // 2) * 16384 + (j & 1) * 2048 + half * 1024}"
    def zero_acc():
        for i in range(QA, VA + 8, 2): A(f"v_mov_b64 {v(i, 2)}, 0")
    def preload():
        for j in range(4):
            for hf in range(2): A(lw(j, hf))
    sc_part = [f"s_lshl_b32 s{st0}, s{sX0}, 5", f"s_add_u32 s{sPW}, s{st0}, s{cPW}", f"s_add_u32 s{sWO}, s{sPW}, 4096",
               f"s_add_u32 s{sPR}, s{st0}, s{cPZ}", f"s_lshl_b32 s{st0}, s{sX2}, 5", f"s_add_u32 s{sPZ}, s{st0}, s{cPZ}",
               f"s_add_u32 s{sMN}, s{sX1}, {WS_MEM}", f"s_add_u32 s{sMZ}, s{sX0}, {WS_MEM}"] + \
              ([f"s_lshr_b32 s{sNEED}, s{sSTEP}, 1", f"s_add_u32 s{sNEED}, s{sNEED}, 2"] if NKV == 2 else
               [f"s_add_u32 s{sNEED}, s{sSTEP}, 3"]) + \
              [f"s_cmp_gt_u32 s{sSTEP}, {NSEG - 3}\ns_cselect_b32 s{sNEED}, 0, s{sNEED}"]
    sc_next = [f"s_add_u32 s{sME}, s{sX1}, s{cME}",
               f"s_mov_b32 s{st0}, s{sX0}", f"s_mov_b32 s{sX0}, s{sX1}", f"s_mov_b32 s{sX1}, s{sX2}", f"s_mov_b32 s{sX2}, s{st0}",
               f"s_add_u32 s{sSTEP}, s{sSTEP}, 1"] + \
              [f"s_mov_b32 s{sKP}, s{sKM}", f"s_add_u32 s{sKM}, s{sKM}, {32 * 4096}"]
    sq = []
    def sal(n):
        for _ in range(n):
            if sq: A(sq.pop(0))
    SEL, RA, RD, ES = M, M + 4, M + 16, M + 24
    A("s_waitcnt lgkmcnt(0)")
    zero_acc(); preload()
    fill_ones(A, ES, 8)
    prog_addr(2); A(prog_ld(vProg))
    timeline(A, cfg, 2, vT)
    A("s_branch L_fetch")

    eld = "\n".join(f"buffer_load_dwordx4 {v(ES + 4 * i, 4)}, v{vWl0}, {S4(rWS)}, s{sME} offen offset:{1024 * i} sc1" for i in range(2))
    lld = eld + "\n" + "\n".join(f"buffer_load_dwordx4 v{vWl0}, {S4(rWS)}, s{sME} offen offset:{1024 * i} sc1 lds" for i in range(2))
    ewr = f"ds_write_b128 v{vMw}, {v(ES, 4)}\nds_write_b128 v{vMw}, {v(ES + 4, 4)} offset:1024"
    masked = lambda x: "s_mov_b64 exec, vcc\n" + x + "\ns_mov_b64 exec, -1"
    def mx(b, n): return [f"v_max3_u32 v{vT}, v{vT if i else b}, v{b + i}, v{b + i + 1}" for i in range(0, n, 2)]
    CMP = f"v_cmp_eq_u32 vcc, -1, v{vT}"
    dmakv = lambda i: f"buffer_load_dwordx4 v{vWl0}, {S4(rWS)}, s{sKVS} offen offset:{1024 * i} {cfg['KVLD']} lds" if not cfg.get("NODMA") else "s_nop 0"
    A(f"L_lr:\ns_mov_b32 m0, s{cMD}")
    spin_init(A)
    A("L_lr1:")
    if PROF: A(f"s_add_u32 s{sTS + 22}, s{sTS + 22}, 1")
    A(lld); spin_step(A)
    A("s_waitcnt vmcnt(0)")
    for x in mx(ES, 8) + [CMP]: A(x)
    A(f"s_cbranch_vccnz L_lr1\ns_mov_b32 m0, s{sKVL}\ns_branch L_lk")
    A(f"L_fl:\ns_mov_b32 m0, s{cMD}")
    stamp(10)
    A("s_barrier\n" + lld + "\ns_branch L_b0")
    A(f".p2align 6\nL_fetch:\ns_cmp_ge_u32 s{sW}, 2\ns_cbranch_scc1 L_fl")
    spin_init(A)
    for i, d in enumerate(cfg["FD"]):
        if i: A(eld)
        delay(d)
    A("s_mov_b64 vcc, -1\nL_er:\n" + masked(eld))
    if PROF: A("s_add_u32 s2, s2, 1")
    spin_step(A)
    A(f"s_waitcnt vmcnt({2 * (len(cfg['FD']) - 1)})")
    for x in mx(ES, 8) + [CMP]: A(x)
    A("s_cbranch_vccnz L_er")
    if not cfg["SPEC"]: A(ewr)
    stamp(10)
    A("s_barrier\nL_b0:")
    L = Cnt(A, "lgkmcnt")
    def mrd(p): L.op(f"ds_read_b128 {v(M + 4 * p, 4)}, v{vMr} offset:{1024 * p}", ("m", p))
    def lwr(j, hf): L.op(lw(j, hf), ("w", j))
    def kfr(kf): L.op(f"ds_read_b128 {v(M + 4 * kf, 4)}, v{vKr} offset:{(kf >> 1) * 4096 + 2048 + (kf & 1) * 1024}", ("K", kf))
    def frag(k, t):
        if k == "K": kfr(t)
        elif k == "V": L.op(f"ds_read_b128 {v(G + 4 * t, 4)}, v{vVr} offset:{1024 * t}", ("V", t))
        else: L.op(f"ds_read_b128 {v(G + 8 * t + (4 if k == 'k' else 0), 4)}, v{vQr} offset:{t * 1024 + (512 if k == 'k' else 0)}", (k, t))
    A("s_waitcnt lgkmcnt(0)\ns_barrier")
    stamp(0)
    for p in range(4): mrd(p)
    A(f"s_add_u32 s{sKVS}, s{sKVS}, {32 * 16384}\ns_xor_b32 s{sKVL}, s{sKVL}, 0x3c000\ns_mov_b32 m0, s{sKVL}")
    sq.extend(sc_part); sal(2)
    L.wait(("m", 0))
    stamp(1)
    NV = cfg["NVF"]
    qk = lambda p: [(QA, p, W8(WQ(p, 0))), (QA + 4, p, W8(WQ(p, 1)))] + \
                   [(QA + 8 + 4 * b, p, W8(WK(p, b)) if p % 2 == 0 else v(G + 8 * ((p - 1 + b) % 4), 8)) for b in range(2)]
    vv = lambda p: [(VA + 4 * b, p, W8(WV(p, b))) for b in range(2)]
    seq = sum((qk(p) for p in range(4)), []) + sum((vv(p) for p in range(NV)), []) + sum((qk(p) for p in range(4, 8)), [])
    H = 16 + 2 * NV
    gap = {}; val = {}
    def at(k, fn): gap.setdefault(k, []).append(fn)
    for k, (j, hf) in zip((6, 8, 9, 10), ((4, 0), (4, 1), (5, 0), (5, 1))): at(k, lambda j=j, hf=hf: lwr(j, hf))
    LP = cfg["LP"]
    VS = cfg["VS"]
    NEG = G if min(VS["r0"], VS["r1"]) < 200 else QA + 12
    kmst = f"buffer_store_dwordx4 {v(KMQ, 4)}, v{vWl0}, {S4(rWS)}, s{sKM} offen sc1"
    vop = {"km": kmst if VS["km"] >= 200 else kmst.replace(f"s{sKM} ", f"s{sKP} ")}
    for i in range(4): vop[f"d{i}"] = dmakv(i)
    for i in range(2): vop[f"r{i}"] = f"buffer_store_dwordx4 {v(NEG, 4)}, v{vWl0}, {S4(rWS)}, s{sPZ} offen offset:{1024 * i}"
    def vslot(k):
        for n in sorted(VS):
            if VS[n] == k: A(vop[n])
    for n in VS:
        if VS[n] < 100 and VS[n] != LP: at(VS[n], lambda n=n: A(vop[n]))
    assert LP not in VS.values()
    if NEG == G: val[H + 8] = [f"v_mov_b64 {v(NEG, 2)}, -1"]; val[H + 9] = [f"v_mov_b64 {v(NEG + 2, 2)}, -1"]
    at(LP, lambda: A(f"s_waitcnt vmcnt({sum(x < LP for x in VS.values())})"))
    for i, x in enumerate(mx(ES, 8) + [CMP]): val.setdefault(LP + (i + 1) // 2, []).append(x)
    at(LP + 4, lambda: A("s_cbranch_vccnz L_lr\nL_lk:\ns_barrier"))
    for i in range(4): at(LP + 4 + (i if i < 2 else 2 * i), lambda i=i: mrd(4 + i))
    for k, (j, hf) in zip((H + 1, H + 2, H + 5, H + 6), ((6, 0), (6, 1), (7, 0), (7, 1))): at(k, lambda j=j, hf=hf: lwr(j, hf))
    at(H + 5, lambda: L.wait(("w", 5))); at(H + 13, lambda: L.wait(("w", 7)))
    for i in range(NV): at(H + 9 + 2 * i, lambda i=i: kfr(i))
    for k, (acc, p, wop) in enumerate(seq):
        A(f"{SMF} {v(acc, 4)}, {v(M + 4 * p, 4)}, {wop}, v{vIdx}")
        g = gap.get(k, [])
        for fn in g: fn()
        n = len(g)
        if k + 1 < len(seq) and seq[k + 1][0] == QA: L.wait(("m", seq[k + 1][1])); n += 1
        if cfg.get("QS") and k in cfg["QS"]: stamp(4 + cfg["QS"].index(k), True)
        sal((2 if k in val else 3) - n)
        for x in val.get(k, []): A(x)
    assert not sq
    stamp(2)
    qd = G + 16
    def addh(d): return [f"v_add_f32 v{d}, v{d}, v{d + 2}", f"v_add_f32 v{d + 1}, v{d + 1}, v{d + 3}"]
    for x in addh(QA) + addh(QA + 4): A(x)
    A(f"v_cvt_pk_bf16_f32 v{qd}, v{QA}, v{QA + 4}\nv_cvt_pk_bf16_f32 v{qd + 1}, v{QA + 1}, v{QA + 5}")
    L.op(f"ds_write2_b32 v{vQw}, v{qd}, v{qd + 1} offset1:16")
    for x in addh(QA + 8) + addh(QA + 12): A(x)
    A(f"v_cvt_pk_bf16_f32 v{KMQ}, v{QA + 8}, v{QA + 12}\nv_cvt_pk_bf16_f32 v{KMQ + 1}, v{QA + 9}, v{QA + 13}")
    L.op(f"ds_write2_b32 v{vQw}, v{KMQ}, v{KMQ + 1} offset0:128 offset1:144", "wk")
    if cfg.get("QS") and 99 in cfg["QS"]: stamp(4 + cfg["QS"].index(99), True)
    rq = [("q", 0), ("k", 0), ("q", 1), ("k", 1), ("K", 4), ("q", 2), ("K", 5), ("k", 2), ("K", 6), ("q", 3), ("K", 7), ("k", 3), ("V", 0), ("V", 1)]
    rest = sum((vv(p) for p in range(NV, 8)), [])
    EB = cfg["EB"]
    for e, (acc, p, wop) in enumerate(rest):
        A(f"{SMF} {v(acc, 4)}, {v(M + 4 * p, 4)}, {wop}, v{vIdx}")
        if (e & 1) and p < 4: kfr(p)
        if e == EB: L.wait("wk"); A("s_barrier")
        if e > EB and rq and (rq[0][0] != "K" or rq[0][1] < p + (e & 1)): frag(*rq.pop(0))
        vslot(100 + e)
        if e < 2 and NEG != G: A(f"v_mov_b64 {v(NEG + 2 * e, 2)}, -1")
        if cfg.get("QS") and 100 + e in cfg["QS"]: stamp(4 + cfg["QS"].index(100 + e), True)
    stamp(3)
    Sm, S0, S1 = QA, QA + 4, QA + 8
    vq = addh(VA) + addh(VA + 4) + [f"v_cvt_pk_bf16_f32 v{KMQ + 2}, v{VA}, v{VA + 1}", f"v_cvt_pk_bf16_f32 v{KMQ + 3}, v{VA + 4}, v{VA + 5}"]
    zq = [f"v_mov_b64 {v(M + i, 2)}, 0" for i in range(0, 32, 2)]
    def z(n):
        for _ in range(n):
            if zq: A(zq.pop(0))
    for t in range(4):
        need = [("q", t), ("k", t), ("K", 2 * t), ("K", 2 * t + 1)]
        while any(x not in L.tags for x in need): frag(*rq.pop(0))
        L.wait(min((L.need(x), x) for x in need)[1])
        for i, (d, a_) in enumerate(((S0, M + 8 * t), (S1, M + 8 * t + 4), (Sm, G + 8 * t + 4))):
            A(f"{MF} {v(d, 4)}, {v(a_, 4)}, {v(G + 8 * t, 4)}, {v(d, 4) if t else 0}")
            e = 3 * t + i
            if rq and (rq[0][0] != "V" or e >= 2): frag(*rq.pop(0))
            if 2 <= e <= 4: A(vq[2 * (e - 2)] + "\n" + vq[2 * (e - 2) + 1])
            if e == 4: A(f"s_cmp_eq_u32 s{sSTEP}, {cfg.get('LAST', NSEG - 1)}")
            if e == 5 and not cfg.get("XL"): A("s_cbranch_scc1 L_ch_exit")
            vslot(200 + e)
            if e == 7: A(f"v_mov_b64 {v(G + 8, 2)}, s[{sONE}:{sONE + 1}]\nv_mov_b64 {v(G + 10, 2)}, s[{sONE}:{sONE + 1}]")
            if e >= 8: z(2)
    assert not rq
    stamp(4)
    if cfg.get("XL"): A(f"s_cmp_eq_u32 s{sSTEP}, {NSEG - 1}\ns_cbranch_scc1 L_ch_exit")
    m1, m2, m3, tt = G + 28, G + 29, G + 30, G + 31
    z(1)
    A(f"""v_max3_f32 v{m1}, v{S0}, v{S0 + 1}, v{S0 + 2}
    v_max3_f32 v{m2}, v{S0 + 3}, v{S1}, v{S1 + 1}
    v_max3_f32 v{m3}, v{S1 + 2}, v{S1 + 3}, v{m1}
    v_max3_f32 v{m1}, v{Sm}, v{Sm + 1}, v{m2}
    v_max_f32 v{m2}, v{m1}, v{m3}
    v_max_f32 v{tt}, v{m1}, v{m3}""")
    z(2)
    A(f"v_permlane16_swap_b32 v{m2}, v{tt}\nv_max_f32 v{m1}, v{m2}, v{tt}\nv_max_f32 v{m3}, v{m2}, v{tt}")
    z(2)
    A(f"v_permlane32_swap_b32 v{m1}, v{m3}\nv_max_f32 v{m1}, v{m1}, v{m3}\nv_mul_f32 v{m1}, s{sC}, v{m1}")
    sv = [Sm, Sm + 1] + [S0 + i for i in range(8)]
    P = G + 12
    O0, O1, SU = G + 16, G + 20, G + 24
    fm = lambda x: f"v_fma_f32 v{x}, v{x}, s{sC}, -v{m1}"
    A(fm(sv[0]))
    for i in range(10):
        if i + 1 < 10: A(fm(sv[i + 1]))
        A(f"v_exp_f32 v{sv[i]}, v{sv[i]}")
        if i == 2: A(f"v_cvt_pk_bf16_f32 v{PM}, v{Sm}, v{Sm + 1}\nv_cvt_pk_bf16_f32 v{PM + 3}, v{Sm}, v{Sm + 1}")
        if i in (4, 6, 8): A(f"v_cvt_pk_bf16_f32 v{P + (i - 4) // 2}, v{sv[i - 2]}, v{sv[i - 1]}")
        if i == 3: A(f"{MF16} {v(SU, 4)}, {v(G + 8, 2)}, {v(PM, 2)}, 0")
        if i == 5: A(f"{MF16} {v(O0, 4)}, {v(KMQ + 2, 2)}, {v(PM, 2)}, 0")
        if i == 7: A(f"{MF16} {v(O1, 4)}, {v(KMQ + 2, 2)}, {v(PM + 2, 2)}, 0")
    L.wait(("V", 1))
    A(f"v_cvt_pk_bf16_f32 v{P + 3}, v{sv[8]}, v{sv[9]}")
    stamp(5)
    z(2)
    A(f"{MF} {v(SU, 4)}, {v(G + 8, 4)}, {v(P, 4)}, {v(SU, 4)}"); z(2)
    A(f"{MF} {v(O0, 4)}, {v(G, 4)}, {v(P, 4)}, {v(O0, 4)}")
    A(f"{MF} {v(O1, 4)}, {v(G + 4, 4)}, {v(P, 4)}, {v(O1, 4)}")
    ost = lambda k: (VA, G, QA + 8, G + 24, G + 8, VA)[k]
    def owr(k, hf): L.op(f"ds_read_b128 {v(ost(k) + 4 * hf, 4)}, v{vWl1} offset:{k * 2048 + hf * 1024}", ("ow", k))
    owr(0, 0)
    A(f"v_rcp_f32 v{SU}, v{SU}")
    owr(0, 1)
    for o in (O0, O1):
        for i in range(4): A(f"v_mul_f32 v{o + i}, v{o + i}, v{SU}")
        for i in range(2): A(f"v_cvt_pk_bf16_f32 v{P + (o - O0) // 2 + i}, v{o + 2 * i}, v{o + 2 * i + 1}")
    assert not zq
    L.op(f"ds_write_b128 v{vOw}, {v(P, 4)}", "ow")
    owr(1, 0); owr(1, 1)
    L.wait("ow"); A("s_barrier")
    L.op(f"ds_read_b128 {v(QA, 4)}, v{vOr}", "o0"); L.op(f"ds_read_b128 {v(QA + 4, 4)}, v{vOr} offset:1024", "o1")
    stamp(6)
    L.wait("o0")
    OQ = G + 16
    tile = lambda t: addh(M + 4 * t) + [f"v_cvt_pk_bf16_f32 v{OQ + t}, v{M + 4 * t}, v{M + 4 * t + 1}"]
    def pstore(p): A(f"buffer_store_dwordx2 {v(OQ + 2 * p, 2)}, v{vPartSt}, {S4(rWS)}, s{sPW if p < 2 else sWO} offen offset:{2048 * (p & 1)}")
    rl = "\n".join(f"buffer_load_dwordx4 {v(RD + 4 * i, 4)}, v{vWl0}, {S4(rWS)}, s{sPR} offen offset:{1024 * i} sc1" for i in range(2))
    sq.extend(sc_next)
    for e in range(16):
        t, u = e >> 1, e & 1
        A(f"{SMF} {v(M + 4 * t, 4)}, {v(QA + 4 * u, 4)}, {W8(WO(t, u)) if t < 5 else v(ost(e - 10), 8)}, v{vIdx}")
        if e == 0: L.wait("o1")
        if e < 6: owr(2 + e // 2, e & 1)
        if e == 10: owr(5, 0); owr(5, 1)
        if e == 9: L.wait(("ow", 4))
        if e == 14: L.wait(("ow", 5))
        if e in (7, 11) or (e == 15 and cfg['PREP'] != 'c'): pstore((e - 7) // 4)
        if e >= 1: sal(1)
        if e in (1, 2): A(f"v_xor_b32 v{vKr if e == 1 else vVr}, 0x3c000, v{vKr if e == 1 else vVr}")
        if e >= 3 and (e & 1): A(tile((e - 3) // 2)[0] + "\n" + tile((e - 3) // 2)[1])
        if e >= 4 and not (e & 1): A(tile((e - 4) // 2)[2])
    assert not sq
    A(tile(6)[2])
    for i in range(0, 8, 2): A(f"v_mov_b64 {v(RD + i, 2)}, -1")
    pre = f"s_mov_b64 exec, s[{sPX}:{sPX + 1}]\n{rl}\ns_mov_b64 exec, -1"
    if cfg["PREP"] == "c": A(pre); pstore(2)
    for x in tile(7): A(x)
    if cfg["PREP"] == "a": A(pre)
    pstore(3)
    stamp(7)
    rmf = lambda i: f"{MF} {v(RA, 4)}, {v(SEL, 4)}, {v(RD + 4 * i, 4)}, {v(RA, 4) if i else 0}"
    def steplog():
        if PROF:
            A(f"""s_memrealtime s[100:101]
            s_waitcnt lgkmcnt(0)
            s_bitcmp1_b32 s{sW}, 0
            s_cselect_b32 s3, s100, s{sTS + 14}
            v_mov_b32 v{vT}, s3
            s_lshl_b32 s{st0}, s{sRK}, 6
            s_add_u32 s{st0}, s{st0}, s{sSTEP}
            s_lshl_b32 s{st0}, s{st0}, 2
            s_add_u32 s{st0}, s{st0}, {WS_DBG + 0x8000}
            s_lshl_b32 s3, s{sW}, 13
            s_add_u32 s{st0}, s{st0}, s3
            s_mov_b64 exec, 1
            buffer_store_dword v{vT}, off, {S4(rWS)}, s{st0}
            s_mov_b64 exec, -1""")
    def progchk():
        prog_spin()
        if NKV == 2: A(f"s_xor_b32 s{sPG}, s{sPG}, 4096")
        A(prog_ld(vProg)); steplog()
    def odd(n):
        l = A.lab()
        A(f"s_bitcmp1_b32 s{sW}, 0\ns_cbranch_scc0 {l}"); delay(n); A(f"{l}:")
    chores = {"s": lambda: [A(f"v_cndmask_b32 v{SEL + i}, 0, v{vSel}, s[{sMSK + 2 * i}:{sMSK + 2 * i + 1}]") for i in range(4)] +
                           [fill_ones(A, ES, 8)],
              "p": preload, "z": zero_acc, "A": lambda: A(rl), "e": lambda: delay(4), "d": lambda: delay(8), "D": lambda: delay(16),
              "k": progchk, "o": lambda: odd(8), "O": lambda: odd(16)}
    A(f"s_cmp_lt_u32 s{sW}, 2\ns_cbranch_scc1 L_early")
    for ch in cfg["RED"][1]: chores[ch]()
    A("s_branch L_red0\nL_early:")
    for ch in cfg["RED"][0]: chores[ch]()
    A("L_red0:")
    spin_init(A)
    def unit():
        for x in mx(RD, 8) + [CMP, rmf(0), rmf(1)]: A(x)
        A("s_cbranch_vccz L_pub")
    A("s_mov_b64 vcc, -1\nL_red:\n" + masked(rl))
    if PROF: A(f"s_add_u32 s{sTS + 23}, s{sTS + 23}, 1")
    spin_step(A)
    A(f"s_waitcnt vmcnt({2 * cfg['RED'][0].count('A')})")
    for x in mx(RD, 8) + [CMP, rmf(0), rmf(1)]: A(x)
    A("s_cbranch_vccnz L_red")
    stamp(8)
    for r in (4, 8):
        for i in range(4): A(f"v_add_f32_dpp v{RA + i}, v{RA + i}, v{RA + i} row_ror:{r} row_mask:0xf bank_mask:0xf")
    A(f"""v_cvt_pk_bf16_f32 v{RA}, v{RA}, v{RA + 1}
    s_mov_b64 exec, {PUBX}
    v_cvt_pk_bf16_f32 v{RA + 1}, v{RA + 2}, v{RA + 3}
    buffer_store_dwordx2 {v(RA, 2)}, v{vMemSt}, {S4(rWS)}, s{sMN} offen
    buffer_store_dwordx2 {v(ES, 2)}, v{vMemSt}, {S4(rWS)}, s{sMZ} offen
    s_mov_b64 exec, -1""")
    stamp(9)
    A("s_branch L_fetch")
    A("L_ch_exit:\n" + kmst)
    timeline(A, cfg, 3, vT)
    if PROF:
        A(f"""s_waitcnt lgkmcnt(0)
        s_lshl_b32 s{st0}, s{sRK}, 2
        s_add_u32 s{st0}, s{st0}, s{sW}
        s_lshl_b32 s{st0}, s{st0}, 7
        s_add_u32 s{st0}, s{st0}, {WS_DBG}
        s_mov_b64 exec, 1""")
        for i, r in enumerate([sTS + 2 * i for i in range(11)] + [sTS + 23, 2, sTS + 22]): A(f"v_mov_b32 v0, s{r}\nbuffer_store_dword v0, v{vZ}, {S4(rWS)}, s{st0} offen offset:{4 * i}")
    A("s_endpgm")
```

```python
from common import *
from ln import *

def role_ffn(A, cfg):
    NF = cfg["NFFN"]
    sT, sC, sCNT, sI, sSEG, sFLG, sIN, sPW, sPW1, sB1, sB2, sROW, sL2E, st0, st1, st2 = range(56, 72)
    vLane, vOff1, vOff2, vT, vT0, vL16, vXw, vXr, vHw, vSt, vRl, vRow, vL4, vZ, t0, t1, t2, vPG, vHl, vFV = range(200, 220)
    SELA, NEG, sHX, sIB = 224, 228, 76, 78
    L_H = 36864
    S1 = cfg["S_FFN"]
    A(f"L_ffn:\ns_mov_b32 s{sCNT}, s3\nL_ffn2:\ns_mov_b32 s{sT}, s3")
    timeline(A, cfg, 0, 1)
    srd(A, rD, pX, 1 << 21)
    lane_fields(A, vLane)
    A(f"""v_lshlrev_b32 v{vL16}, 4, v{vLane}
    v_mov_b32 v{vZ}, 0
    s_lshl_b32 s{sC}, s{sT}, 5
    s_add_u32 s{sC}, s{sC}, s{sRK}
    s_cmp_ge_u32 s{sC}, 64
    s_cbranch_scc1 L_ffn_noln""")
    ln_stage(A, sC, vLane, st0, st1)
    A("L_ffn_noln:")
    row_consts(A, vLane, vRl, vRow, SELA, sHX, t0, t1, st0)
    fill_ones(A, NEG, 4)
    A(f"""
    s_lshl_b32 s{sFLG}, s{sT}, 8
    s_add_u32 s{sFLG}, s{sFLG}, {WS_FLG2}
    s_cmp_eq_u32 s{sT}, {NF}
    s_cbranch_scc1 L_ffn_w
    s_lshl_b32 s{st0}, s{sRK}, 2
    s_add_u32 s{st0}, s{st0}, s{sFLG}
    s_mov_b64 exec, 1
    buffer_store_dword v{vZ}, v{vZ}, {S4(rWS)}, s{st0} offen
    s_mov_b64 exec, -1
    s_lshl_b32 s{sIB}, s{sT}, 21
    s_lshl_b32 s{st0}, s{sRK}, 15
    s_add_u32 s{sIB}, s{sIB}, s{st0}
    s_add_u32 s{sIB}, s{sIB}, {WS_PART2}""")
    for sl in range(2):
        A(f"s_add_u32 s{sIN}, s{sIB}, {sl << 20}")
        inbox_reset(A, 7, NEG, vRl, sIN, st0)
    A("s_waitcnt vmcnt(0)\ns_barrier")
    timeline(A, cfg, 1, t0)
    signal_done(A, t0, t1)
    if "ffn" not in cfg["ENABLE"]:
        A("L_ffn_w:\ns_endpgm"); return
    A("L_ffn_w:")
    srd(A, rA, pW1, 512 * 3584); srd(A, rB, pW3, 512 * 3584); srd(A, rC, pW2, 1792 * 1024); srd(A, rD, pOUT, 1 << 21)
    A(f"""v_lshrrev_b32 v{t0}, 2, v{vLane}
    v_mul_u32_u24 v{t0}, 1088, v{t0}
    v_and_b32 v{t1}, 3, v{vLane}
    v_mul_u32_u24 v{t1}, 272, v{t1}
    s_lshr_b32 s{st0}, s{sW}, 1
    s_mul_i32 s{st0}, s{st0}, 17408
    s_and_b32 s{st1}, s{sW}, 1
    s_lshl_b32 s{st2}, s{st1}, 7
    s_add_u32 s{st0}, s{st0}, s{st2}
    v_add3_u32 v{vXw}, v{t0}, v{t1}, s{st0}
    v_and_b32 v{t0}, 15, v{vLane}
    v_lshrrev_b32 v{t1}, 4, v{vLane}
    v_mul_u32_u24 v{t2}, 272, v{t1}
    v_lshl_add_u32 v{vXr}, v{t0}, 4, v{t2}
    s_lshr_b32 s{st0}, s{sW}, 1
    s_lshl_b32 s{st0}, s{st0}, 10
    s_lshl_b32 s{st1}, s{st1}, 3
    s_add_u32 s{st0}, s{st0}, s{st1}
    v_add_u32 v{vHw}, s{st0}, v{vL16}
    s_lshl_b32 s{st0}, s{sW}, 8
    v_lshlrev_b32 v{t2}, 4, v{t1}
    v_lshl_or_b32 v{t2}, v{t0}, 15, v{t2}
    v_add_u32 v{vSt}, s{st0}, v{t2}
    s_mov_b32 s{sL2E}, 0xbfb8aa3b""")
    A(f"""v_and_b32 v{vL4}, 31, v{vLane}
    v_lshlrev_b32 v{vPG}, 7, v{vL4}
    v_and_b32 v{vL4}, 3, v{vLane}
    v_lshlrev_b32 v{vL4}, 2, v{vL4}
    v_add_u32 v{vL4}, 112, v{vL4}
    s_lshr_b32 s{st0}, s{sW}, 1
    s_lshl_b32 s{st1}, s{st0}, 3
    v_add_u32 v{vHl}, s{st1}, v{vL16}
    s_lshl_b32 s{st1}, s{st0}, 9
    v_add_u32 v{vRow}, s{st1}, v{vRow}
    s_mov_b32 s{sI}, 0
    s_mov_b32 s{sSEG}, s{sCNT}
    s_cmp_ge_u32 s{sRK}, 28
    s_cbranch_scc1 L_ffn_go""")
    dma_col(A, t2, vLane, t0, t1, st0)
    rows_out(A, vOff2, t2, vLane, t0, st0, st1)
    A(f"""s_and_b32 s{st0}, s{sW}, 1
    s_lshl_b32 s{st0}, s{st0}, 8
    s_lshr_b32 s{st1}, s{sW}, 1
    s_lshl_b32 s{st1}, s{st1}, 2
    s_add_u32 s{st0}, s{st0}, s{st1}
    v_lshrrev_b32 v{t0}, 4, v{vLane}
    v_add_u32 v{t0}, s{st0}, v{t0}
    v_lshrrev_b32 v{t1}, 7, v{t2}
    v_lshl_add_u32 v{t0}, v{t1}, 6, v{t0}
    v_mul_u32_u24 v{t0}, 3584, v{t0}
    v_and_b32 v{t2}, 127, v{t2}
    v_add_u32 v{vOff1}, v{t0}, v{t2}
    s_lshl_b32 s{sB1}, s{sRK}, 7
    s_lshl_b32 s{sB2}, s{sRK}, 16""")
    tr_base(A, vT, vLane, t0, t1)
    A(f"s_lshl_b32 s{st0}, s{sW}, 5\nv_xor_b32 v{vT0}, s{st0}, v{vT}")
    chunks = []
    for SC in range(4):
        for m, r in ((0, rA), (1, rB)):
            def ex(A, base, m=m, SC=SC):
                A(f"v_add_u32 v{t0}, {base}, v{vT0}\nv_xor_b32 v{t1}, 128, v{t0}")
                tr_tile(A, "a", 64 * m + 16 * SC, t0); tr_tile(A, "a", 64 * m + 16 * SC + 8, t1)
            chunks.append(dict(srd=r, voff=vOff1, sbase=sB1, offs=[(8 * (i & 1) + 32 * (i >> 1) + 16 * (SC & 1) + 128 * (SC >> 1)) * 3584 for i in range(4)], extract=ex))
    for w in range(4):
        chunks.append(dict(srd=rC, voff=vOff2, sbase=sB2, offs=[r * 1024 + w * 256 for r in ROWS_OUT],
                           extract=lambda A, base, w=w: extract8(A, base, w, vT, t0, t1, lambda t: 128 + 8 * t)))
    load_chunks(A, chunks, 10, cfg["FFN_DEPTH"], 0, st0, st1)
    A("L_ffn_go:")
    timeline(A, cfg, 2, t0)
    wait_done(A, t0, t1, st0)
    A("s_barrier")

    XR, vPV = 160, 192
    sPA, sPN, sXA, sXB = range(72, 76)
    def next_addr():
        if cfg["NKV"] == 2: A(f"s_and_b32 s{sPA}, s{sSEG}, 1\ns_lshl_b32 s{sPA}, s{sPA}, 12\ns_add_u32 s{sPA}, s{sPA}, {WS_PROG}\ns_lshr_b32 s{sPN}, s{sSEG}, 1\ns_add_u32 s{sPN}, s{sPN}, 1")
        else: A(f"s_mov_b32 s{sPA}, {WS_PROG}\ns_add_u32 s{sPN}, s{sSEG}, 1")
        A(f"""s_lshl_b32 s{sXA}, s{sSEG}, 15
        s_lshl_b32 s{sXB}, s{sW}, 13
        s_add_u32 s{sXA}, s{sXA}, s{sXB}
        s_add_u32 s{sXA}, s{sXA}, {WS_XN2}
        s_add_u32 s{sXB}, s{sXA}, 4096""")
    xld = [f"buffer_load_dwordx4 {v(XR + 4 * i, 4)}, v{vL16}, {S4(rWS)}, s{sXA if i < 4 else sXB} offen offset:{(i % 4) * 1024} sc1" for i in range(8)]
    next_addr()
    wait_flags(A, vPV, vPG, sPA, sPN)
    fill_ones(A, XR, 32)
    A("L_ffn_loop:")
    A(f"""s_and_b32 s{st0}, s{sI}, 1
    s_lshl_b32 s{st0}, s{st0}, 20
    s_lshl_b32 s{st1}, s{sT}, 21
    s_add_u32 s{st0}, s{st0}, s{st1}
    s_add_u32 s{st0}, s{st0}, {WS_PART2}
    s_lshl_b32 s{st1}, s{sRK}, 10
    s_add_u32 s{sPW}, s{st0}, s{st1}
    s_add_u32 s{sPW1}, s{sPW}, {16 * 32768}
    s_lshl_b32 s{st1}, s{sRK}, 15
    s_add_u32 s{sIN}, s{st0}, s{st1}
    s_lshl_b32 s{sROW}, s{sSEG}, 15
    s_add_u32 s{sI}, s{sI}, 1
    s_cmp_ge_u32 s{sSEG}, {S1}
    s_addc_u32 s{sSEG}, s{sSEG}, {NF}
    s_cmp_ge_u32 s{sRK}, 28
    s_cbranch_scc1 L_ffn_idle""")
    spin_init(A)
    A("s_branch L_ffn_x1\nL_ffn_x:")
    if cfg["SLEEP"]: A(f"s_sleep {cfg['SLEEP']}")
    for x in xld: A(x)
    spin_step(A)
    A("L_ffn_x1:")
    for i in range(8):
        A(f"s_waitcnt vmcnt({7 - i})\nds_write_b128 v{vXw}, {v(XR + 4 * i, 4)} offset:{16 * i}")
        for k in range(2): A(f"v_max3_u32 v{t0}, v{t0 if i or k else XR}, v{XR + 4 * i + 2 * k}, v{XR + 4 * i + 2 * k + 1}")
    A(f"v_cmp_eq_u32 vcc, -1, v{t0}\ns_cbranch_vccnz L_ffn_x\ns_waitcnt lgkmcnt(0)\ns_barrier")
    timeline(A, cfg, 72, t0)
    NB = 4
    xf = lambda ks, a_: 16 + ((ks % NB) * 2 + a_) * 4
    def rd(ks):
        for a_ in range(2): A(f"ds_read_b128 {v(xf(ks, a_), 4)}, v{vXr} offset:{a_ * 17408 + ks * 1088}")
    rd(0); rd(1); rd(2)
    next_addr()
    A(f"s_cmp_gt_u32 s{sSEG}, {NSEG - 1}\ns_cselect_b32 s{sPN}, 0, s{sPN}\nbuffer_load_dword v{vPV}, v{vPG}, {S4(rWS)}, s{sPA} offen sc1")
    A(f"s_sub_u32 s{st2}, s{sI}, 2\ns_max_i32 s{st2}, s{st2}, 0\nbuffer_load_dword v{vFV}, v{vL4}, {S4(rWS)}, s{sFLG} offen sc1")
    for ks in range(16):
        A(f"s_waitcnt lgkmcnt({min(4, 2 * (15 - ks))})")
        for k, (a_, m) in enumerate(((0, 0), (0, 1), (1, 0), (1, 1))):
            c = (2 * m + a_) * 4
            A(f"{MF} {v(c, 4)}, {a(m * 64 + 4 * ks, 4)}, {v(xf(ks, a_), 4)}, {v(c, 4) if ks else 0}")
            if k == 0 and ks + 3 < 16: rd(ks + 3)
    timeline(A, cfg, 75, t0)
    E = 16
    for a_ in range(2):
        g, u = 4 * a_, 8 + 4 * a_
        for j in range(4): A(f"v_mul_f32 v{E + j}, s{sL2E}, v{g + j}\nv_exp_f32 v{E + j}, v{E + j}")
        for j in range(4): A(f"v_mul_f32 v{u + j}, v{u + j}, v{g + j}\nv_add_f32 v{E + j}, 1.0, v{E + j}\nv_rcp_f32 v{E + j}, v{E + j}")
        for j in range(4): A(f"v_mul_f32 v{u + j}, v{u + j}, v{E + j}")
        pack(A, 24 + 2 * a_, u, 2)
        A(f"ds_write_b64 v{vHw}, {v(24 + 2 * a_, 2)} offset:{L_H + 2048 * a_}")
    A(f"s_waitcnt vmcnt(0)\nv_cmp_gt_u32 vcc, s{sPN}, v{vPV}\ns_cbranch_vccz L_ffn_pok")
    wait_flags(A, vPV, vPG, sPA, sPN)
    A(f"L_ffn_pok:\nv_cmp_gt_u32 vcc, s{st2}, v{vFV}\ns_cbranch_vccz L_ffn_fok")
    wait_flags(A, vFV, vL4, sFLG, st2)
    A("L_ffn_fok:\ns_waitcnt lgkmcnt(0)\ns_barrier")
    timeline(A, cfg, 76, t0)
    HF, ACC, OUT = 32, 64, 16
    for i in range(4): A(f"ds_read_b128 {v(HF + 4 * i, 4)}, v{vL16} offset:{L_H + 1024 * i}")
    A("s_waitcnt lgkmcnt(0)")
    proj_out(A, 2, lambda t, ks: 128 + 8 * t + 4 * ks, HF, ACC, OUT, vSt, sPW)
    timeline(A, cfg, 77, t0)
    A("s_branch L_ffn_row\nL_ffn_idle:")
    next_addr()
    A(f"s_cmp_gt_u32 s{sSEG}, {NSEG - 1}\ns_cselect_b32 s{sPN}, 0, s{sPN}")
    wait_flags(A, vPV, vPG, sPA, sPN)
    if cfg["SLEEP"]:
        pass
    D, R, X, H = 0, 128, 136, 144
    A(f"""L_ffn_row:
    s_lshl_b32 s{st0}, s{sRK}, 10
    s_add_u32 s{sROW}, s{sROW}, s{st0}
    s_add_u32 s{st1}, s{sROW}, {WS_HB}""")
    hld = f"buffer_load_dwordx2 {v(H, 2)}, v{vHl}, {S4(rWS)}, s{st1} offen sc1"
    spin_init(A)
    A("s_branch L_ffn_h0\nL_ffn_h:")
    if cfg["SLEEP"]: A(f"s_sleep {cfg['SLEEP']}")
    A(f"""L_ffn_h0:
    {hld}""")
    A(f"s_cmp_lt_u32 s{sRK}, 28\ns_cbranch_scc1 L_ffn_h1")
    spin_step(A)
    A(f"s_waitcnt vmcnt(0)\nv_max_u32 v{t0}, v{H}, v{H + 1}\nv_cmp_eq_u32 vcc, -1, v{t0}\ns_cbranch_vccnz L_ffn_h\nL_ffn_h1:")
    row_sum(A, 7, D, R, SELA, vRl, sIN, st0, t0)
    timeline(A, cfg, 79, t0)
    A(f"s_cmp_ge_u32 s{sRK}, 28\ns_cbranch_scc1 L_ffn_nox\ns_cmp_ge_u32 s{sSEG}, {NSEG}\ns_cbranch_scc1 L_ffn_nox")
    for x in xld: A(x)
    A("L_ffn_nox:")
    spin_init(A)
    A(f"L_ffn_h2:\nv_max_u32 v{t0}, v{H}, v{H + 1}\nv_cmp_eq_u32 vcc, -1, v{t0}\ns_cbranch_vccz L_ffn_hok\n{hld}")
    spin_step(A)
    A("s_waitcnt vmcnt(0)\ns_branch L_ffn_h2\nL_ffn_hok:")
    unpack(A, X, H, 2)
    pack(A, H, R, 2); unpack(A, R, H, 2)
    for i in range(4): A(f"v_add_f32 v{R + i}, v{R + i}, v{X + i}")
    pack(A, H, R, 2)
    A(f"s_mov_b64 exec, s[{sHX}:{sHX + 1}]\nbuffer_store_dwordx2 {v(H, 2)}, v{vRow}, {S4(rD)}, s{sROW} offen\ns_mov_b64 exec, -1")
    inbox_reset(A, 7, NEG, vRl, sIN, st0)
    A(f"""s_cmp_lt_u32 s{sRK}, 28
    s_cbranch_scc1 L_ffn_next
    v_mov_b32 v{t0}, s{sI}
    s_lshl_b32 s{st0}, s{sRK}, 2
    s_add_u32 s{st0}, s{st0}, s{sFLG}
    s_waitcnt vmcnt(0)
    s_barrier
    s_mov_b64 exec, 1
    buffer_store_dword v{t0}, v{vZ}, {S4(rWS)}, s{st0} offen
    s_mov_b64 exec, -1
    L_ffn_next:""")
    timeline(A, cfg, 7, t0, sI)
    A(f"""s_cmp_lt_u32 s{sSEG}, {NSEG}
    s_cbranch_scc1 L_ffn_loop
    s_endpgm""")
```

```python
from common import *

def role_kv(A, cfg):
    NKV = cfg["NKV"]
    sT, sCNT, sI, sSEG, sHB, sXB, sKVO, sPROG, st0, st1, st2, sCL = range(56, 68)
    vLane, vOff, vT0, vT1, vL16, vXr, t0, t1, t2 = 100, 101, 102, 103, 104, 105, 106, 107, 108
    A(f"L_kv:\ns_mov_b32 s{sT}, s3")
    timeline(A, cfg, 0, 1)
    srd(A, rA, pWK, 1 << 22); srd(A, rB, pWV, 1 << 22)
    lane_fields(A, vLane)
    A(f"""s_lshl_b32 s{sPROG}, s{sT}, 5
    s_add_u32 s{sPROG}, s{sPROG}, s{sRK}
    s_lshl_b32 s{sPROG}, s{sPROG}, 7
    s_add_u32 s{sPROG}, s{sPROG}, {WS_PROG}
    v_mov_b32 v{t2}, 0
    s_mov_b64 exec, 1
    buffer_store_dword v{t2}, v{t2}, {S4(rWS)}, s{sPROG} offen sc1
    s_mov_b64 exec, -1""")
    conv = NKV == 2 and min(cfg["S_QO"], cfg["S_FFN"]) < NSEG
    if conv:
        assert (cfg["S_QO"] % cfg["NQO"] == 0 or cfg["S_QO"] >= NSEG) and cfg["S_FFN"] % cfg["NFFN"] == 0
        fill_ones(A, 80, 4)
        if cfg["S_QO"] >= NSEG: A(f"s_cmp_eq_u32 s{sT}, 0\ns_cbranch_scc1 L_kv_nc")
        A(f"""s_mov_b32 s{st0}, {WS_PART2 + (cfg['NFFN'] << 21)}
        s_cmp_eq_u32 s{sT}, 0
        s_cselect_b32 s{st0}, {WS_PART1 + (cfg['NQO'] << 21)}, s{st0}
        s_lshl_b32 s{st1}, s{sRK}, 15
        s_add_u32 s{st0}, s{st0}, s{st1}
        s_lshl_b32 s{st1}, s{sW}, 13
        s_add_u32 s{st0}, s{st0}, s{st1}
        v_lshlrev_b32 v{vL16}, 4, v{vLane}""")
        clear_region(A, vL16, 80, st0, 8, "", st1)
        A(f"s_add_u32 s{st0}, s{st0}, {1 << 20}")
        clear_region(A, vL16, 80, st0, 8, "", st1)
        A(f"""s_lshl_b32 s{st0}, s{sRK}, 2
        s_add_u32 s{st0}, s{st0}, {WS_FLG2 + (cfg['NFFN'] << 8)}
        s_cmp_eq_u32 s{sT}, 0
        s_cselect_b32 s{st0}, {WS_SIZE}, s{st0}
        s_mov_b64 exec, 1
        buffer_store_dword v{t2}, v{t2}, {S4(rWS)}, s{st0} offen
        s_mov_b64 exec, -1
        L_kv_nc:""")
    dma_col(A, vOff, vLane, t0, t1, st0)
    A(f"""v_lshrrev_b32 v{t0}, 4, v{vLane}
    s_lshl_b32 s{st0}, s{sW}, 2
    v_add_u32 v{t0}, s{st0}, v{t0}
    v_lshl_add_u32 v{vOff}, v{t0}, 13, v{vOff}
    s_lshl_b32 s{sHB}, s{sRK}, 8""")
    tr_base(A, vT0, vLane, t0, t1)
    A(f"""s_lshl_b32 s{st0}, s{sW}, 6
    v_xor_b32 v{vT0}, s{st0}, v{vT0}
    v_lshlrev_b32 v{vL16}, 4, v{vLane}""")
    chunks = []
    for C in range(8):
        for m, r in ((0, rA), (1, rB)):
            def ex(A, base, m=m, C=C):
                A(f"v_add_u32 v{t0}, {base}, v{vT0}\nv_xor_b32 v{t1}, 32, v{t0}")
                tr_tile(A, "a", m * 128 + C * 8, t0)
                tr_tile(A, "a", m * 128 + 64 + C * 8, t1)
            chunks.append(dict(srd=r, voff=vOff, sbase=sHB, offs=[(64 * C + 16 * i) * 8192 for i in range(4)], extract=ex))
    load_chunks(A, chunks, 10, cfg["KV_DEPTH"], 0, st0, st1, hooks={0: lambda: signal_done(A, t0, t1)})
    timeline(A, cfg, 1, t0)
    wait_done(A, t0, t1, st0)
    timeline(A, cfg, 2, t0)
    A("s_barrier")
    cnt_expr = [(NSEG - t + NKV - 1) // NKV for t in range(NKV)]
    A(f"s_mov_b32 s{sCNT}, {cnt_expr[0]}")
    for t in range(1, NKV):
        if cnt_expr[t] != cnt_expr[0]: A(f"s_cmp_eq_u32 s{sT}, {t}\ns_cselect_b32 s{sCNT}, {cnt_expr[t]}, s{sCNT}")
    sXR, sXS, sO0, sO1, sO2 = range(68, 73)
    def dma_setup(segreg, bufreg):
        return [f"s_lshl_b32 s{sXS}, s{segreg}, 15", f"s_lshl_b32 s{st1}, s{sW}, 13", f"s_add_u32 s{sXS}, s{sXS}, s{st1}",
                f"s_add_u32 m0, s{bufreg}, s{st1}", f"s_add_u32 s{sXS}, s{sXS}, {WS_XN}"]
    def dma(i):
        pre = f"s_add_u32 s{sXS}, s{sXS}, 4096\ns_add_u32 m0, m0, 4096\ns_nop 0\n" if i == 4 else ""
        return pre + f"buffer_load_dwordx4 v{vL16}, {S4(rWS)}, s{sXS} offen offset:{(i % 4) * 1024} sc1 lds"
    A(f"s_mov_b32 s{sI}, 0\ns_mov_b32 s{sSEG}, s{sT}\ns_mov_b32 s{sXB}, 0")
    for k in range(2):
        if k: A(f"s_add_u32 s{st2}, s{sSEG}, {NKV}\ns_mov_b32 s{sXB}, 32768")
        for x in dma_setup(st2 if k else sSEG, sXB): A(x)
        for i in range(8): A(dma(i))
    fill_ones(A, 80, 4)
    A(f"""s_lshl_b32 s{sCL}, s{sRK}, 10
    s_and_b32 s{st0}, s{sW}, 1
    s_mul_i32 s{st0}, s{st0}, {WS_HB - WS_XN2}
    s_add_u32 s{sCL}, s{sCL}, s{st0}
    s_add_u32 s{sCL}, s{sCL}, {WS_XN2}
    s_mov_b32 s{sXR}, 0
    s_mov_b32 s{sXB}, 65536
    s_mov_b32 s{sO0}, {WS_SIZE}
    s_mov_b32 s{sO1}, {WS_SIZE}
    s_mov_b32 s{sO2}, {WS_SIZE}
    s_waitcnt vmcnt(8)""")
    outs = [f"buffer_store_dwordx4 {v(72 + 4 * a_, 4)}, v{vL16}, {S4(rWS)}, s{sO0} offen offset:{2048 + a_ * 1024} {cfg['KVST']}" for a_ in range(2)] + \
           [f"buffer_store_dwordx4 {v(64 + 4 * b, 4)}, v{vL16}, {S4(rWS)}, s{sO0} offen offset:{b * 1024} {cfg['KVST']}" for b in range(2)] + \
           [f"buffer_store_dwordx4 v[80:83], v{vL16}, {S4(rWS)}, s{x} offen sc1" for x in (sO1, sO2)]
    def publish():
        l = A.lab()
        A(f"""s_cmp_lg_u32 s{sW}, 0
        s_cbranch_scc1 {l}
        v_mov_b32 v{t0}, s{sI}
        s_mov_b64 exec, 1
        buffer_store_dword v{t0}, v{t2}, {S4(rWS)}, s{sPROG} offen sc1
        s_mov_b64 exec, -1
        {l}:""")
    A(f"L_kv_loop:\ns_barrier\nv_add_u32 v{vXr}, s{sXR}, v{vL16}")
    NB = 3
    xf = lambda ks, a_: 32 + ((ks % NB) * 2 + a_) * 4
    def rd(ks):
        for a_ in range(2): A(f"ds_read_b128 {v(xf(ks, a_), 4)}, v{vXr} offset:{(a_ * 16 + ks) * 1024}")
    rd(0); rd(1)
    A(f"s_add_u32 s{st2}, s{sSEG}, {2 * NKV}\ns_min_u32 s{st2}, s{st2}, {NSEG - 1}")
    for x in dma_setup(st2, sXB): A(x)
    vq = outs + [dma(i) for i in range(8)]
    for ks in range(16):
        if ks == 14:
            A("s_waitcnt vmcnt(8)\ns_barrier"); publish()
        A(f"s_waitcnt lgkmcnt({2 if ks < 15 else 0})")
        k = 0
        for a_ in range(2):
            for b in range(2):
                c = (2 * b + a_) * 4
                A(f"v_mfma_f32_16x16x32_bf16 {v(c, 4)}, {a(b * 64 + 4 * ks, 4)}, {v(xf(ks, a_), 4)}, {v(c, 4) if ks else 0}")
                c = 16 + (2 * b + a_) * 4
                A(f"v_mfma_f32_16x16x32_bf16 {v(c, 4)}, {v(xf(ks, a_), 4)}, {a(128 + b * 64 + 4 * ks, 4)}, {v(c, 4) if ks else 0}")
                k += 1
                if k == 1 and ks + 2 < 16: rd(ks + 2)
                if k == 3 and vq: A(vq.pop(0))
    A(f"""s_lshl_b32 s{sKVO}, s{sSEG}, 5
    s_add_u32 s{sKVO}, s{sKVO}, s{sRK}
    s_lshl_b32 s{sKVO}, s{sKVO}, 2
    s_add_u32 s{sKVO}, s{sKVO}, s{sW}
    s_lshl_b32 s{sO1}, s{sKVO}, 10
    s_add_u32 s{sO1}, s{sO1}, {WS_KM}
    s_lshl_b32 s{sO2}, s{sSEG}, 15
    s_add_u32 s{sO2}, s{sO2}, s{sCL}
    s_lshl_b32 s{sO0}, s{sKVO}, 12
    s_add_u32 s{sO0}, s{sO0}, {WS_KV}
    s_add_u32 s{sXR}, s{sXR}, 32768
    s_cmp_eq_u32 s{sXR}, 98304
    s_cselect_b32 s{sXR}, 0, s{sXR}
    s_add_u32 s{sXB}, s{sXB}, 32768
    s_cmp_eq_u32 s{sXB}, 98304
    s_cselect_b32 s{sXB}, 0, s{sXB}""")
    for a_ in range(2):
        for j in range(4): A(f"v_cvt_pk_bf16_f32 v{72 + 4 * a_ + j}, v{a_ * 4 + j}, v{(2 + a_) * 4 + j}")
    for b in range(2):
        for a_ in range(2):
            c = 16 + (2 * b + a_) * 4
            for j in range(2): A(f"v_cvt_pk_bf16_f32 v{64 + 4 * b + 2 * a_ + j}, v{c + 2 * j}, v{c + 2 * j + 1}")
    timeline(A, cfg, 8, t0, sI)
    A(f"""s_add_u32 s{sI}, s{sI}, 1
    s_add_u32 s{sSEG}, s{sSEG}, {NKV}
    s_cmp_lt_u32 s{sI}, s{sCNT}
    s_cbranch_scc1 L_kv_loop""")
    for x in outs: A(x)
    A("s_waitcnt vmcnt(0)\ns_barrier")
    publish()
    if conv and "qo" in cfg["ENABLE"]:
        A(f"""v_mov_b32 v0, v{vLane}
        s_cmp_eq_u32 s{sT}, 0
        s_cbranch_scc0 L_kv_ffn
        s_mov_b32 s3, {cfg['NQO']}
        s_mov_b32 s57, {cfg['S_QO'] + cfg['NQO']}
        {'s_branch L_qo2' if cfg['S_QO'] < NSEG else 's_endpgm'}
        L_kv_ffn:
        s_mov_b32 s3, {cfg['NFFN']}
        s_mov_b32 s58, {cfg['S_FFN'] + cfg['NFFN']}
        s_branch L_ffn2""")
    else: A("s_endpgm")
```

```python
from common import *
from ln import round_bf, ln_scale

def role_qo(A, cfg):
    NQO, NKV = cfg["NQO"], cfg["NKV"]
    sT, sCNT, sI, sSEG, sHB, sFLG, sIN, sPW, sPW1, sKM, sNEED, sPG, sC, sROW, st0, st1, st2 = range(56, 73)
    sMSK, sHX = 74, 90
    NEG, L_R = 228, 61440
    L_X, L_KV, L_Q, L_KMK, L_KMV, L_O = 0, 32768, 49152, 57344, 59392, 0
    vLane, vOffQ, vOffO, vT, vT0, vL16, vWl0, vWk, vWv, vRk, vRv, vSt, vRl, vRow, vL4, vQr, vVr, vZ, t0, t1, t2 = range(200, 221)
    SELA, ONES, PM, KMD = 224, 232, 236, 240
    SW = cfg["S_QO"]
    A(f"L_qo:\ns_mov_b32 s{sCNT}, s3\nL_qo2:\ns_mov_b32 s{sT}, s3")
    timeline(A, cfg, 0, 1)
    srd(A, rA, pWQ, 1 << 22); srd(A, rB, pWO, 1 << 22); srd(A, rD, pX, 1 << 21)
    lane_fields(A, vLane)
    A(f"""v_lshlrev_b32 v{vL16}, 4, v{vLane}
    s_lshl_b32 s{st0}, s{sW}, 12
    v_add_u32 v{vWl0}, s{st0}, v{vL16}
    v_mov_b32 v{vZ}, 0""")
    A(f"""
    s_lshl_b32 s{sFLG}, s{sT}, 21
    s_lshl_b32 s{st0}, s{sRK}, 15
    s_add_u32 s{sFLG}, s{sFLG}, s{st0}
    s_add_u32 s{sFLG}, s{sFLG}, {WS_PART1}""")
    row_consts(A, vLane, vRl, vRow, SELA, sHX, t0, t1, st0)
    fill_ones(A, NEG, 4)
    A(f"s_cmp_eq_u32 s{sT}, {NQO}\ns_cbranch_scc1 L_qo_w")
    for sl in range(2):
        A(f"s_add_u32 s{sIN}, s{sFLG}, {sl << 20}")
        inbox_reset(A, 8, NEG, vRl, sIN, st0)
    A("s_waitcnt vmcnt(0)\ns_barrier")
    signal_done(A, t0, t1)
    if "qo" not in cfg["ENABLE"]:
        A("L_qo_w:\ns_endpgm"); return
    A("L_qo_w:")
    dma_col(A, t2, vLane, t0, t1, st0)
    A(f"""v_lshrrev_b32 v{t0}, 4, v{vLane}
    s_lshl_b32 s{st0}, s{sW}, 2
    v_add_u32 v{t0}, s{st0}, v{t0}
    v_lshl_add_u32 v{vOffQ}, v{t0}, 13, v{t2}
    s_lshl_b32 s{sHB}, s{sRK}, 8
    s_lshl_b32 s{sIN}, s{sRK}, 17""")
    rows_out(A, vOffO, t2, vLane, t0, st0, st1)
    tr_base(A, vT, vLane, t0, t1)
    A(f"s_lshl_b32 s{st0}, s{sW}, 6\nv_xor_b32 v{vT0}, s{st0}, v{vT}")
    chunks = []
    for C in range(8):
        def ex(A, base, C=C):
            A(f"v_add_u32 v{t0}, {base}, v{vT0}\nv_xor_b32 v{t1}, 32, v{t0}")
            tr_tile(A, "a", C * 8, t0); tr_tile(A, "a", 64 + C * 8, t1)
        chunks.append(dict(srd=rA, voff=vOffQ, sbase=sHB, offs=[(64 * C + 16 * i) * 8192 for i in range(4)], extract=ex))
    for u in range(2):
        for w in range(4):
            chunks.append(dict(srd=rB, voff=vOffO, sbase=sIN, offs=[(64 * u + r) * 1024 + w * 256 for r in ROWS_OUT],
                               extract=lambda A, base, u=u, w=w: extract8(A, base, w, vT, t0, t1, lambda t: 128 + 16 * t + 8 * u)))
    load_chunks(A, chunks, 10, cfg["QO_DEPTH"], 0, st0, st1)
    timeline(A, cfg, 1, t0)
    A(f"""v_and_b32 v{t0}, 15, v{vLane}
    v_lshrrev_b32 v{t1}, 4, v{vLane}
    v_and_b32 v{vL4}, 31, v{vLane}
    v_lshlrev_b32 v{vL4}, 2, v{vL4}
    s_lshl_b32 s{st0}, s{sW}, 9
    v_lshlrev_b32 v{t2}, 2, v{t0}
    v_lshl_or_b32 v{t2}, v{t1}, 7, v{t2}
    v_add_u32 v{t2}, s{st0}, v{t2}
    v_add_u32 v{vWk}, {L_KMK}, v{t2}
    v_lshl_add_u32 v{vWv}, v{vLane}, 3, s{st0}
    v_add_u32 v{vWv}, {L_KMV}, v{vWv}
    v_lshrrev_b32 v{t2}, 2, v{t0}
    v_lshlrev_b32 v{t2}, 7, v{t2}
    v_and_b32 v{vRk}, 1, v{t0}
    v_lshl_or_b32 v{t2}, v{vRk}, 6, v{t2}
    v_lshl_or_b32 v{t2}, v{t1}, 4, v{t2}
    v_add_u32 v{vRk}, {L_KMK}, v{t2}
    s_lshr_b32 s{st1}, s{sW}, 1
    s_lshl_b32 s{st0}, s{st1}, 10
    s_add_u32 s{st0}, s{st0}, {L_KMV}
    v_lshl_add_u32 v{vRv}, v{vLane}, 3, s{st0}
    s_lshl_b32 s{st0}, s{st1}, 13
    s_add_u32 s{st0}, s{st0}, {L_KV}
    v_add_u32 v{vVr}, s{st0}, v{vL16}
    s_and_b32 s{st1}, s{sW}, 1
    s_lshl_b32 s{st0}, s{st1}, 12
    v_add_u32 v{vQr}, s{st0}, v{vL16}
    s_lshl_b32 s{st0}, s{sW}, 8
    v_lshlrev_b32 v{t2}, 4, v{t1}
    v_lshl_or_b32 v{t2}, v{t0}, 15, v{t2}
    v_add_u32 v{vSt}, s{st0}, v{t2}
    s_lshl_b32 s{st1}, s{st1}, 4
    v_add_u32 v{t0}, s{st1}, v{t0}
    v_lshlrev_b32 v{t1}, 2, v{t1}
    v_sub_u32 v{t0}, v{t0}, v{t1}
    s_mov_b32 s{sC}, {C_SCALE:#x}
    v_mov_b32 v{PM + 1}, 0
    v_mov_b32 v{PM + 2}, 0""")
    for i in range(8): A(f"v_cmp_le_i32 s[{sMSK + 2 * i}:{sMSK + 2 * i + 1}], {16 * (i >> 2) + (i & 3)}, v{t0}")
    for i in range(4): A(f"v_mov_b32 v{ONES + i}, 0x3f803f80")
    wait_done(A, t0, t1, st0)
    A(f"s_mov_b32 s{sI}, 0\ns_mov_b32 s{sSEG}, s{sCNT}\ns_barrier")

    A("L_qo_loop:")
    if NKV == 2: A(f"s_and_b32 s{sPG}, s{sSEG}, 1\ns_lshl_b32 s{sPG}, s{sPG}, 5\ns_add_u32 s{sPG}, s{sPG}, s{sRK}\ns_lshr_b32 s{sNEED}, s{sSEG}, 1")
    else: A(f"s_mov_b32 s{sPG}, s{sRK}\ns_mov_b32 s{sNEED}, s{sSEG}")
    A(f"""s_lshl_b32 s{sPG}, s{sPG}, 7
    s_add_u32 s{sPG}, s{sPG}, {WS_PROG}
    s_lshl_b32 s{st0}, s{sSEG}, 15
    s_lshl_b32 s{st1}, s{sW}, 13
    s_add_u32 s{st0}, s{st0}, s{st1}
    s_add_u32 m0, s{st1}, {L_X}
    s_add_u32 s{st0}, s{st0}, {WS_XN}""")
    for i in range(8):
        if i == 4: A(f"s_add_u32 s{st0}, s{st0}, 4096\ns_add_u32 m0, m0, 4096\ns_nop 0")
        A(f"buffer_load_dwordx4 v{vL16}, {S4(rWS)}, s{st0} offen offset:{(i % 4) * 1024} sc1 lds")
    spin_init(A)
    A(f"L_qo_pg:\nbuffer_load_dword v{t0}, v{vZ}, {S4(rWS)}, s{sPG} offen sc1")
    spin_step(A)
    A(f"""s_waitcnt vmcnt(0)
    v_readfirstlane_b32 s{st0}, v{t0}
    s_cmp_le_u32 s{st0}, s{sNEED}
    s_cbranch_scc1 L_qo_pg
    s_lshl_b32 s{st0}, s{sSEG}, 5
    s_add_u32 s{st0}, s{st0}, s{sRK}
    s_lshl_b32 s{sKM}, s{st0}, 2
    s_add_u32 s{sKM}, s{sKM}, s{sW}
    s_lshl_b32 s{sKM}, s{sKM}, 10
    s_add_u32 s{sKM}, s{sKM}, {WS_KM}
    s_lshl_b32 s{st0}, s{st0}, 14
    s_add_u32 s{st0}, s{st0}, {WS_KV}
    s_lshl_b32 s{st1}, s{sW}, 12
    s_add_u32 m0, s{st1}, {L_KV}
    s_barrier""")
    for i in range(4): A(f"buffer_load_dwordx4 v{vWl0}, {S4(rWS)}, s{st0} offen offset:{1024 * i} sc1 lds")
    timeline(A, cfg, 75, t0)
    NB = 3
    xf = lambda ks, a_: 16 + ((ks % NB) * 2 + a_) * 4
    def rd(ks):
        for a_ in range(2): A(f"ds_read_b128 {v(xf(ks, a_), 4)}, v{vL16} offset:{L_X + (a_ * 16 + ks) * 1024}")
    rd(0); rd(1)
    for ks in range(16):
        A(f"s_waitcnt lgkmcnt({2 if ks < 15 else 0})")
        for k, (a_, b) in enumerate(((0, 0), (0, 1), (1, 0), (1, 1))):
            c = (2 * b + a_) * 4
            A(f"{MF} {v(c, 4)}, {a(b * 64 + 4 * ks, 4)}, {v(xf(ks, a_), 4)}, {v(c, 4) if ks else 0}")
            if k == 0 and ks + 2 < 16: rd(ks + 2)
    A(f"s_lshl_b32 s{st0}, s{sW}, 10\nv_add_u32 v{t2}, s{st0}, v{vL16}")
    for a_ in range(2):
        for j in range(4): A(f"v_cvt_pk_bf16_f32 v{16 + 4 * a_ + j}, v{a_ * 4 + j}, v{(2 + a_) * 4 + j}")
        A(f"ds_write_b128 v{t2}, {v(16 + 4 * a_, 4)} offset:{L_Q + a_ * 4096}")
    A("s_waitcnt vmcnt(0) lgkmcnt(0)\ns_barrier")
    timeline(A, cfg, 76, t0)
    QF, KF, VF, MFR, VM = 32, 48, 80, 96, 112
    S0, Sm, P, O, SU = 0, 8, 12, 116, 132
    for t in range(4):
        A(f"ds_read_b128 {v(QF + 4 * t, 4)}, v{vQr} offset:{L_Q + 1024 * t}")
        for c in range(2): A(f"ds_read_b128 {v(KF + 4 * (2 * t + c), 4)}, v{vL16} offset:{L_KV + 4096 * t + 2048 + 1024 * c}")
    for t in range(4):
        A(f"s_waitcnt lgkmcnt({9 - 3 * t})")
        for c in range(2): A(f"{MF} {v(S0 + 4 * c, 4)}, {v(KF + 4 * (2 * t + c), 4)}, {v(QF + 4 * t, 4)}, {v(S0 + 4 * c, 4) if t else 0}")
    for be in range(4): A(f"ds_read_b128 {v(VF + 4 * be, 4)}, v{vVr} offset:{4096 * (be >> 1) + 1024 * (be & 1)}")
    A(f"""s_and_b32 s{st0}, s{sI}, 1
    s_lshl_b32 s{st0}, s{st0}, 20
    s_lshl_b32 s{st1}, s{sT}, 21
    s_add_u32 s{st0}, s{st0}, s{st1}
    s_add_u32 s{st0}, s{st0}, {WS_PART1}
    s_lshl_b32 s{st1}, s{sRK}, 10
    s_add_u32 s{sPW}, s{st0}, s{st1}
    s_add_u32 s{sPW1}, s{sPW}, {16 * 32768}
    s_lshl_b32 s{st1}, s{sRK}, 15
    s_add_u32 s{sIN}, s{st0}, s{st1}
    s_lshl_b32 s{sROW}, s{sSEG}, 5
    s_add_u32 s{sROW}, s{sROW}, s{sRK}
    s_lshl_b32 s{sROW}, s{sROW}, 10
    v_mov_b32 v{t2}, 0xd028965f""")
    for i in range(8): A(f"v_cndmask_b32 v{S0 + i}, v{t2}, v{S0 + i}, s[{sMSK + 2 * i}:{sMSK + 2 * i + 1}]")
    m1, m2, m3, tt = 136, 137, 138, 139
    A(f"""v_max3_f32 v{m1}, v{S0}, v{S0 + 1}, v{S0 + 2}
    v_max3_f32 v{m2}, v{S0 + 3}, v{S0 + 4}, v{S0 + 5}
    v_max3_f32 v{m3}, v{S0 + 6}, v{S0 + 7}, v{m1}""")
    for i in range(2): A(f"buffer_load_dwordx2 {v(KMD + 4 + 2 * i, 2)}, v{vRow}, {S4(rD)}, s{sROW} offen offset:{512 * i}")
    timeline(A, cfg, 72, t0)
    spin_init(A)
    A("s_branch L_qo_km1\nL_qo_km:")
    if cfg["SLEEP"]: A(f"s_sleep {cfg['SLEEP']}")
    A(f"L_qo_km1:\nbuffer_load_dwordx4 {v(KMD, 4)}, v{vL16}, {S4(rWS)}, s{sKM} offen sc1")
    spin_step(A)
    A("s_waitcnt vmcnt(0)")
    max_chk(A, t0, KMD, 4)
    A(f"""ds_write2_b32 v{vWk}, v{KMD}, v{KMD + 1} offset1:16
    ds_write_b64 v{vWv}, {v(KMD + 2, 2)}
    s_cbranch_vccnz L_qo_km
    s_waitcnt lgkmcnt(0)
    s_barrier""")
    timeline(A, cfg, 73, t0)
    for t in range(4): A(f"ds_read_b128 {v(MFR + 4 * t, 4)}, v{vRk} offset:{512 * t}")
    for i in range(2): A(f"ds_read_b64 {v(VM + 2 * i, 2)}, v{vRv} offset:{512 * i}")
    for t in range(4): A(f"s_waitcnt lgkmcnt({5 - t})\n{MF} {v(Sm, 4)}, {v(MFR + 4 * t, 4)}, {v(QF + 4 * t, 4)}, {v(Sm, 4) if t else 0}")
    A(f"""
    v_max3_f32 v{m1}, v{Sm}, v{Sm + 1}, v{m2}
    v_max_f32 v{m2}, v{m1}, v{m3}
    v_max_f32 v{tt}, v{m1}, v{m3}
    v_permlane16_swap_b32 v{m2}, v{tt}
    v_max_f32 v{m1}, v{m2}, v{tt}
    v_max_f32 v{m3}, v{m2}, v{tt}
    v_permlane32_swap_b32 v{m1}, v{m3}
    v_max_f32 v{m1}, v{m1}, v{m3}
    v_mul_f32 v{m1}, s{sC}, v{m1}""")
    for i in range(10): A(f"v_fma_f32 v{S0 + i}, v{S0 + i}, s{sC}, -v{m1}\nv_exp_f32 v{S0 + i}, v{S0 + i}")
    pack(A, P, S0, 4)
    A(f"v_cvt_pk_bf16_f32 v{PM}, v{Sm}, v{Sm + 1}\nv_cvt_pk_bf16_f32 v{PM + 3}, v{Sm}, v{Sm + 1}\ns_waitcnt lgkmcnt(0)")
    A(f"{MF} {v(SU, 4)}, {v(ONES, 4)}, {v(P, 4)}, 0")
    for be in range(4): A(f"{MF} {v(O + 4 * be, 4)}, {v(VF + 4 * be, 4)}, {v(P, 4)}, 0")
    A(f"{MF16} {v(SU, 4)}, {v(ONES, 2)}, {v(PM, 2)}, {v(SU, 4)}")
    for be in range(4): A(f"{MF16} {v(O + 4 * be, 4)}, {v(VM + 2 * (be >> 1), 2)}, {v(PM + 2 * (be & 1), 2)}, {v(O + 4 * be, 4)}")
    A(f"""v_rcp_f32 v{SU}, v{SU}
    s_lshr_b32 s{st0}, s{sW}, 1
    s_lshl_b32 s{st0}, s{st0}, 11
    v_add_u32 v{t2}, s{st0}, v{vQr}""")
    for x in range(2):
        for i in range(8): A(f"v_mul_f32 v{O + 8 * x + i}, v{O + 8 * x + i}, v{SU}")
        pack(A, 16 + 4 * x, O + 8 * x, 4)
        A(f"ds_write_b128 v{t2}, {v(16 + 4 * x, 4)} offset:{L_O + 1024 * x}")
    A("s_waitcnt lgkmcnt(0)\ns_barrier")
    timeline(A, cfg, 77, t0)
    OF, ACC, OUT = 32, 64, 16
    for i in range(8): A(f"ds_read_b128 {v(OF + 4 * i, 4)}, v{vL16} offset:{L_O + 1024 * i}")
    A("s_waitcnt lgkmcnt(0)")
    proj_out(A, 4, lambda t, ks: 128 + 16 * t + 4 * ks, OF, ACC, OUT, vSt, sPW)
    timeline(A, cfg, 78, t0)
    D, R, X, H = 0, 128, 136, 144
    row_sum(A, 8, D, R, SELA, vRl, sIN, st0, t0)
    timeline(A, cfg, 79, t0)
    A(f"""s_lshr_b32 s{st0}, s{sW}, 1
    s_lshl_b32 s{st0}, s{st0}, 10
    v_add_u32 v{t2}, s{st0}, v{vL16}
    s_add_u32 s{sI}, s{sI}, 1
    s_mov_b64 exec, s[{sHX}:{sHX + 1}]
    ds_write_b128 v{t2}, {v(R, 4)} offset:{L_R}
    s_mov_b64 exec, -1
    s_waitcnt lgkmcnt(0)
    s_barrier
    s_cmp_lg_u32 s{sW}, 0
    s_cbranch_scc1 L_qo_next
    ds_read_b128 {v(R, 4)}, v{vL16} offset:{L_R}
    ds_read_b128 {v(R + 4, 4)}, v{vL16} offset:{L_R + 1024}""")
    timeline(A, cfg, 80, t0)
    unpack(A, X, KMD + 4, 4)
    A("s_waitcnt lgkmcnt(0)")
    pack(A, H, R, 4); unpack(A, R, H, 4)
    for i in range(8): A(f"v_add_f32 v{R + i}, v{R + i}, v{X + i}")
    pack(A, H, R, 4); unpack(A, R, H, 4)
    vm, vs = 150, 151
    A(f"v_add_f32 v{vm}, v{R}, v{R + 1}")
    for i in range(2, 8): A(f"v_add_f32 v{vm}, v{vm}, v{R + i}")
    for i in range(4): A(f"v_min_u32 v{H + i}, -2, v{H + i}")
    A(f"s_add_u32 s{st0}, s{sROW}, {WS_HB}\nbuffer_store_dwordx4 {v(H, 4)}, v{vL16}, {S4(rWS)}, s{st0} offen sc1")
    wave_sum(A, vm, t0)
    A(f"v_mul_f32 v{vm}, 0x3b000000, v{vm}")
    for i in range(8): A(f"v_sub_f32 v{X + i}, v{R + i}, v{vm}")
    A(f"v_mul_f32 v{vs}, v{X}, v{X}")
    for i in range(1, 8): A(f"v_fmac_f32 v{vs}, v{X + i}, v{X + i}")
    round_bf(A, vm)
    wave_sum(A, vs, t0)
    A(f"v_mul_f32 v{vs}, 0x3b000000, v{vs}")
    ln_scale(A, vs, t0)
    for i in range(8): A(f"v_sub_f32 v{R + i}, v{R + i}, v{vm}")
    pack(A, X, R, 4); unpack(A, R, X, 4)
    for i in range(8): A(f"v_mul_f32 v{R + i}, v{R + i}, v{vs}")
    pack(A, X, R, 4)
    for i in range(4): A(f"v_min_u32 v{X + i}, -2, v{X + i}")
    A(f"s_add_u32 s{st0}, s{sROW}, {WS_XN2}\nbuffer_store_dwordx4 {v(X, 4)}, v{vL16}, {S4(rWS)}, s{st0} offen sc1")
    timeline(A, cfg, 7, t0, sI)
    A("L_qo_next:")
    inbox_reset(A, 8, NEG, vRl, sIN, st0)
    A(f"""
    s_cmp_ge_u32 s{sSEG}, {SW}
    s_addc_u32 s{sSEG}, s{sSEG}, {NQO}
    s_cmp_lt_u32 s{sSEG}, {NSEG}
    s_cbranch_scc1 L_qo_loop
    s_endpgm""")
```

```python
from asmlib import *

NAME = "sequential_preLN__memory_aug_recurrent_mem_tr__glu_gated_swiglu__prompt"
NSEG = 64
WS_XN    = 0x0000000
WS_XN2   = 0x0200000
WS_HB    = 0x0400000
WS_KM    = 0x0600000
WS_PART  = 0x0E00000
WS_MEM   = 0x0F00000
WS_PROG  = 0x0F10000
WS_PART1 = 0x1000000
WS_PART2 = 0x1800000
WS_KV    = 0x2000000
WS_DBG   = 0x4000000
WS_SIZE  = 0x10000000
DBG_DONE = 192
DBG_CH = 196
DBG_LN = 64
SPIN = 1 << 19
LDS_BYTES = 163840

sW, sRK, sX, sSPIN = 4, 5, 6, 7
pX, pMEM0, pWQ, pWK, pWV, pWO = 8, 10, 12, 14, 16, 18
pW1, pW3, pW2, pOUT, pDBG, pWS = 24, 26, 28, 30, 32, 34
rWS, rA, rB, rC, rD = 36, 40, 44, 48, 52

def srd(A, r, p, size):
    A(f"s_mov_b32 s{r}, s{p}\ns_mov_b32 s{r+1}, s{p+1}\ns_mov_b32 s{r+2}, {size:#x}\ns_mov_b32 s{r+3}, 0x20000")

def S4(r): return s(r, 4)

def spin_init(A): A(f"s_mov_b32 s{sSPIN}, {SPIN}")
def spin_step(A): A(f"s_sub_u32 s{sSPIN}, s{sSPIN}, 1\ns_cbranch_scc1 L_abort")

def signal_done(A, vt0, vt1, word=DBG_DONE):
    l = A.lab()
    A(f"""s_cmp_lg_u32 s{sW}, 0
    s_cbranch_scc1 {l}
    v_mov_b32 v{vt0}, {word}
    v_mov_b32 v{vt1}, 1
    s_mov_b64 exec, 1
    global_atomic_add v{vt0}, v{vt1}, s[{pDBG}:{pDBG+1}] sc1
    s_mov_b64 exec, -1
    {l}:""")

def wait_done(A, vt0, vt1, st, word=DBG_DONE, count=256):
    l, l2 = A.lab(), A.lab()
    spin_init(A)
    A(f"v_mov_b32 v{vt0}, {word}\ns_branch {l2}\n{l}:\ns_sleep 4\n{l2}:\nglobal_load_dword v{vt1}, v{vt0}, s[{pDBG}:{pDBG+1}] sc1")
    spin_step(A)
    A(f"s_waitcnt vmcnt(0)\nv_readfirstlane_b32 s{st}, v{vt1}\ns_cmp_lt_u32 s{st}, {count}\ns_cbranch_scc1 {l}")

def wait_done1(A, vt0, vt1, st, word=DBG_DONE, count=256):
    l = A.lab()
    A(f"s_cmp_lg_u32 s{sW}, 0\ns_cbranch_scc1 {l}")
    wait_done(A, vt0, vt1, st, word, count)
    A(f"{l}:\ns_barrier")

def lane_fields(A, vlane):
    A(f"v_and_b32 v{vlane}, 63, v0")

def dma_col(A, dst, vlane, t0, t1, st):
    A(f"""v_lshrrev_b32 v{t0}, 4, v{vlane}
    s_lshr_b32 s{st}, s{sW}, 1
    s_lshl_b32 s{st}, s{st}, 2
    v_or_b32 v{t0}, s{st}, v{t0}
    v_bfe_u32 v{t1}, v{vlane}, 1, 3
    v_xor_b32 v{t0}, v{t0}, v{t1}
    v_lshlrev_b32 v{t0}, 5, v{t0}
    v_and_b32 v{t1}, 1, v{vlane}
    v_lshl_or_b32 v{dst}, v{t1}, 4, v{t0}""")

def tr_base(A, dst, vlane, t0, t1):
    A(f"""v_lshrrev_b32 v{t0}, 4, v{vlane}
    v_bfe_u32 v{t1}, v{vlane}, 2, 2
    v_lshl_add_u32 v{dst}, v{t0}, 3, v{t1}
    v_lshlrev_b32 v{dst}, 8, v{dst}
    v_and_b32 v{t0}, 1, v{t0}
    v_lshl_or_b32 v{t0}, v{t0}, 2, v{t1}
    v_lshl_or_b32 v{dst}, v{t0}, 5, v{dst}
    v_and_b32 v{t0}, 3, v{vlane}
    v_lshl_or_b32 v{dst}, v{t0}, 3, v{dst}""")

def tr_tile(A, pfx, d, vaddr):
    for i, off in enumerate((0, 1024, 8192, 9216)):
        A(f"ds_read_b64_tr_b16 {R(pfx, d + 2*i, 2)}, v{vaddr} offset:{off}")

def load_chunks(A, chunks, nslots, depth, slot0, st0, st1, hooks=None, lds0=0, pfd=0, vdummy=None, pre=None):
    n = len(chunks)
    slot = lambda c: lds0 + ((c + slot0) % nslots) * 16384
    V = Cnt(A, "vmcnt")
    A(f"s_lshl_b32 s{st1}, s{sW}, 10")
    def pref(c):
        if pfd and c < n and chunks[c].get("pf"):
            vo, off = chunks[c]["pf"]
            A(f"s_mov_b32 s{st0}, {off}")
            V.op(f"buffer_load_dword v{vdummy}, v{vo}, {S4(chunks[c]['srd'])}, s{st0} offen")
    def issue(c):
        ch = chunks[c]
        A(f"s_lshl_b32 s{st1}, s{sW}, 10")
        for i in range(4):
            A(f"s_add_u32 m0, s{st1}, {slot(c) + i * 4096}")
            if ch.get("sbase") is not None: A(f"s_add_u32 s{st0}, s{ch['sbase']}, {ch['offs'][i]}")
            else: A(f"s_mov_b32 s{st0}, {ch['offs'][i]}")
            V.op(f"buffer_load_dwordx4 v{ch['voff']}, {S4(ch['srd'])}, s{st0} offen lds", c)
    first = min(2, depth) if pfd else depth
    for c in range(first): issue(c)
    if pfd:
        for c in range(first, depth + pfd): pref(c)
        for c in range(first, depth): issue(c)
    for c in range(n):
        if pre and c in pre: pre[c]()
        V.wait(c); A("s_barrier")
        if hooks and c in hooks: hooks[c]()
        if c + depth < n:
            pref(c + depth + pfd); issue(c + depth)
        chunks[c]["extract"](A, slot(c))
        A("s_waitcnt lgkmcnt(0)")

def fill_ones(A, r, n):
    for i in range(0, n, 2): A(f"v_mov_b64 {v(r + i, 2)}, -1")

def clear_region(A, vaddr, vones, soff, nkb, sc, stmp):
    A(f"s_mov_b32 s{stmp}, s{soff}")
    for i in range(nkb):
        if i and i % 4 == 0: A(f"s_add_u32 s{stmp}, s{stmp}, 4096")
        A(f"buffer_store_dwordx4 {v(vones, 4)}, v{vaddr}, {S4(rWS)}, s{stmp} offen offset:{(i % 4) * 1024} {sc}")

def prologue(A, roles, prof=0, pf=1, warm=None):
    if prof == -1: A("s_memrealtime s[98:99]")
    A(f"""s_cmp_ge_u32 s2, 256
    s_cbranch_scc1 L_abort
    s_load_dwordx4 s[32:35], s[0:1], 96
    s_load_dwordx16 s[8:23], s[0:1], 0
    s_load_dwordx8 s[24:31], s[0:1], 64
    s_getreg_b32 s{sX}, hwreg(HW_REG_XCC_ID, 0, 4)
    v_lshrrev_b32 v1, 6, v0
    s_lshl_b32 s3, s{sX}, 2
    s_add_u32 s3, s3, 128
    s_cmp_eq_u32 s{sX}, 0
    s_cselect_b32 s3, 0, s3
    v_readfirstlane_b32 s{sW}, v1
    v_mov_b32 v1, s3
    v_mov_b32 v2, 1
    v_mov_b32 v4, 0
    s_waitcnt lgkmcnt(0)""")
    srd(A, rWS, pWS, WS_SIZE)
    A(f"""s_cmp_lg_u32 s{sW}, 0
    s_cbranch_scc1 L_p1
    s_mov_b64 exec, 1
    global_atomic_add v3, v1, v2, s[{pDBG}:{pDBG+1}] sc0 sc1
    s_mov_b64 exec, -1
    L_p1:""")
    if pf:
        order = ["chain", "kv", "qo", "ffn", "end"]
        A("s_getpc_b64 s[40:41]\nL_pc:\ns_mov_b32 s42, 0\ns_mov_b32 s43, 0")
        for x, r in enumerate(roles):
            A(f"s_cmp_eq_u32 s{sX}, {x}\ns_cselect_b32 s42, L_{r}-L_pc, s42\ns_cselect_b32 s43, L_{order[order.index(r) + 1]}-L_{r}, s43")
        A(f"""s_add_u32 s40, s40, s42
        s_addc_u32 s41, s41, 0
        v_lshlrev_b32 v5, 7, v0
        v_cmp_gt_u32 vcc, s43, v5
        s_and_saveexec_b64 s[44:45], vcc
        s_cbranch_execz L_p2
        global_load_dword v6, v5, s[40:41]
        L_p2:
        s_mov_b64 exec, -1""")
    A(f"""s_cmp_lg_u32 s{sW}, 0
    s_cbranch_scc1 L_p3
    s_waitcnt vmcnt({1 if pf else 0})
    s_mov_b64 exec, 1
    ds_write_b32 v4, v3
    s_waitcnt lgkmcnt(0)
    s_mov_b64 exec, -1
    L_p3:""")
    if warm:
        xs = [x for x, r in enumerate(roles) if r == "qo"][:3]
        A(f"s_mov_b32 s40, s{pWQ}\ns_mov_b32 s41, s{pWQ + 1}\ns_mov_b32 s42, 0\ns_mov_b32 s43, 0x20000")
        for x, p in zip(xs, warm):
            A(f"s_cmp_eq_u32 s{sX}, {x}\ns_cselect_b32 s40, s{p}, s40\ns_cselect_b32 s41, s{p + 1}, s41\ns_cselect_b32 s42, 0x400000, s42")
        A(f"""s_cmp_eq_u32 s42, 0
        s_cbranch_scc1 L_p4
        s_bfe_u32 s3, s2, 0x50003
        s_lshl_b32 s3, s3, 12
        v_lshlrev_b32 v5, 4, v0""")
        for i in range(32): A(f"buffer_load_dwordx4 v[8:11], v5, s[40:43], s3 offen\ns_add_u32 s3, s3, 0x20000")
        A("L_p4:")
    A(f"""
    s_barrier
    ds_read_b32 v3, v4
    s_waitcnt lgkmcnt(0)
    v_readfirstlane_b32 s{sRK}, v3
    s_barrier
    s_cmp_ge_u32 s{sRK}, 32
    s_cbranch_scc1 L_abort""")
    cnt = {}
    for x, r in enumerate(roles):
        A(f"s_mov_b32 s3, {cnt.get(r, 0)}\ns_cmp_eq_u32 s{sX}, {x}\ns_cbranch_scc1 L_go_{r}")
        cnt[r] = cnt.get(r, 0) + 1
    A("L_abort:\ns_endpgm")
    for r in cnt: A(f"L_go_{r}:\ns_branch L_{r}")

def timeline(A, cfg, idx, vt, sidx=None):
    if cfg["PROF"] == -1:
        slot = cfg["_dbg"].get((cfg["_role"], idx))
        if slot is None: return
        l = A.lab()
        A(f"""s_memrealtime s[100:101]
        s_or_b32 s3, s{sRK}, s{sW}
        s_cmp_lg_u32 s3, 0
        s_cbranch_scc1 {l}
        s_waitcnt lgkmcnt(0)
        v_mov_b32 v{vt}, s100
        s_mov_b64 exec, 1
        global_store_dword v{cfg['_vz']}, v{vt}, s[{pDBG}:{pDBG + 1}] offset:{4 * slot} sc1
        s_mov_b64 exec, -1
        {l}:""")
        return
    if not cfg["PROF"]: return
    A(f"""s_memrealtime s[100:101]
    s_lshl_b32 s3, s{sX}, 5
    s_add_u32 s3, s3, s{sRK}
    s_lshl_b32 s3, s3, 2
    s_add_u32 s3, s3, s{sW}
    s_lshl_b32 s3, s3, 9
    s_add_u32 s3, s3, {WS_DBG + 0x10000 + 4 * idx}""")
    if sidx is not None: A(f"s_lshl_b32 s2, s{sidx}, 2\ns_add_u32 s3, s3, s2")
    A(f"""s_waitcnt lgkmcnt(0)
    v_mov_b32 v{vt}, s100
    s_mov_b64 exec, 1
    buffer_store_dword v{vt}, off, {S4(rWS)}, s3
    s_mov_b64 exec, -1""")

MF = "v_mfma_f32_16x16x32_bf16"
MF16 = "v_mfma_f32_16x16x16_bf16"
C_SCALE = 0x3e0293ee
WS_FLG1 = 0x0F20000
WS_FLG2 = 0x0F21000

class Cnt:
    def __init__(self, A, name): self.A, self.name, self.n, self.tags = A, name, 0, {}
    def op(self, text, tag=None):
        self.A(text); self.n += 1
        if tag is not None: self.tags[tag] = self.n
    def need(self, tag): return self.n - self.tags[tag]
    def wait(self, tag): self.A(f"s_waitcnt {self.name}({min(self.need(tag), 15 if self.name == 'lgkmcnt' else 63)})")

def seg_count(A, sreg, sT, n):
    c = [(NSEG - t + n - 1) // n for t in range(n)]
    A(f"s_mov_b32 s{sreg}, {c[0]}")
    for t in range(1, n):
        if c[t] != c[0]: A(f"s_cmp_eq_u32 s{sT}, {t}\ns_cselect_b32 s{sreg}, {c[t]}, s{sreg}")

def rows_out(A, dst, vcol, vlane, t0, st0, st1):
    A(f"""s_and_b32 s{st0}, s{sW}, 1
    s_lshl_b32 s{st0}, s{st0}, 4
    s_lshr_b32 s{st1}, s{sW}, 1
    s_lshl_b32 s{st1}, s{st1}, 2
    s_add_u32 s{st0}, s{st0}, s{st1}
    v_lshrrev_b32 v{t0}, 4, v{vlane}
    v_add_u32 v{t0}, s{st0}, v{t0}
    v_lshl_add_u32 v{dst}, v{t0}, 10, v{vcol}""")
ROWS_OUT = [32 * (i >> 1) + 8 * (i & 1) for i in range(4)]

def extract8(A, base, w, vT, t0, t1, dst, pfx="a"):
    l = A.lab()
    A(f"s_cmp_lg_u32 s{sW}, {w}\ns_cbranch_scc1 {l}\nv_add_u32 v{t0}, {base}, v{vT}")
    for t in range(8):
        A(f"v_xor_b32 v{t1}, {32 * t}, v{t0}")
        tr_tile(A, pfx, dst(t), t1)
    A(f"{l}:")

def proj_out(A, nk, wreg, F, ACC, OUT, vSt, sBase):
    ep = []
    for p in range(4):
        for a_ in range(2):
            for b in range(2):
                c = ACC + ((p * 2 + a_) * 2 + b) * 4
                for ks in range(nk):
                    A(f"{MF} {v(c, 4)}, {a(wreg(2 * p + b, ks), 4)}, {v(F + 4 * (a_ * nk + ks), 4)}, {v(c, 4) if ks else 0}")
                    if (b or ks >= 2 or nk == 2 and False) and ep: A(ep.pop(0))
                    if b and ep: A(ep.pop(0))
            while ep: A(ep.pop(0))
            c = ACC + (p * 2 + a_) * 8; o = OUT + 4 * a_
            ep = [f"v_cvt_pk_bf16_f32 v{o + i}, v{c + 2 * i}, v{c + 2 * i + 1}" for i in range(4)]
            ep.append(f"buffer_store_dwordx4 {v(o, 4)}, v{vSt}, {S4(rWS)}, s{sBase + a_} offen offset:{64 * p}")
    while ep: A(ep.pop(0))

def row_consts(A, vlane, vRl, vRow, SEL, sHX, t0, t1, st):
    A(f"""v_lshrrev_b32 v{t0}, 4, v{vlane}
    v_and_b32 v{t1}, 15, v{vlane}
    v_lshlrev_b32 v{vRl}, 4, v{t1}
    v_lshl_or_b32 v{vRl}, v{t0}, 10, v{vRl}
    s_lshl_b32 s{st}, s{sW}, 8
    v_add_u32 v{vRl}, s{st}, v{vRl}
    v_and_b32 v{vRow}, 3, v{vlane}
    v_lshlrev_b32 v{vRow}, 3, v{vRow}
    v_bfe_u32 v{t0}, v{vlane}, 4, 1
    v_lshl_or_b32 v{vRow}, v{t0}, 5, v{vRow}
    v_bfe_u32 v{t0}, v{vlane}, 2, 2
    v_lshl_or_b32 v{vRow}, v{t0}, 6, v{vRow}
    v_lshrrev_b32 v{t0}, 5, v{vlane}
    v_lshl_or_b32 v{vRow}, v{t0}, 8, v{vRow}
    v_and_b32 v{t0}, 1, v{vlane}
    v_lshlrev_b32 v{t0}, 4, v{t0}
    v_mov_b32 v{SEL}, 0x3f80
    v_lshlrev_b32 v{t0}, v{t0}, v{SEL}
    v_lshrrev_b32 v{t1}, 1, v{t1}
    s_and_b32 s{st}, s{sW}, 1
    s_lshl_b32 s{st}, s{st}, 2
    v_subrev_u32 v{t1}, s{st}, v{t1}
    s_bitcmp1_b32 s{sW}, 0
    s_cselect_b32 s{sHX}, 0, -1
    s_cselect_b32 s{sHX + 1}, -1, 0""")
    for i in range(4): A(f"v_cmp_eq_u32 vcc, {i}, v{t1}\nv_cndmask_b32 v{SEL + i}, 0, v{t0}, vcc")

def inbox_ops(n4, D, vRl, sIn, st, store):
    ops = []
    for i in range(n4):
        x = f"buffer_store_dwordx4 {v(D, 4)}" if store else f"buffer_load_dwordx4 {v(D + 4 * i, 4)}"
        ops.append((f"s_add_u32 s{st}, s{sIn}, {4096 * i}\n" if i else "") + x + f", v{vRl}, {S4(rWS)}, s{st if i else sIn} offen" + ("" if store else " sc1"))
    return ops

def row_sum(A, n4, D, ACC, SEL, vRl, sIn, st, t):
    l = A.lab()
    spin_init(A)
    A(f"s_mov_b64 vcc, -1\n{l}:\ns_mov_b64 exec, vcc")
    for x in inbox_ops(n4, D, vRl, sIn, st, False): A(x)
    A("s_mov_b64 exec, -1")
    spin_step(A)
    for i in range(n4):
        A(f"s_waitcnt vmcnt({n4 - 1 - i})\n{MF} {v(ACC, 4)}, {v(SEL, 4)}, {v(D + 4 * i, 4)}, {v(ACC, 4) if i else 0}")
        for k in range(2): A(f"v_max3_u32 v{t}, v{t if i or k else D}, v{D + 4 * i + 2 * k}, v{D + 4 * i + 2 * k + 1}")
    A(f"v_cmp_eq_u32 vcc, -1, v{t}\ns_cbranch_vccnz {l}")

def inbox_reset(A, n4, NEG, vRl, sIn, st):
    for x in inbox_ops(n4, NEG, vRl, sIn, st, True): A(x)

def wait_flags(A, vF, vL4, sFlg, sNeed):
    l = A.lab()
    spin_init(A)
    A(f"{l}:\nbuffer_load_dword v{vF}, v{vL4}, {S4(rWS)}, s{sFlg} offen sc1")
    spin_step(A)
    A(f"s_waitcnt vmcnt(0)\nv_cmp_gt_u32 vcc, s{sNeed}, v{vF}\ns_cbranch_vccnz {l}")

def wave_sum(A, r, t):
    for k in (8, 4, 2, 1): A(f"v_add_f32_dpp v{r}, v{r}, v{r} row_ror:{k} row_mask:0xf bank_mask:0xf")
    for sw in ("v_permlane16_swap_b32", "v_permlane32_swap_b32"):
        A(f"v_mov_b32 v{t}, v{r}\n{sw} v{r}, v{t}\nv_add_f32 v{r}, v{r}, v{t}")

def unpack(A, dst, src, n):
    for i in range(n): A(f"v_and_b32 v{dst + 2 * i + 1}, 0xffff0000, v{src + i}\nv_lshlrev_b32 v{dst + 2 * i}, 16, v{src + i}")
def pack(A, dst, src, n):
    for i in range(n): A(f"v_cvt_pk_bf16_f32 v{dst + i}, v{src + 2 * i}, v{src + 2 * i + 1}")

def max_chk(A, t, b, n):
    for i in range(0, n, 2): A(f"v_max3_u32 v{t}, v{t if i else b}, v{b + i}, v{b + i + 1}")
    A(f"v_cmp_eq_u32 vcc, -1, v{t}")
```

```python
from common import *

SMF = "v_smfmac_f32_16x16x64_bf16"

def role_chain(A, cfg):
    NKV, PROF = cfg["NKV"], cfg["PROF"] >= 2
    assert NKV in (1, 2)
    M, G, QA, VA, KMQ, PM = 0, 32, 64, 80, 88, 92
    vIdx, vWl0, vWl1, vKr, vVr, vMr, vPartSt, vMemSt, vQw, vQr, vOw, vOr, vSel, vProg, vT, vMw = range(96, 112)
    vZ = PM + 1
    L_KV, L_Q, L_O, L_M = 112 * 1024, 144 * 1024, 148 * 1024, 150 * 1024
    PUBX = "0x000f000f"
    sSTEP, sX0, sX1, sX2, sPW, sPR, sPZ, sMN, sMZ, sKVS, sKVL, sKM, sPG, sNEED, sC, sME, sML, cME, sWO = range(56, 75)
    cPW, cPZ, cMD, cMC, cML = 40, 41, 42, 43, 44
    sONE, sMSK = 76, 78
    sKP = 75
    sPX = 86
    st0, st1 = 100, 101
    sTS = 8
    def wreg(i): return ("a", 8 * i) if i < 32 else ("v", 112 + 8 * (i - 32))
    WQ = lambda p, b: wreg(2 * p + b)
    WK = lambda p, b: wreg(16 + p + b)
    WV = lambda p, b: wreg(24 + 2 * p + b)
    WO = lambda t, u: wreg(40 + 2 * t + u) if t < 5 else ("v", 32 + 8 * (2 * (t - 5) + u))
    W8 = lambda w: R(w[0], w[1], 8)
    def stamp(i, force=False):
        if PROF and (force or not cfg.get("QS") or i < 4): A(f"{'s_memrealtime' if cfg.get('RT') else 's_memtime'} s[{sTS + 2 * i}:{sTS + 2 * i + 1}]")
    def delay(n):
        while n > 0:
            A(f"s_nop {min(n, 16) - 1}"); n -= 16

    A("L_chain:")
    timeline(A, cfg, 0, 1)
    srd(A, rA, pWQ, 1 << 22); srd(A, rB, pWK, 1 << 22); srd(A, rC, pWV, 1 << 22); srd(A, rD, pWO, 1 << 22)
    vLane, vOffA, vOffO, vT0, t0, t1, t2, vPF, vDum = range(20, 29)
    lane_fields(A, vLane)
    dma_col(A, vOffA, vLane, t0, t1, st0)
    A(f"""v_bfe_u32 v{t0}, v{vLane}, 4, 1
    v_lshrrev_b32 v{t1}, 5, v{vLane}
    s_and_b32 s{st0}, s{sW}, 1
    s_lshr_b32 s{st1}, s{sW}, 1
    v_lshl_add_u32 v{t2}, v{t1}, 5, v{t0}
    s_lshl_b32 s3, s{st1}, 4
    v_add_u32 v{t2}, s3, v{t2}
    s_lshl_b32 s3, s{st0}, 1
    v_add_u32 v{t2}, s3, v{t2}
    v_lshl_add_u32 v{vOffO}, v{t2}, 10, v{vOffA}
    v_lshlrev_b32 v{t0}, 4, v{t0}
    v_lshl_add_u32 v{t2}, v{t1}, 2, v{t0}
    v_add_u32 v{t2}, s{sW}, v{t2}
    v_lshl_add_u32 v{vOffA}, v{t2}, 13, v{vOffA}
    s_lshl_b32 s{sKVS}, s{sRK}, 8
    s_lshl_b32 s3, s{sRK}, 1
    s_add_u32 s3, s3, s{st1}
    s_lshr_b32 s{st1}, s3, 5
    s_lshl_b32 s{st1}, s{st1}, 7
    s_and_b32 s3, s3, 31
    s_add_u32 s3, s3, s{st1}
    s_lshl_b32 s3, s3, 13
    s_lshl_b32 s{st0}, s{st0}, 12
    s_add_u32 s3, s3, s{st0}
    v_lshl_add_u32 v{vPF}, v{vLane}, 6, s3
    s_lshl_b32 s{st0}, s{sW}, 12
    v_lshl_add_u32 v{vWl0}, v{vLane}, 4, s{st0}
    s_mul_i32 s{st0}, s{sW}, 12288
    s_add_u32 s{st0}, s{st0}, 0x10000
    v_lshl_add_u32 v{vWl1}, v{vLane}, 4, s{st0}""")
    tr_base(A, vT, vLane, t0, t1)
    A(f"s_lshl_b32 s{st0}, s{sW}, 6\nv_xor_b32 v{vT0}, s{st0}, v{vT}")
    for i in range(4):
        A(f"""s_add_u32 s{st0}, s{sRK}, {i}
        s_and_b32 s{sMSK + 4 + i}, s{st0}, 3
        s_lshl_b32 s{st0}, s{sMSK + 4 + i}, 8
        s_lshl_b32 s{st1}, s{sRK}, 17
        s_add_u32 s{sMSK + i}, s{st0}, s{st1}""")

    def startup():
        fill_ones(A, 0, 4)
        A(f"""s_lshl_b32 s{sPZ}, s{sRK}, 13
        s_add_u32 s{sPZ}, s{sPZ}, {WS_PART}
        s_lshl_b32 s{st0}, s{sW}, 11
        s_sub_u32 s{sPZ}, s{sPZ}, s{st0}
        v_bfe_u32 v{t0}, v{vLane}, 4, 1
        v_and_b32 v{t1}, 3, v{vLane}
        s_and_b32 s3, s{sRK}, 6
        v_add_u32 v{t2}, s3, v{t0}
        v_lshlrev_b32 v{t2}, 10, v{t2}
        v_lshl_add_u32 v{t2}, v{t1}, 2, v{t2}
        s_lshr_b32 s{st0}, s{sRK}, 3
        s_lshl_b32 s{sX0}, s{st0}, 8
        s_lshl_b32 s{sX1}, s{sW}, 6
        s_add_u32 s{sX0}, s{sX0}, s{sX1}
        s_and_b32 s{sX2}, s{sRK}, 1
        s_lshl_b32 s{sX1}, s{sX2}, 4
        s_add_u32 s{sX0}, s{sX0}, s{sX1}
        v_add_u32 v{t2}, s{sX0}, v{t2}""")
        for i, o in enumerate((0, 32, 2, 34)): A(f"global_load_ushort v{8 + i}, v{t2}, s[{pMEM0}:{pMEM0 + 1}] offset:{o}")
    def startup2():
        A(f"s_and_b32 s3, s{sRK}, 6\ns_lshr_b32 s{st0}, s{sRK}, 3\nv_bfe_u32 v{t0}, v{vLane}, 4, 1\nv_and_b32 v{t1}, 3, v{vLane}")
        for sl in range(3):
            A(f"s_add_u32 s{sX1}, s{sPZ}, {sl * 262144}")
            for i in range(2): A(f"buffer_store_dwordx4 {v(0, 4)}, v{vWl0}, {S4(rWS)}, s{sX1} offen offset:{i * 1024}")
        A(f"""s_lshl_b32 s{sX0}, s{sW}, 1
        s_lshr_b32 s{sX1}, s{st0}, 1
        s_add_u32 s{sX0}, s{sX0}, s{sX1}
        s_lshl_b32 s{sX0}, s{sX0}, 2
        s_and_b32 s{st0}, s{st0}, 1
        s_lshl_b32 s{st0}, s{st0}, 1
        s_add_u32 s{sX0}, s{sX0}, s{st0}
        s_add_u32 s{sX0}, s{sX0}, s{sX2}
        s_lshl_b32 s{sX0}, s{sX0}, 8
        s_lshl_b32 s3, s3, 5
        s_add_u32 s{sX0}, s{sX0}, s3
        v_lshlrev_b32 v{vMemSt}, 4, v{t0}
        v_lshrrev_b32 v{t0}, 1, v{t1}
        v_lshl_or_b32 v{vMemSt}, v{t0}, 5, v{vMemSt}
        v_and_b32 v{t0}, 1, v{t1}
        v_lshl_or_b32 v{vMemSt}, v{t0}, 3, v{vMemSt}
        v_add_u32 v{vMemSt}, s{sX0}, v{vMemSt}
        s_mov_b32 s{st0}, {WS_MEM}
        v_lshl_or_b32 v8, v9, 16, v8
        v_lshl_or_b32 v9, v11, 16, v10
        v_min_u32 v8, -2, v8
        v_min_u32 v9, -2, v9
        s_mov_b64 exec, {PUBX}
        buffer_store_dwordx2 v[8:9], v{vMemSt}, {S4(rWS)}, s{st0} offen
        s_add_u32 s{st0}, s{st0}, 8192
        buffer_store_dwordx2 v[0:1], v{vMemSt}, {S4(rWS)}, s{st0} offen
        s_add_u32 s{st0}, s{st0}, 8192
        buffer_store_dwordx2 v[0:1], v{vMemSt}, {S4(rWS)}, s{st0} offen
        s_mov_b64 exec, -1""")
    startup()
    chunks = []
    def two(d0, d1):
        def ex(A, base):
            A(f"v_add_u32 v{t0}, {base}, v{vT0}\nv_xor_b32 v{t1}, 32, v{t0}")
            tr_tile(A, d0[0], d0[1], t0); tr_tile(A, d1[0], d1[1], t1)
        return ex
    def cha(r, p, ex):
        base = (256 * (p & 1) + 32 * (p >> 1)) * 8192
        chunks.append(dict(srd=r, voff=vOffA, sbase=sKVS, offs=[base + (128 * (i >> 1) + 8 * (i & 1)) * 8192 for i in range(4)], extract=ex, pf=(vPF, base)))
    for u in range(2):
        for k in range(4):
            def ex(A, base, u=u, k=k):
                l = A.lab()
                A(f"s_cmp_lg_u32 s{sW}, s{sMSK + 4 + k}\ns_cbranch_scc1 {l}\nv_add_u32 v{t0}, {base}, v{vT}")
                for t in range(8):
                    A(f"v_xor_b32 v{t1}, {32 * t}, v{t0}")
                    tr_tile(A, WO(t, u)[0], WO(t, u)[1], t1)
                A(f"{l}:")
            chunks.append(dict(srd=rD, voff=vOffO, sbase=sMSK + k, offs=[(64 * u + 4 * i) * 1024 for i in range(4)], extract=ex))
    for p in range(8): cha(rA, p, two(WQ(p, 0), WQ(p, 1)))
    for p in range(0, 8, 2): cha(rB, p, two(WK(p, 0), WK(p, 1)))
    for p in range(8): cha(rC, p, two(WV(p, 0), WV(p, 1)))
    if cfg["CH_MIX"] == 2: chunks[:] = chunks[8:] + chunks[:8]
    if cfg["CH_MIX"] == 1:
        wo, rest = chunks[:8], chunks[8:]
        chunks[:] = sum(([wo[i]] + rest[(5 * i) // 2:(5 * i + 5) // 2] for i in range(8)), [])
        assert len(chunks) == 28
    def inplace(A, base):
        two(("v", 0), ("v", 8))(A, base)
        A(f"v_add_u32 v{t0}, {base}, v{vWl0}\ns_waitcnt lgkmcnt(0)\ns_barrier")
        for i in range(4): A(f"ds_write_b128 v{t0}, {v(4 * i, 4)} offset:{1024 * i}")
    for p in range(1, 8, 2): cha(rB, p, inplace)

    def prog_addr(seg):
        A(f"s_lshl_b32 s{sPG}, s{sRK}, 7\ns_add_u32 s{sPG}, s{sPG}, {WS_PROG + (seg % NKV) * 4096}\ns_mov_b32 s{sNEED}, {seg // NKV + 1}")
    prog_ld = lambda r: f"buffer_load_dword v{r}, v{vZ}, {S4(rWS)}, s{sPG} offen sc1"
    def prog_spin():
        l, l2 = A.lab(), A.lab()
        spin_init(A)
        A(f"{l}:\nv_readfirstlane_b32 s{st0}, v{vProg}\ns_cmp_ge_u32 s{st0}, s{sNEED}\ns_cbranch_scc1 {l2}\n" + prog_ld(vProg))
        spin_step(A)
        A(f"s_waitcnt vmcnt(0)\ns_branch {l}\n{l2}:")
    def done_probe():
        A(f"v_mov_b32 v{vZ}, 0\nv_mov_b32 v16, {DBG_DONE}\nglobal_load_dword v17, v16, s[{pDBG}:{pDBG + 1}] sc1")
    def first_probe():
        l = A.lab()
        A(f"v_readfirstlane_b32 s{st0}, v17\ns_cmp_ge_u32 s{st0}, 256\ns_cbranch_scc1 {l}")
        wait_done(A, 16, 17, st0)
        A(f"{l}:")
        prog_addr(1); A(prog_ld(18)); prog_addr(0); A(prog_ld(vProg))
    def first_kv():
        prog_spin()
        A(f"""s_lshl_b32 s{sKVS}, s{sRK}, 14
        s_add_u32 s{sKVS}, s{sKVS}, {WS_KV}
        s_lshl_b32 s{sKVL}, s{sW}, 12
        s_add_u32 s{sKVL}, s{sKVL}, {L_KV}
        s_mov_b32 m0, s{sKVL}""")
        A(f"v_mov_b32 v{vProg}, v18")
        for i in range(4): A(f"buffer_load_dwordx4 v{vWl0}, {S4(rWS)}, s{sKVS} offen offset:{1024 * i} sc1 lds")
    load_chunks(A, chunks, 10, cfg["CH_DEPTH"], 2, st0, st1, hooks={0: startup2, cfg["CH_DEPTH"]: lambda: signal_done(A, t0, t1), 31: first_kv,
                       },
                pfd=cfg["CH_PF"], vdummy=vDum, pre={30 - cfg['CH_DEPTH']: done_probe, 31: first_probe,
                     **{c: (lambda i=i: timeline(A, cfg, 4 + i, t0)) for i, c in enumerate(cfg.get('TLC', ()))}})
    for i in range(12): A(f"ds_write_b128 v{vWl1}, {v(32 + 4 * i, 4)} offset:{1024 * i}")
    timeline(A, cfg, 1, t0)
    if cfg["PROF"] == -1:
        A(f"s_or_b32 s3, s{sRK}, s{sW}\ns_cmp_lg_u32 s3, 0\ns_cbranch_scc1 L_dg1\nv_mov_b32 v{t0}, s98\ns_mov_b64 exec, 1\nglobal_store_dword v{vZ}, v{t0}, s[{pDBG}:{pDBG + 1}] offset:4 sc1\ns_mov_b64 exec, -1\nL_dg1:")
    if "chain" not in cfg["ENABLE"]:
        A("s_endpgm"); return
    for i in range(8): A(f"s_mov_b32 s{sMSK + i}, {0x11111111 << (i >> 1):#x}")
    A(f"""v_and_b32 v{t0}, 15, v{vLane}
    v_lshrrev_b32 v{t1}, 4, v{vLane}
    v_mov_b32 v{vIdx}, 0x4444
    v_mov_b32 v{t2}, 0xeeee
    s_mov_b32 vcc_lo, 0xcccccccc
    s_mov_b32 vcc_hi, 0xcccccccc
    v_cndmask_b32 v{vIdx}, v{vIdx}, v{t2}, vcc
    v_mov_b32 v{vSel}, 0x3f80
    v_mov_b32 v{t2}, 1.0
    s_mov_b32 vcc_lo, 0xf0f0f0f0
    s_mov_b32 vcc_hi, 0xf0f0f0f0
    v_cndmask_b32 v{vSel}, v{vSel}, v{t2}, vcc
    s_mov_b32 s{sONE}, 0x3f803f80
    s_mov_b32 s{sONE + 1}, 0x3f803f80
    s_mov_b32 s{sC}, {C_SCALE:#x}
    v_mov_b32 v{vZ + 1}, 0
    v_lshrrev_b32 v27, 2, v{t0}
    v_and_b32 v28, 1, v{t0}
    v_lshl_or_b32 v27, v27, 1, v28
    v_bfe_u32 v28, v{t0}, 1, 1
    v_lshlrev_b32 v{vMr}, 4, v{vLane}
    v_add_u32 v{vKr}, {L_KV}, v{vMr}
    v_add_u32 v{vVr}, {L_KV}, v{vWl0}
    v_add_u32 v{vMr}, {L_M}, v{vMr}
    s_add_u32 s{st0}, s{sW}, 1
    s_cmp_eq_u32 s{sW}, 0
    s_cselect_b32 s{st0}, 0, s{st0}
    s_lshl_b32 s{st0}, s{st0}, 10
    s_add_u32 s{cMD}, s{st0}, {L_M}
    s_lshl_b32 s{st1}, s{sW}, 12
    s_sub_u32 s{cME}, {WS_MEM}, s{st1}
    s_add_u32 s{cME}, s{cME}, s{st0}
    s_mov_b32 s{sME}, s{cME}
    s_lshl_b32 s{st0}, s{sW}, 10
    s_add_u32 s{cMC}, s{st0}, {L_M + 4096}
    s_sub_u32 s{cML}, {WS_MEM + 4096}, s{st1}
    s_add_u32 s{cML}, s{cML}, s{st0}
    s_mov_b32 s{sML}, s{cML}
    s_lshl_b32 s{st0}, s{sW}, 10
    s_add_u32 s{st0}, s{st0}, {L_Q}
    v_lshlrev_b32 v{t2}, 2, v{t0}
    v_lshl_or_b32 v{t2}, v{t1}, 7, v{t2}
    v_add_u32 v{vQw}, s{st0}, v{t2}
    v_lshrrev_b32 v{t2}, 3, v{t0}
    v_lshl_or_b32 v{t2}, v{t1}, 1, v{t2}
    s_lshl_b32 s{st0}, s{sW}, 3
    v_add_u32 v{t2}, s{st0}, v{t2}
    v_and_b32 v29, 7, v{t0}
    v_lshlrev_b32 v29, 3, v29
    v_lshl_or_b32 v{vPartSt}, v{t2}, 13, v29
    v_lshlrev_b32 v{t2}, 4, v{t1}
    v_lshl_or_b32 v{t2}, v27, 6, v{t2}
    v_add_u32 v{vQr}, {L_Q}, v{t2}
    v_lshlrev_b32 v{t2}, 4, v27
    v_lshl_or_b32 v{t2}, v{t1}, 8, v{t2}
    s_lshr_b32 s{st0}, s{sW}, 1
    s_lshl_b32 s{st0}, s{st0}, 10
    s_and_b32 s{st1}, s{sW}, 1
    s_lshl_b32 s{st1}, s{st1}, 7
    s_add_u32 s{st0}, s{st0}, s{st1}
    s_add_u32 s{st0}, s{st0}, {L_O}
    v_add_u32 v{vOw}, s{st0}, v{t2}
    v_lshl_or_b32 v{t2}, v28, 7, v{t2}
    v_add_u32 v{vOr}, {L_O}, v{t2}
    s_mul_i32 s{st0}, s{sW}, 3072
    s_lshl_b32 s{sKM}, s{sRK}, 12
    s_add_u32 s{sKM}, s{sKM}, {WS_KM}
    s_sub_u32 s{sKM}, s{sKM}, s{st0}
    s_lshl_b32 s{cPW}, s{sRK}, 6
    s_add_u32 s{cPW}, s{cPW}, {WS_PART}
    s_mov_b32 s{cPZ}, s{sPZ}
    s_mov_b32 s{sKP}, {WS_SIZE}
    s_mov_b32 s{sSTEP}, 0
    s_mov_b32 s{sX0}, 0
    s_mov_b32 s{sX1}, 8192
    s_mov_b32 s{sX2}, 16384
    s_cmp_lt_u32 s{sW}, {cfg['PRE']}
    s_cselect_b64 s[{sPX}:{sPX + 1}], -1, 0""")
    prog_addr(1); prog_spin()
    if PROF: A(f"s_mov_b32 s{sTS + 23}, 0\ns_mov_b32 s{sTS + 22}, 0\ns_mov_b32 s2, 0")

    def lw(j, half):
        return f"ds_read_b128 {v(G + 8 * (j % 4) + 4 * half, 4)}, v{vWl0} offset:{(j // 2) * 16384 + (j & 1) * 2048 + half * 1024}"
    def zero_acc():
        for i in range(QA, VA + 8, 2): A(f"v_mov_b64 {v(i, 2)}, 0")
    def preload():
        for j in range(4):
            for hf in range(2): A(lw(j, hf))
    sc_part = [f"s_lshl_b32 s{st0}, s{sX0}, 5", f"s_add_u32 s{sPW}, s{st0}, s{cPW}", f"s_add_u32 s{sWO}, s{sPW}, 4096",
               f"s_add_u32 s{sPR}, s{st0}, s{cPZ}", f"s_lshl_b32 s{st0}, s{sX2}, 5", f"s_add_u32 s{sPZ}, s{st0}, s{cPZ}",
               f"s_add_u32 s{sMN}, s{sX1}, {WS_MEM}", f"s_add_u32 s{sMZ}, s{sX0}, {WS_MEM}"] + \
              ([f"s_lshr_b32 s{sNEED}, s{sSTEP}, 1", f"s_add_u32 s{sNEED}, s{sNEED}, 2"] if NKV == 2 else
               [f"s_add_u32 s{sNEED}, s{sSTEP}, 3"]) + \
              [f"s_cmp_gt_u32 s{sSTEP}, {NSEG - 3}\ns_cselect_b32 s{sNEED}, 0, s{sNEED}"]
    sc_next = [f"s_add_u32 s{sME}, s{sX1}, s{cME}", f"s_add_u32 s{sML}, s{sX1}, s{cML}",
               f"s_mov_b32 s{st0}, s{sX0}", f"s_mov_b32 s{sX0}, s{sX1}", f"s_mov_b32 s{sX1}, s{sX2}", f"s_mov_b32 s{sX2}, s{st0}",
               f"s_add_u32 s{sSTEP}, s{sSTEP}, 1"] + \
              [f"s_mov_b32 s{sKP}, s{sKM}", f"s_add_u32 s{sKM}, s{sKM}, {32 * 4096}"]
    sq = []
    def sal(n):
        for _ in range(n):
            if sq: A(sq.pop(0))
    SEL, RA, RD, ES = M, M + 4, M + 16, M + 24
    A("s_waitcnt lgkmcnt(0)")
    zero_acc(); preload()
    fill_ones(A, ES, 8)
    prog_addr(2); A(prog_ld(vProg))
    timeline(A, cfg, 2, vT)
    A("s_branch L_fetch")

    eld = "\n".join(f"buffer_load_dwordx4 {v(ES + 4 * i, 4)}, v{vWl0}, {S4(rWS)}, s{sME} offen offset:{1024 * i} sc1" for i in range(2))
    shot = lambda r, so: [f"buffer_load_dwordx4 {v(r, 4)}, v{vWl0}, {S4(rWS)}, s{so} offen sc1", f"buffer_load_dwordx4 v{vWl0}, {S4(rWS)}, s{so} offen sc1 lds"]
    bld, cld = shot(ES, sME), shot(ES + 4, sML)
    ewr = f"ds_write_b128 v{vMr}, {v(ES, 4)}\nds_write_b128 v{vMr}, {v(ES + 4, 4)} offset:1024"
    masked = lambda x: "s_mov_b64 exec, vcc\n" + x + "\ns_mov_b64 exec, -1"
    def mx(b, n): return [f"v_max3_u32 v{vT}, v{vT if i else b}, v{b + i}, v{b + i + 1}" for i in range(0, n, 2)]
    CMP = f"v_cmp_eq_u32 vcc, -1, v{vT}"
    dmakv = lambda i: f"buffer_load_dwordx4 v{vWl0}, {S4(rWS)}, s{sKVS} offen offset:{1024 * i} {cfg['KVLD']} lds" if not cfg.get("NODMA") else "s_nop 0"
    for nm, ld, r, m_in, m_out in (("b", bld, ES, cMD, cMC), ("c", cld, ES + 4, cMC, sKVL)):
        A(f"L_r{nm}:\ns_mov_b32 m0, s{m_in}")
        spin_init(A)
        A(f"L_r{nm}1:")
        if PROF: A(f"s_add_u32 s{sTS + 22}, s{sTS + 22}, {1 if nm == 'b' else 0x10000}")
        for x in ld: A(x)
        spin_step(A)
        A("s_waitcnt vmcnt(0)")
        for x in mx(r, 4) + [CMP]: A(x)
        A(f"s_cbranch_vccnz L_r{nm}1\ns_mov_b32 m0, s{m_out}\ns_branch L_k{nm}")
    A(f"L_fl:\ns_mov_b32 m0, s{cMD}\ns_cmp_eq_u32 s{sW}, 3")
    stamp(10)
    A(f"s_barrier\ns_cbranch_scc1 L_fl3\n{bld[0]}\n{bld[1]}\ns_branch L_b0\nL_fl3:\nv_mov_b64 {v(ES, 2)}, 0\nv_mov_b64 {v(ES + 2, 2)}, 0\ns_branch L_b0")
    A(f".p2align 6\nL_fetch:\ns_cmp_lg_u32 s{sW}, 0\ns_cbranch_scc1 L_fl")
    spin_init(A)
    for i, d in enumerate(cfg["FD"]):
        if i: A(eld)
        delay(d)
    A("s_mov_b64 vcc, -1\nL_er:\n" + masked(eld))
    if PROF: A("s_add_u32 s2, s2, 1")
    spin_step(A)
    A(f"s_waitcnt vmcnt({2 * (len(cfg['FD']) - 1)})")
    for x in mx(ES, 8) + [CMP]: A(x)
    A("s_cbranch_vccnz L_er")
    if not cfg["SPEC"]: A(ewr)
    stamp(10)
    if cfg["PROF"] == -1:
        A(f"s_cmp_lg_u32 s{sSTEP}, 1\ns_cbranch_scc1 L_dg2"); timeline(A, cfg, 9, vT); A("L_dg2:")
    A("s_barrier\nL_b0:")
    L = Cnt(A, "lgkmcnt")
    def mrd(p): L.op(f"ds_read_b128 {v(M + 4 * p, 4)}, v{vMr} offset:{1024 * p}", ("m", p))
    def lwr(j, hf): L.op(lw(j, hf), ("w", j))
    def kfr(kf): L.op(f"ds_read_b128 {v(M + 4 * kf, 4)}, v{vKr} offset:{(kf >> 1) * 4096 + 2048 + (kf & 1) * 1024}", ("K", kf))
    def frag(k, t):
        if k == "K": kfr(t)
        elif k == "V": L.op(f"ds_read_b128 {v(G + 4 * t, 4)}, v{vVr} offset:{1024 * t}", ("V", t))
        else: L.op(f"ds_read_b128 {v(G + 8 * t + (4 if k == 'k' else 0), 4)}, v{vQr} offset:{t * 1024 + (512 if k == 'k' else 0)}", (k, t))
    A("s_waitcnt lgkmcnt(0)\ns_barrier")
    stamp(0)
    mrd(0); mrd(1)
    A(f"s_add_u32 s{sKVS}, s{sKVS}, {32 * 16384}\ns_xor_b32 s{sKVL}, s{sKVL}, 0x3c000\ns_mov_b32 m0, s{cMC}")
    sq.extend(sc_part); sal(3)
    L.wait(("m", 0))
    stamp(1)
    NV = 4
    qk = lambda p: [(QA, p, W8(WQ(p, 0))), (QA + 4, p, W8(WQ(p, 1)))] + \
                   [(QA + 8 + 4 * b, p, W8(WK(p, b)) if p % 2 == 0 else v(G + 8 * ((p - 1 + b) % 4), 8)) for b in range(2)]
    vv = lambda p: [(VA + 4 * b, p, W8(WV(p, b))) for b in range(2)]
    seq = qk(0) + qk(1) + vv(0) + vv(1) + qk(2) + qk(3) + vv(2) + vv(3) + sum((qk(p) for p in range(4, 8)), [])
    H = 24
    gap = {}; val = {}
    def at(k, fn): gap.setdefault(k, []).append(fn)
    for k, (j, hf) in zip((6, 7, 8, 9), ((4, 0), (4, 1), (5, 0), (5, 1))): at(k + (k > 6), lambda j=j, hf=hf: lwr(j, hf))
    CS, BP, LP = cfg["CS"], cfg["BP"], cfg["LP"]
    at(CS, lambda: A(cld[0])); at(CS + 1, lambda: A(cld[1]))
    at(BP, lambda: A("s_waitcnt vmcnt(2)"))
    for i, x in enumerate(mx(ES, 4) + [CMP]): val.setdefault(BP + i // 2, []).append(x)
    def bb():
        A("s_cbranch_vccnz L_rb\nL_kb:\ns_barrier"); mrd(2); mrd(3)
        A(f"s_mov_b32 m0, s{sKVL}")
    at(11, bb)
    VS = cfg["VS"]
    NEG = G if min(VS["r0"], VS["r1"]) < 200 else QA + 12
    kmst = f"buffer_store_dwordx4 {v(KMQ, 4)}, v{vWl0}, {S4(rWS)}, s{sKM} offen sc1"
    vop = {"km": kmst if VS["km"] >= 200 else kmst.replace(f"s{sKM} ", f"s{sKP} ")}
    for i in range(4): vop[f"d{i}"] = dmakv(i)
    for i in range(2): vop[f"r{i}"] = f"buffer_store_dwordx4 {v(NEG, 4)}, v{vWl0}, {S4(rWS)}, s{sPZ} offen offset:{1024 * i}"
    def vslot(k):
        for n in sorted(VS):
            if VS[n] == k: A(vop[n])
    for n in VS:
        if VS[n] < 100 and VS[n] != LP: at(VS[n], lambda n=n: A(vop[n]))
    assert LP not in VS.values()
    if NEG == G: val[H + 8] = [f"v_mov_b64 {v(NEG, 2)}, -1"]; val[H + 9] = [f"v_mov_b64 {v(NEG + 2, 2)}, -1"]
    at(LP, lambda: A(f"s_waitcnt vmcnt({sum(x < LP for x in VS.values())})"))
    for i, x in enumerate(mx(ES + 4, 4) + [CMP]): val.setdefault(LP + i, []).append(x)
    at(LP + 4, lambda: A("s_cbranch_vccnz L_rc\nL_kc:\ns_barrier"))
    for i in range(4): at(LP + 4 + (i if i < 2 else 2 * i), lambda i=i: mrd(4 + i))
    for k, (j, hf) in zip((H + 1, H + 2, H + 5, H + 6), ((6, 0), (6, 1), (7, 0), (7, 1))): at(k, lambda j=j, hf=hf: lwr(j, hf))
    at(H + 5, lambda: L.wait(("w", 5))); at(H + 13, lambda: L.wait(("w", 7)))
    for i in range(NV): at(H + 8 + 2 * i, lambda i=i: kfr(i))
    for k, (acc, p, wop) in enumerate(seq):
        A(f"{SMF} {v(acc, 4)}, {v(M + 4 * p, 4)}, {wop}, v{vIdx}")
        g = gap.get(k, [])
        for fn in g: fn()
        n = len(g)
        if k + 1 < len(seq) and seq[k + 1][0] == QA: L.wait(("m", seq[k + 1][1])); n += 1
        if cfg.get("QS") and k in cfg["QS"]: stamp(4 + cfg["QS"].index(k), True)
        sal((2 if k in val else 3) - n)
        for x in val.get(k, []): A(x)
    assert not sq
    stamp(2)
    qd = G + 16
    def addh(d): return [f"v_add_f32 v{d}, v{d}, v{d + 2}", f"v_add_f32 v{d + 1}, v{d + 1}, v{d + 3}"]
    for x in addh(QA) + addh(QA + 4): A(x)
    A(f"v_cvt_pk_bf16_f32 v{qd}, v{QA}, v{QA + 4}\nv_cvt_pk_bf16_f32 v{qd + 1}, v{QA + 1}, v{QA + 5}")
    L.op(f"ds_write2_b32 v{vQw}, v{qd}, v{qd + 1} offset1:16")
    for x in addh(QA + 8) + addh(QA + 12): A(x)
    A(f"v_cvt_pk_bf16_f32 v{KMQ}, v{QA + 8}, v{QA + 12}\nv_cvt_pk_bf16_f32 v{KMQ + 1}, v{QA + 9}, v{QA + 13}")
    L.op(f"ds_write2_b32 v{vQw}, v{KMQ}, v{KMQ + 1} offset0:128 offset1:144", "wk")
    if cfg.get("QS") and 99 in cfg["QS"]: stamp(4 + cfg["QS"].index(99), True)
    rq = [("q", 0), ("k", 0), ("q", 1), ("k", 1), ("K", 4), ("q", 2), ("K", 5), ("k", 2), ("K", 6), ("q", 3), ("K", 7), ("k", 3), ("V", 0), ("V", 1)]
    rest = sum((vv(p) for p in range(NV, 8)), [])
    EB = cfg["EB"]
    for e, (acc, p, wop) in enumerate(rest):
        A(f"{SMF} {v(acc, 4)}, {v(M + 4 * p, 4)}, {wop}, v{vIdx}")
        if (e & 1) and p < 4: kfr(p)
        if e == EB: L.wait("wk"); A("s_barrier")
        if e > EB and rq and (rq[0][0] != "K" or rq[0][1] < p + (e & 1)): frag(*rq.pop(0))
        vslot(100 + e)
        if e < 2 and NEG != G: A(f"v_mov_b64 {v(NEG + 2 * e, 2)}, -1")
        if cfg.get("QS") and 100 + e in cfg["QS"]: stamp(4 + cfg["QS"].index(100 + e), True)
    stamp(3)
    Sm, S0, S1 = QA, QA + 4, QA + 8
    vq = addh(VA) + addh(VA + 4) + [f"v_cvt_pk_bf16_f32 v{KMQ + 2}, v{VA}, v{VA + 1}", f"v_cvt_pk_bf16_f32 v{KMQ + 3}, v{VA + 4}, v{VA + 5}"]
    zq = [f"v_mov_b64 {v(M + i, 2)}, 0" for i in range(0, 32, 2)]
    def z(n):
        for _ in range(n):
            if zq: A(zq.pop(0))
    for t in range(4):
        need = [("q", t), ("k", t), ("K", 2 * t), ("K", 2 * t + 1)]
        while any(x not in L.tags for x in need): frag(*rq.pop(0))
        L.wait(min((L.need(x), x) for x in need)[1])
        for i, (d, a_) in enumerate(((S0, M + 8 * t), (S1, M + 8 * t + 4), (Sm, G + 8 * t + 4))):
            A(f"{MF} {v(d, 4)}, {v(a_, 4)}, {v(G + 8 * t, 4)}, {v(d, 4) if t else 0}")
            e = 3 * t + i
            if rq and (rq[0][0] != "V" or e >= 2): frag(*rq.pop(0))
            if 2 <= e <= 4: A(vq[2 * (e - 2)] + "\n" + vq[2 * (e - 2) + 1])
            if e == 4: A(f"s_cmp_eq_u32 s{sSTEP}, {cfg.get('LAST', NSEG - 1)}")
            if e == 5 and not cfg.get("XL"): A("s_cbranch_scc1 L_ch_exit")
            vslot(200 + e)
            if e == 7: A(f"v_mov_b64 {v(G + 8, 2)}, s[{sONE}:{sONE + 1}]\nv_mov_b64 {v(G + 10, 2)}, s[{sONE}:{sONE + 1}]")
            if e >= 8: z(2)
    assert not rq
    stamp(4)
    if cfg.get("XL"): A(f"s_cmp_eq_u32 s{sSTEP}, {NSEG - 1}\ns_cbranch_scc1 L_ch_exit")
    m1, m2, m3, tt = G + 28, G + 29, G + 30, G + 31
    z(1)
    A(f"""v_max3_f32 v{m1}, v{S0}, v{S0 + 1}, v{S0 + 2}
    v_max3_f32 v{m2}, v{S0 + 3}, v{S1}, v{S1 + 1}
    v_max3_f32 v{m3}, v{S1 + 2}, v{S1 + 3}, v{m1}
    v_max3_f32 v{m1}, v{Sm}, v{Sm + 1}, v{m2}
    v_max_f32 v{m2}, v{m1}, v{m3}
    v_max_f32 v{tt}, v{m1}, v{m3}""")
    z(2)
    A(f"v_permlane16_swap_b32 v{m2}, v{tt}\nv_max_f32 v{m1}, v{m2}, v{tt}\nv_max_f32 v{m3}, v{m2}, v{tt}")
    z(2)
    A(f"v_permlane32_swap_b32 v{m1}, v{m3}\nv_max_f32 v{m1}, v{m1}, v{m3}\nv_mul_f32 v{m1}, s{sC}, v{m1}")
    sv = [Sm, Sm + 1] + [S0 + i for i in range(8)]
    P = G + 12
    O0, O1, SU = G + 16, G + 20, G + 24
    fm = lambda x: f"v_fma_f32 v{x}, v{x}, s{sC}, -v{m1}"
    A(fm(sv[0]))
    for i in range(10):
        if i + 1 < 10: A(fm(sv[i + 1]))
        A(f"v_exp_f32 v{sv[i]}, v{sv[i]}")
        if i == 2: A(f"v_cvt_pk_bf16_f32 v{PM}, v{Sm}, v{Sm + 1}\nv_cvt_pk_bf16_f32 v{PM + 3}, v{Sm}, v{Sm + 1}")
        if i in (4, 6, 8): A(f"v_cvt_pk_bf16_f32 v{P + (i - 4) // 2}, v{sv[i - 2]}, v{sv[i - 1]}")
        if i == 3: A(f"{MF16} {v(SU, 4)}, {v(G + 8, 2)}, {v(PM, 2)}, 0")
        if i == 5: A(f"{MF16} {v(O0, 4)}, {v(KMQ + 2, 2)}, {v(PM, 2)}, 0")
        if i == 7: A(f"{MF16} {v(O1, 4)}, {v(KMQ + 2, 2)}, {v(PM + 2, 2)}, 0")
    L.wait(("V", 1))
    A(f"v_cvt_pk_bf16_f32 v{P + 3}, v{sv[8]}, v{sv[9]}")
    stamp(5)
    z(2)
    A(f"{MF} {v(SU, 4)}, {v(G + 8, 4)}, {v(P, 4)}, {v(SU, 4)}"); z(2)
    A(f"{MF} {v(O0, 4)}, {v(G, 4)}, {v(P, 4)}, {v(O0, 4)}")
    A(f"{MF} {v(O1, 4)}, {v(G + 4, 4)}, {v(P, 4)}, {v(O1, 4)}")
    ost = lambda k: (VA, G, QA + 8, G + 24, G + 8, VA)[k]
    def owr(k, hf): L.op(f"ds_read_b128 {v(ost(k) + 4 * hf, 4)}, v{vWl1} offset:{k * 2048 + hf * 1024}", ("ow", k))
    owr(0, 0)
    A(f"v_rcp_f32 v{SU}, v{SU}")
    owr(0, 1)
    for o in (O0, O1):
        for i in range(4): A(f"v_mul_f32 v{o + i}, v{o + i}, v{SU}")
        for i in range(2): A(f"v_cvt_pk_bf16_f32 v{P + (o - O0) // 2 + i}, v{o + 2 * i}, v{o + 2 * i + 1}")
    assert not zq
    L.op(f"ds_write_b128 v{vOw}, {v(P, 4)}", "ow")
    owr(1, 0); owr(1, 1)
    L.wait("ow"); A("s_barrier")
    L.op(f"ds_read_b128 {v(QA, 4)}, v{vOr}", "o0"); L.op(f"ds_read_b128 {v(QA + 4, 4)}, v{vOr} offset:1024", "o1")
    stamp(6)
    L.wait("o0")
    OQ = G + 16
    tile = lambda t: addh(M + 4 * t) + [f"v_cvt_pk_bf16_f32 v{OQ + t}, v{M + 4 * t}, v{M + 4 * t + 1}"]
    def pstore(p): A(f"buffer_store_dwordx2 {v(OQ + 2 * p, 2)}, v{vPartSt}, {S4(rWS)}, s{sPW if p < 2 else sWO} offen offset:{2048 * (p & 1)}")
    rl = "\n".join(f"buffer_load_dwordx4 {v(RD + 4 * i, 4)}, v{vWl0}, {S4(rWS)}, s{sPR} offen offset:{1024 * i} sc1" for i in range(2))
    sq.extend(sc_next)
    for e in range(16):
        t, u = e >> 1, e & 1
        A(f"{SMF} {v(M + 4 * t, 4)}, {v(QA + 4 * u, 4)}, {W8(WO(t, u)) if t < 5 else v(ost(e - 10), 8)}, v{vIdx}")
        if e == 0: L.wait("o1")
        if e < 6: owr(2 + e // 2, e & 1)
        if e == 10: owr(5, 0); owr(5, 1)
        if e == 9: L.wait(("ow", 4))
        if e == 14: L.wait(("ow", 5))
        if e in (7, 11) or (e == 15 and cfg['PREP'] != 'c'): pstore((e - 7) // 4)
        if e >= 1: sal(1)
        if e in (1, 2): A(f"v_xor_b32 v{vKr if e == 1 else vVr}, 0x3c000, v{vKr if e == 1 else vVr}")
        if e >= 3 and (e & 1): A(tile((e - 3) // 2)[0] + "\n" + tile((e - 3) // 2)[1])
        if e >= 4 and not (e & 1): A(tile((e - 4) // 2)[2])
    assert not sq
    A(tile(6)[2])
    for i in range(0, 8, 2): A(f"v_mov_b64 {v(RD + i, 2)}, -1")
    pre = f"s_cbranch_scc1 L_nopre\n{rl}\nL_nopre:"
    A(f"s_cmp_lg_u32 s{sW}, 0")
    if cfg["PREP"] == "c": A(pre); pstore(2)
    for x in tile(7): A(x)
    if cfg["PREP"] == "a": A(pre)
    pstore(3)
    stamp(7)
    rmf = lambda i: f"{MF} {v(RA, 4)}, {v(SEL, 4)}, {v(RD + 4 * i, 4)}, {v(RA, 4) if i else 0}"
    def steplog():
        if PROF:
            A(f"""s_memrealtime s[100:101]
            s_waitcnt lgkmcnt(0)
            s_bitcmp1_b32 s{sW}, 0
            s_cselect_b32 s3, s100, s{sTS + 14}
            v_mov_b32 v{vT}, s3
            s_lshl_b32 s{st0}, s{sRK}, 6
            s_add_u32 s{st0}, s{st0}, s{sSTEP}
            s_lshl_b32 s{st0}, s{st0}, 2
            s_add_u32 s{st0}, s{st0}, {WS_DBG + 0x8000}
            s_lshl_b32 s3, s{sW}, 13
            s_add_u32 s{st0}, s{st0}, s3
            s_mov_b64 exec, 1
            buffer_store_dword v{vT}, off, {S4(rWS)}, s{st0}
            s_mov_b64 exec, -1""")
    def progchk():
        prog_spin()
        if NKV == 2: A(f"s_xor_b32 s{sPG}, s{sPG}, 4096")
        A(prog_ld(vProg)); steplog()
    def odd(n):
        l = A.lab()
        A(f"s_bitcmp1_b32 s{sW}, 0\ns_cbranch_scc0 {l}"); delay(n); A(f"{l}:")
    chores = {"s": lambda: [A(f"v_cndmask_b32 v{SEL + i}, 0, v{vSel}, s[{sMSK + 2 * i}:{sMSK + 2 * i + 1}]") for i in range(4)] +
                           [fill_ones(A, ES, 8)],
              "p": preload, "z": zero_acc, "A": lambda: A(rl), "e": lambda: delay(4), "d": lambda: delay(8), "D": lambda: delay(16),
              "k": progchk, "o": lambda: odd(8), "O": lambda: odd(16)}
    A(f"s_cbranch_scc0 L_early\ns_cmp_eq_u32 s{sW}, 1\ns_cbranch_scc1 L_mid")
    for ch in cfg["RED"][2]: chores[ch]()
    A("s_branch L_red0\nL_mid:")
    for ch in cfg["RED"][1]: chores[ch]()
    A("s_branch L_red0\nL_early:")
    for ch in cfg["RED"][0]: chores[ch]()
    if cfg["PREP"] in "ac":
        A(f"s_waitcnt vmcnt({(2 if cfg['PREP'] == 'c' else 1) + 2 * cfg['RED'][0].count('A')})")
        for x in mx(RD, 8) + [CMP, rmf(0), rmf(1)]: A(x)
        A("s_cbranch_vccz L_pub0")
    A("L_red0:")
    spin_init(A)
    def unit():
        for x in mx(RD, 8) + [CMP, rmf(0), rmf(1)]: A(x)
        A("s_cbranch_vccz L_pub")
    A("s_mov_b64 vcc, -1\nL_red:\n" + masked(rl))
    if PROF: A(f"s_add_u32 s{sTS + 23}, s{sTS + 23}, 1")
    spin_step(A)
    A(f"s_waitcnt vmcnt({2 * cfg['RED'][1].count('A')})")
    for x in mx(RD, 8) + [CMP, rmf(0), rmf(1)]: A(x)
    A("s_cbranch_vccnz L_red\ns_nop 2\nL_pub0:\ns_nop 3")
    stamp(8)
    for r in (4, 8):
        for i in range(4): A(f"v_add_f32_dpp v{RA + i}, v{RA + i}, v{RA + i} row_ror:{r} row_mask:0xf bank_mask:0xf")
    A(f"""v_cvt_pk_bf16_f32 v{RA}, v{RA}, v{RA + 1}
    s_mov_b64 exec, {PUBX}
    v_cvt_pk_bf16_f32 v{RA + 1}, v{RA + 2}, v{RA + 3}
    buffer_store_dwordx2 {v(RA, 2)}, v{vMemSt}, {S4(rWS)}, s{sMN} offen
    buffer_store_dwordx2 {v(ES, 2)}, v{vMemSt}, {S4(rWS)}, s{sMZ} offen
    s_mov_b64 exec, -1""")
    stamp(9)
    A("s_branch L_fetch")
    A("L_ch_exit:\n" + kmst)
    timeline(A, cfg, 3, vT)
    if PROF:
        A(f"""s_waitcnt lgkmcnt(0)
        s_lshl_b32 s{st0}, s{sRK}, 2
        s_add_u32 s{st0}, s{st0}, s{sW}
        s_lshl_b32 s{st0}, s{st0}, 7
        s_add_u32 s{st0}, s{st0}, {WS_DBG}
        s_mov_b64 exec, 1""")
        for i, r in enumerate([sTS + 2 * i for i in range(11)] + [sTS + 23, 2, sTS + 22]): A(f"v_mov_b32 v0, s{r}\nbuffer_store_dword v0, v{vZ}, {S4(rWS)}, s{st0} offen offset:{4 * i}")
    A("s_endpgm")
```

```python
from common import *

SMF = "v_smfmac_f32_16x16x64_bf16"

def role_chain(A, cfg):
    NKV, PROF = cfg["NKV"], cfg["PROF"] >= 2
    assert NKV in (1, 2)
    M, G, QA, VA, KMQ, PM = 0, 32, 64, 80, 88, 92
    vIdx, vWl0, vWl1, vKr, vVr, vMr, vPartSt, vMemSt, vQw, vQr, vOw, vOr, vSel, vProg, vT, vMw = range(96, 112)
    vZ = PM + 1
    L_KV, L_Q, L_O, L_M = 112 * 1024, 144 * 1024, 148 * 1024, 150 * 1024
    PUBX = "0x000f000f"
    RS = cfg["RS"]
    WS_MEM = globals()["WS_MEM"] + cfg["MEMOFF"]
    sSTEP, sX0, sX1, sX2, sPW, sPR, sPZ, sMN, sMZ, sKVS, sKVL, sKM, sPG, sNEED, sC, sME, sML, cME, sWO = range(56, 75)
    cPW, cPZ, cMD = 40, 41, 42
    sONE, sMSK = 76, 78
    sKP, sC2 = 75, 88
    sPX = 86
    st0, st1 = 100, 101
    sTS = 8
    def wreg(i): return ("a", 8 * i) if i < 32 else ("v", 112 + 8 * (i - 32))
    WQ = lambda p, b: wreg(2 * p + b)
    WK = lambda p, b: wreg(16 + p + b)
    WV = lambda p, b: wreg(24 + 2 * p + b)
    WO = lambda t, u: wreg(40 + 2 * t + u) if t < 5 else ("v", 32 + 8 * (2 * (t - 5) + u))
    W8 = lambda w: R(w[0], w[1], 8)
    def stamp(i, force=False):
        if PROF and (force or (not cfg.get("QS") or i < 4) and (not cfg.get("WS") or i >= 5)): A(f"{'s_memrealtime' if cfg.get('RT') else 's_memtime'} s[{sTS + 2 * i}:{sTS + 2 * i + 1}]")
    def delay(n):
        while n > 0:
            A(f"s_nop {min(n, 16) - 1}"); n -= 16

    A("L_chain:")
    timeline(A, cfg, 0, 1)
    srd(A, rA, pWQ, 1 << 22); srd(A, rB, pWK, 1 << 22); srd(A, rC, pWV, 1 << 22); srd(A, rD, pWO, 1 << 22)
    vLane, vOffA, vOffO, vT0, t0, t1, t2, vPF, vDum = range(20, 29)
    lane_fields(A, vLane)
    dma_col(A, vOffA, vLane, t0, t1, st0)
    A(f"""v_bfe_u32 v{t0}, v{vLane}, 4, 1
    v_lshrrev_b32 v{t1}, 5, v{vLane}
    s_and_b32 s{st0}, s{sW}, 1
    s_lshr_b32 s{st1}, s{sW}, 1
    v_lshl_add_u32 v{t2}, v{t1}, 5, v{t0}
    s_lshl_b32 s3, s{st1}, 4
    v_add_u32 v{t2}, s3, v{t2}
    s_lshl_b32 s3, s{st0}, 1
    v_add_u32 v{t2}, s3, v{t2}
    v_lshl_add_u32 v{vOffO}, v{t2}, 10, v{vOffA}
    v_lshlrev_b32 v{t0}, 4, v{t0}
    v_lshl_add_u32 v{t2}, v{t1}, 2, v{t0}
    v_add_u32 v{t2}, s{sW}, v{t2}
    v_lshl_add_u32 v{vOffA}, v{t2}, 13, v{vOffA}
    s_lshl_b32 s{sKVS}, s{sRK}, 8
    s_lshl_b32 s3, s{sRK}, 1
    s_add_u32 s3, s3, s{st1}
    s_lshr_b32 s{st1}, s3, 5
    s_lshl_b32 s{st1}, s{st1}, 7
    s_and_b32 s3, s3, 31
    s_add_u32 s3, s3, s{st1}
    s_lshl_b32 s3, s3, 13
    s_lshl_b32 s{st0}, s{st0}, 12
    s_add_u32 s3, s3, s{st0}
    v_lshl_add_u32 v{vPF}, v{vLane}, 6, s3
    s_lshl_b32 s{st0}, s{sW}, 12
    v_lshl_add_u32 v{vWl0}, v{vLane}, 4, s{st0}
    s_mul_i32 s{st0}, s{sW}, 12288
    s_add_u32 s{st0}, s{st0}, 0x10000
    v_lshl_add_u32 v{vWl1}, v{vLane}, 4, s{st0}""")
    tr_base(A, vT, vLane, t0, t1)
    A(f"s_lshl_b32 s{st0}, s{sW}, 6\nv_xor_b32 v{vT0}, s{st0}, v{vT}")
    for i in range(4):
        A(f"""s_add_u32 s{st0}, s{sRK}, {i}
        s_and_b32 s{sMSK + 4 + i}, s{st0}, 3
        s_lshl_b32 s{st0}, s{sMSK + 4 + i}, 8
        s_lshl_b32 s{st1}, s{sRK}, 17
        s_add_u32 s{sMSK + i}, s{st0}, s{st1}""")

    def startup():
        fill_ones(A, 0, 4)
        A(f"""s_mul_i32 s{sPZ}, s{sRK}, {RS}
        s_add_u32 s{sPZ}, s{sPZ}, {WS_PART}
        s_lshl_b32 s{st0}, s{sW}, 11
        s_sub_u32 s{sPZ}, s{sPZ}, s{st0}
        v_bfe_u32 v{t0}, v{vLane}, 4, 1
        v_and_b32 v{t1}, 3, v{vLane}
        s_and_b32 s3, s{sRK}, 6
        v_add_u32 v{t2}, s3, v{t0}
        v_lshlrev_b32 v{t2}, 10, v{t2}
        v_lshl_add_u32 v{t2}, v{t1}, 2, v{t2}
        s_lshr_b32 s{st0}, s{sRK}, 3
        s_lshl_b32 s{sX0}, s{st0}, 8
        s_lshl_b32 s{sX1}, s{sW}, 6
        s_add_u32 s{sX0}, s{sX0}, s{sX1}
        s_and_b32 s{sX2}, s{sRK}, 1
        s_lshl_b32 s{sX1}, s{sX2}, 4
        s_add_u32 s{sX0}, s{sX0}, s{sX1}
        v_add_u32 v{t2}, s{sX0}, v{t2}""")
        for i, o in enumerate((0, 32, 2, 34)): A(f"global_load_ushort v{8 + i}, v{t2}, s[{pMEM0}:{pMEM0 + 1}] offset:{o}")
    def startup2():
        A(f"s_and_b32 s3, s{sRK}, 6\ns_lshr_b32 s{st0}, s{sRK}, 3\nv_bfe_u32 v{t0}, v{vLane}, 4, 1\nv_and_b32 v{t1}, 3, v{vLane}")
        for sl in range(3):
            A(f"s_add_u32 s{sX1}, s{sPZ}, {sl * 8192 * 40}")
            for i in range(2): A(f"buffer_store_dwordx4 {v(0, 4)}, v{vWl0}, {S4(rWS)}, s{sX1} offen offset:{i * 1024}")
        A(f"""s_lshl_b32 s{sX0}, s{sW}, 1
        s_lshr_b32 s{sX1}, s{st0}, 1
        s_add_u32 s{sX0}, s{sX0}, s{sX1}
        s_lshl_b32 s{sX0}, s{sX0}, 2
        s_and_b32 s{st0}, s{st0}, 1
        s_lshl_b32 s{st0}, s{st0}, 1
        s_add_u32 s{sX0}, s{sX0}, s{st0}
        s_add_u32 s{sX0}, s{sX0}, s{sX2}
        s_lshl_b32 s{sX0}, s{sX0}, 8
        s_lshl_b32 s3, s3, 5
        s_add_u32 s{sX0}, s{sX0}, s3
        v_lshlrev_b32 v{vMemSt}, 4, v{t0}
        v_lshrrev_b32 v{t0}, 1, v{t1}
        v_lshl_or_b32 v{vMemSt}, v{t0}, 5, v{vMemSt}
        v_and_b32 v{t0}, 1, v{t1}
        v_lshl_or_b32 v{vMemSt}, v{t0}, 3, v{vMemSt}
        v_add_u32 v{vMemSt}, s{sX0}, v{vMemSt}
        s_mov_b32 s{st0}, {WS_MEM}
        v_lshl_or_b32 v8, v9, 16, v8
        v_lshl_or_b32 v9, v11, 16, v10
        v_min_u32 v8, -2, v8
        v_min_u32 v9, -2, v9
        s_mov_b64 exec, {PUBX}
        buffer_store_dwordx2 v[8:9], v{vMemSt}, {S4(rWS)}, s{st0} offen
        s_add_u32 s{st0}, s{st0}, 8192
        buffer_store_dwordx2 v[0:1], v{vMemSt}, {S4(rWS)}, s{st0} offen
        s_add_u32 s{st0}, s{st0}, 8192
        buffer_store_dwordx2 v[0:1], v{vMemSt}, {S4(rWS)}, s{st0} offen
        s_mov_b64 exec, -1""")
    startup()
    chunks = []
    def two(d0, d1):
        def ex(A, base):
            A(f"v_add_u32 v{t0}, {base}, v{vT0}\nv_xor_b32 v{t1}, 32, v{t0}")
            tr_tile(A, d0[0], d0[1], t0); tr_tile(A, d1[0], d1[1], t1)
        return ex
    def cha(r, p, ex):
        base = (256 * (p & 1) + 32 * (p >> 1)) * 8192
        chunks.append(dict(srd=r, voff=vOffA, sbase=sKVS, offs=[base + (128 * (i >> 1) + 8 * (i & 1)) * 8192 for i in range(4)], extract=ex, pf=(vPF, base)))
    for u in range(2):
        for k in range(4):
            def ex(A, base, u=u, k=k):
                l = A.lab()
                A(f"s_cmp_lg_u32 s{sW}, s{sMSK + 4 + k}\ns_cbranch_scc1 {l}\nv_add_u32 v{t0}, {base}, v{vT}")
                for t in range(8):
                    A(f"v_xor_b32 v{t1}, {32 * t}, v{t0}")
                    tr_tile(A, WO(t, u)[0], WO(t, u)[1], t1)
                A(f"{l}:")
            chunks.append(dict(srd=rD, voff=vOffO, sbase=sMSK + k, offs=[(64 * u + 4 * i) * 1024 for i in range(4)], extract=ex))
    for p in range(8): cha(rA, p, two(WQ(p, 0), WQ(p, 1)))
    for p in range(0, 8, 2): cha(rB, p, two(WK(p, 0), WK(p, 1)))
    for p in range(8): cha(rC, p, two(WV(p, 0), WV(p, 1)))
    if cfg["CH_MIX"] == 2: chunks[:] = chunks[8:] + chunks[:8]
    if cfg["CH_MIX"] == 1:
        wo, rest = chunks[:8], chunks[8:]
        chunks[:] = sum(([wo[i]] + rest[(5 * i) // 2:(5 * i + 5) // 2] for i in range(8)), [])
        assert len(chunks) == 28
    def inplace(A, base):
        two(("v", 0), ("v", 8))(A, base)
        A(f"v_add_u32 v{t0}, {base}, v{vWl0}\ns_waitcnt lgkmcnt(0)\ns_barrier")
        for i in range(4): A(f"ds_write_b128 v{t0}, {v(4 * i, 4)} offset:{1024 * i}")
    for p in range(1, 8, 2): cha(rB, p, inplace)

    def prog_addr(seg):
        A(f"s_lshl_b32 s{sPG}, s{sRK}, 7\ns_add_u32 s{sPG}, s{sPG}, {WS_PROG + (seg % NKV) * 4096}\ns_mov_b32 s{sNEED}, {seg // NKV + 1}")
    prog_ld = lambda r: f"buffer_load_dword v{r}, v{vZ}, {S4(rWS)}, s{sPG} offen sc1"
    def prog_spin():
        l, l2 = A.lab(), A.lab()
        spin_init(A)
        A(f"{l}:\nv_readfirstlane_b32 s{st0}, v{vProg}\ns_cmp_ge_u32 s{st0}, s{sNEED}\ns_cbranch_scc1 {l2}\n" + prog_ld(vProg))
        spin_step(A)
        A(f"s_waitcnt vmcnt(0)\ns_branch {l}\n{l2}:")
    def done_probe():
        if cfg["TLB"]: A(f"v_lshlrev_b32 v19, 21, v{vLane}\nbuffer_load_dword v19, v19, {S4(rWS)}, 0 offen")
        A(f"v_mov_b32 v{vZ}, 0\nv_mov_b32 v16, {DBG_DONE}\nglobal_load_dword v17, v16, s[{pDBG}:{pDBG + 1}] sc1")
    def first_probe():
        l = A.lab()
        A(f"v_readfirstlane_b32 s{st0}, v17\ns_cmp_ge_u32 s{st0}, 256\ns_cbranch_scc1 {l}")
        wait_done(A, 16, 17, st0)
        A(f"{l}:")
        prog_addr(1); A(prog_ld(18)); prog_addr(0); A(prog_ld(vProg))
    def first_kv():
        prog_spin()
        A(f"""s_lshl_b32 s{sKVS}, s{sRK}, 14
        s_add_u32 s{sKVS}, s{sKVS}, {WS_KV}
        s_lshl_b32 s{sKVL}, s{sW}, 12
        s_add_u32 s{sKVL}, s{sKVL}, {L_KV}
        s_mov_b32 m0, s{sKVL}""")
        A(f"v_mov_b32 v{vProg}, v18")
        for i in range(4): A(f"buffer_load_dwordx4 v{vWl0}, {S4(rWS)}, s{sKVS} offen offset:{1024 * i} sc1 lds")
    load_chunks(A, chunks, 10, cfg["CH_DEPTH"], 2, st0, st1, hooks={0: startup2, cfg["CH_DEPTH"]: lambda: signal_done(A, t0, t1), 31: first_kv,
                       **({cfg['GATE']: lambda: signal_done(A, t0, t1, DBG_CH)} if cfg['GATE'] else {}),
                       },
                pfd=cfg["CH_PF"], vdummy=vDum, pre={30 - cfg['CH_DEPTH']: done_probe, 31: first_probe,
                     **{c: (lambda i=i: timeline(A, cfg, 4 + i, t0)) for i, c in enumerate(cfg.get('TLC', ()))}})
    for i in range(12): A(f"ds_write_b128 v{vWl1}, {v(32 + 4 * i, 4)} offset:{1024 * i}")
    timeline(A, cfg, 1, t0)
    if cfg["PROF"] == -1:
        A(f"s_or_b32 s3, s{sRK}, s{sW}\ns_cmp_lg_u32 s3, 0\ns_cbranch_scc1 L_dg1\nv_mov_b32 v{t0}, s98\ns_mov_b64 exec, 1\nglobal_store_dword v{vZ}, v{t0}, s[{pDBG}:{pDBG + 1}] offset:4 sc1\ns_mov_b64 exec, -1\nL_dg1:")
    if "chain" not in cfg["ENABLE"]:
        A("s_endpgm"); return
    for i in range(8): A(f"s_mov_b32 s{sMSK + i}, {0x11111111 << (i >> 1):#x}")
    A(f"""v_and_b32 v{t0}, 15, v{vLane}
    v_lshrrev_b32 v{t1}, 4, v{vLane}
    v_mov_b32 v{vIdx}, 0x4444
    v_mov_b32 v{t2}, 0xeeee
    s_mov_b32 vcc_lo, 0xcccccccc
    s_mov_b32 vcc_hi, 0xcccccccc
    v_cndmask_b32 v{vIdx}, v{vIdx}, v{t2}, vcc
    v_mov_b32 v{vSel}, 0x3f80
    v_mov_b32 v{t2}, 1.0
    s_mov_b32 vcc_lo, 0xf0f0f0f0
    s_mov_b32 vcc_hi, 0xf0f0f0f0
    v_cndmask_b32 v{vSel}, v{vSel}, v{t2}, vcc
    s_mov_b32 s{sONE}, 0x3f803f80
    s_mov_b32 s{sONE + 1}, 0x3f803f80
    s_mov_b32 s{sC}, {C_SCALE:#x}
    s_mov_b32 s{sC2}, {C_SCALE:#x}
    s_mov_b32 s{sC2 + 1}, {C_SCALE:#x}
    v_mov_b32 v{vZ + 1}, 0
    v_lshrrev_b32 v27, 2, v{t0}
    v_and_b32 v28, 1, v{t0}
    v_lshl_or_b32 v27, v27, 1, v28
    v_bfe_u32 v28, v{t0}, 1, 1
    v_lshlrev_b32 v{vMr}, 4, v{vLane}
    v_add_u32 v{vKr}, {L_KV}, v{vMr}
    v_add_u32 v{vVr}, {L_KV}, v{vWl0}
    v_add_u32 v{vMr}, {L_M}, v{vMr}
    s_lshl_b32 s{st0}, s{sW}, 11
    v_add_u32 v{vMw}, s{st0}, v{vMr}
    s_add_u32 s{cMD}, s{st0}, {L_M}
    s_sub_u32 s{cME}, {WS_MEM}, s{st0}
    s_mov_b32 s{sME}, s{cME}
    s_lshl_b32 s{st0}, s{sW}, 10
    s_add_u32 s{st0}, s{st0}, {L_Q}
    v_lshlrev_b32 v{t2}, 2, v{t0}
    v_lshl_or_b32 v{t2}, v{t1}, 7, v{t2}
    v_add_u32 v{vQw}, s{st0}, v{t2}
    v_lshrrev_b32 v{t2}, 3, v{t0}
    v_lshl_or_b32 v{t2}, v{t1}, 1, v{t2}
    s_lshl_b32 s{st0}, s{sW}, 3
    v_add_u32 v{t2}, s{st0}, v{t2}
    v_and_b32 v29, 7, v{t0}
    v_lshlrev_b32 v29, 3, v29
    v_mul_u32_u24 v{t2}, {RS}, v{t2}
    v_add_u32 v{vPartSt}, v{t2}, v29
    v_lshlrev_b32 v{t2}, 4, v{t1}
    v_lshl_or_b32 v{t2}, v27, 6, v{t2}
    v_add_u32 v{vQr}, {L_Q}, v{t2}
    v_lshlrev_b32 v{t2}, 4, v27
    v_lshl_or_b32 v{t2}, v{t1}, 8, v{t2}
    s_lshr_b32 s{st0}, s{sW}, 1
    s_lshl_b32 s{st0}, s{st0}, 10
    s_and_b32 s{st1}, s{sW}, 1
    s_lshl_b32 s{st1}, s{st1}, 7
    s_add_u32 s{st0}, s{st0}, s{st1}
    s_add_u32 s{st0}, s{st0}, {L_O}
    v_add_u32 v{vOw}, s{st0}, v{t2}
    v_lshl_or_b32 v{t2}, v28, 7, v{t2}
    v_add_u32 v{vOr}, {L_O}, v{t2}
    s_mul_i32 s{st0}, s{sW}, 3072
    s_lshl_b32 s{sKM}, s{sRK}, 12
    s_add_u32 s{sKM}, s{sKM}, {WS_KM}
    s_sub_u32 s{sKM}, s{sKM}, s{st0}
    s_lshl_b32 s{cPW}, s{sRK}, 6
    s_add_u32 s{cPW}, s{cPW}, {WS_PART}
    s_mov_b32 s{cPZ}, s{sPZ}
    s_mov_b32 s{sKP}, {WS_SIZE}
    s_mov_b32 s{sSTEP}, 0
    s_mov_b32 s{sX0}, 0
    s_mov_b32 s{sX1}, 8192
    s_mov_b32 s{sX2}, 16384
    s_cmp_lt_u32 s{sW}, {cfg['PRE']}
    s_cselect_b64 s[{sPX}:{sPX + 1}], -1, 0""")
    prog_addr(1); prog_spin()
    if PROF: A(f"s_mov_b32 s{sTS + 23}, 0\ns_mov_b32 s{sTS + 22}, 0\ns_mov_b32 s2, 0")

    def lw(j, half):
        return f"ds_read_b128 {v(G + 8 * (j % 4) + 4 * half, 4)}, v{vWl0} offset:{(j // 2) * 16384 + (j & 1) * 2048 + half * 1024}"
    def zero_acc():
        for i in range(QA, VA + 8, 2): A(f"v_mov_b64 {v(i, 2)}, 0")
    def preload():
        for j in range(4):
            for hf in range(2): A(lw(j, hf))
    sc_part = [f"s_mul_i32 s{st0}, s{sX0}, 40", f"s_add_u32 s{sPW}, s{st0}, s{cPW}", f"s_add_u32 s{sWO}, s{sPW}, 4096",
               f"s_add_u32 s{sPR}, s{st0}, s{cPZ}", f"s_mul_i32 s{st0}, s{sX2}, 40", f"s_add_u32 s{sPZ}, s{st0}, s{cPZ}",
               f"s_add_u32 s{sMN}, s{sX1}, {WS_MEM}", f"s_add_u32 s{sMZ}, s{sX0}, {WS_MEM}"] + \
              ([f"s_lshr_b32 s{sNEED}, s{sSTEP}, 1", f"s_add_u32 s{sNEED}, s{sNEED}, 2"] if NKV == 2 else
               [f"s_add_u32 s{sNEED}, s{sSTEP}, 3"]) + \
              [f"s_cmp_gt_u32 s{sSTEP}, {NSEG - 3}\ns_cselect_b32 s{sNEED}, 0, s{sNEED}"]
    sc_next = [f"s_add_u32 s{sME}, s{sX1}, s{cME}",
               f"s_mov_b32 s{st0}, s{sX0}", f"s_mov_b32 s{sX0}, s{sX1}", f"s_mov_b32 s{sX1}, s{sX2}", f"s_mov_b32 s{sX2}, s{st0}",
               f"s_add_u32 s{sSTEP}, s{sSTEP}, 1"] + \
              [f"s_mov_b32 s{sKP}, s{sKM}", f"s_add_u32 s{sKM}, s{sKM}, {32 * 4096}"]
    sq = []
    def sal(n):
        for _ in range(n):
            if sq: A(sq.pop(0))
    SEL, RA, RD, ES = M, M + 4, M + 16, M + 24
    A("s_waitcnt lgkmcnt(0)")
    zero_acc(); preload()
    fill_ones(A, ES, 8)
    prog_addr(2); A(prog_ld(vProg))
    timeline(A, cfg, 2, vT)
    A("s_branch L_fetch")

    eld = "\n".join(f"buffer_load_dwordx4 {v(ES + 4 * i, 4)}, v{vWl0}, {S4(rWS)}, s{sME} offen offset:{1024 * i} sc1" for i in range(2))
    lld = eld + "\n" + "\n".join(f"buffer_load_dwordx4 v{vWl0}, {S4(rWS)}, s{sME} offen offset:{1024 * i} sc1 lds" for i in range(2))
    ewr = f"ds_write_b128 v{vMw}, {v(ES, 4)}\nds_write_b128 v{vMw}, {v(ES + 4, 4)} offset:1024"
    masked = lambda x: "s_mov_b64 exec, vcc\n" + x + "\ns_mov_b64 exec, -1"
    def mx(b, n): return [f"v_max3_u32 v{vT}, v{vT if i else b}, v{b + i}, v{b + i + 1}" for i in range(0, n, 2)]
    CMP = f"v_cmp_eq_u32 vcc, -1, v{vT}"
    dmakv = lambda i: f"buffer_load_dwordx4 v{vWl0}, {S4(rWS)}, s{sKVS} offen offset:{1024 * i} {cfg['KVLD']} lds" if not cfg.get("NODMA") else "s_nop 0"
    A(f"L_lr:\ns_mov_b32 m0, s{cMD}")
    spin_init(A)
    A("L_lr1:")
    if PROF: A(f"s_add_u32 s{sTS + 22}, s{sTS + 22}, 1")
    A(lld); spin_step(A)
    A("s_waitcnt vmcnt(0)")
    for x in mx(ES, 8) + [CMP]: A(x)
    A(f"s_cbranch_vccnz L_lr1\ns_mov_b32 m0, s{sKVL}\ns_branch L_lk")
    A(f"L_fl:\ns_mov_b32 m0, s{cMD}")
    stamp(10)
    A("s_barrier\n" + lld + "\ns_branch L_b0")
    A(f".p2align {cfg['ALIGN']}")
    if cfg["PAD"]: A(f".fill {cfg['PAD']}, 4, 0xbf800000")
    A(f"L_fetch:\ns_cmp_ge_u32 s{sW}, 2\ns_cbranch_scc1 L_fl")
    spin_init(A)
    for i, d in enumerate(cfg["FD"]):
        if i: A(eld)
        delay(d)
    A("s_mov_b64 vcc, -1\nL_er:\n" + masked(eld))
    if PROF: A("s_add_u32 s2, s2, 1")
    spin_step(A)
    A(f"s_waitcnt vmcnt({2 * (len(cfg['FD']) - 1)})")
    for x in mx(ES, 8) + [CMP]: A(x)
    A("s_cbranch_vccnz L_er")
    if not cfg["SPEC"]: A(ewr)
    stamp(10)
    if cfg["PROF"] == -1:
        A(f"s_cmp_lg_u32 s{sSTEP}, 1\ns_cbranch_scc1 L_dg2"); timeline(A, cfg, 9, vT); A("L_dg2:")
    A("s_barrier\nL_b0:")
    L = Cnt(A, "lgkmcnt")
    def mrd(p): L.op(f"ds_read_b128 {v(M + 4 * p, 4)}, v{vMr} offset:{1024 * p}", ("m", p))
    def lwr(j, hf): L.op(lw(j, hf), ("w", j))
    def kfr(kf): L.op(f"ds_read_b128 {v(M + 4 * kf, 4)}, v{vKr} offset:{(kf >> 1) * 4096 + 2048 + (kf & 1) * 1024}", ("K", kf))
    def frag(k, t):
        if k == "K": kfr(t)
        elif k == "V": L.op(f"ds_read_b128 {v(G + 4 * t, 4)}, v{vVr} offset:{1024 * t}", ("V", t))
        else: L.op(f"ds_read_b128 {v(G + 8 * t + (4 if k == 'k' else 0), 4)}, v{vQr} offset:{t * 1024 + (512 if k == 'k' else 0)}", (k, t))
    A("s_waitcnt lgkmcnt(0)\ns_barrier")
    stamp(0)
    for p in range(4): mrd(p)
    for i in range(cfg["PH"][0]): A("s_nop 0")
    A(f"s_add_u32 s{sKVS}, s{sKVS}, {32 * 16384}\ns_xor_b32 s{sKVL}, s{sKVL}, 0x3c000\ns_mov_b32 m0, s{sKVL}")
    sq.extend(sc_part); sal(2)
    L.wait(("m", 0))
    stamp(1)
    NV = cfg["NVF"]
    qk = lambda p: [(QA, p, W8(WQ(p, 0))), (QA + 4, p, W8(WQ(p, 1)))] + \
                   [(QA + 8 + 4 * b, p, W8(WK(p, b)) if p % 2 == 0 else v(G + 8 * ((p - 1 + b) % 4), 8)) for b in range(2)]
    vv = lambda p: [(VA + 4 * b, p, W8(WV(p, b))) for b in range(2)]
    seq = sum((qk(p) for p in range(4)), []) + sum((vv(p) for p in range(NV)), []) + sum((qk(p) for p in range(4, 8)), [])
    H = 16 + 2 * NV
    gap = {}; val = {}
    def at(k, fn): gap.setdefault(k, []).append(fn)
    for k, (j, hf) in zip((6, 8, 9, 10), ((4, 0), (4, 1), (5, 0), (5, 1))): at(k, lambda j=j, hf=hf: lwr(j, hf))
    LP = cfg["LP"]
    VS = cfg["VS"]
    NEG = G if min(VS["r0"], VS["r1"]) < 200 else QA + 12
    kmst = f"buffer_store_dwordx4 {v(KMQ, 4)}, v{vWl0}, {S4(rWS)}, s{sKM} offen sc1"
    vop = {"km": kmst if VS["km"] >= 200 else kmst.replace(f"s{sKM} ", f"s{sKP} ")}
    if cfg.get("NOKM"): vop["km"] = vop["km"].replace(" sc1", "")
    for i in range(4): vop[f"d{i}"] = dmakv(i)
    for i in range(2): vop[f"r{i}"] = f"buffer_store_dwordx4 {v(NEG, 4)}, v{vWl0}, {S4(rWS)}, s{sPZ} offen offset:{1024 * i}"
    def vslot(k):
        for n in sorted(VS):
            if VS[n] == k: A(vop[n])
    for n in VS:
        if VS[n] < 100 and VS[n] != LP: at(VS[n], lambda n=n: A(vop[n]))
    assert LP not in VS.values()
    if NEG == G: val[H + 8] = [f"v_mov_b64 {v(NEG, 2)}, -1"]; val[H + 9] = [f"v_mov_b64 {v(NEG + 2, 2)}, -1"]
    at(LP, lambda: A(f"s_waitcnt vmcnt({sum(x < LP for x in VS.values())})"))
    for i, x in enumerate(mx(ES, 8) + [CMP]): val.setdefault(LP + (i + 1) // 2, []).append(x)
    at(LP + 4, lambda: A("s_cbranch_vccnz L_lr\nL_lk:\ns_barrier"))
    for i in range(4): at(LP + 4 + (i if i < 2 else 2 * i), lambda i=i: mrd(4 + i))
    for k, (j, hf) in zip((H + 1, H + 2, H + 5, H + 6), ((6, 0), (6, 1), (7, 0), (7, 1))): at(k, lambda j=j, hf=hf: lwr(j, hf))
    at(H + 5, lambda: L.wait(("w", 5))); at(H + 13, lambda: L.wait(("w", 7)))
    for i in range(NV): at(H + 9 + 2 * i, lambda i=i: kfr(i))
    for k, (acc, p, wop) in enumerate(seq):
        A(f"{SMF} {v(acc, 4)}, {v(M + 4 * p, 4)}, {wop}, v{vIdx}")
        g = gap.get(k, [])
        for fn in g: fn()
        n = len(g)
        if k + 1 < len(seq) and seq[k + 1][0] == QA: L.wait(("m", seq[k + 1][1])); n += 1
        if cfg.get("QS") and k in cfg["QS"]: stamp(4 + cfg["QS"].index(k), True)
        sal((2 if k in val else 3) - n)
        for x in val.get(k, []): A(x)
    assert not sq
    stamp(2)
    qd = G + 16
    def addh(d): return [f"v_add_f32 v{d}, v{d}, v{d + 2}", f"v_add_f32 v{d + 1}, v{d + 1}, v{d + 3}"]
    for x in addh(QA) + addh(QA + 4): A(x)
    A(f"v_cvt_pk_bf16_f32 v{qd}, v{QA}, v{QA + 4}\nv_cvt_pk_bf16_f32 v{qd + 1}, v{QA + 1}, v{QA + 5}")
    L.op(f"ds_write2_b32 v{vQw}, v{qd}, v{qd + 1} offset1:16")
    for x in addh(QA + 8) + addh(QA + 12): A(x)
    A(f"v_cvt_pk_bf16_f32 v{KMQ}, v{QA + 8}, v{QA + 12}\nv_cvt_pk_bf16_f32 v{KMQ + 1}, v{QA + 9}, v{QA + 13}")
    L.op(f"ds_write2_b32 v{vQw}, v{KMQ}, v{KMQ + 1} offset0:128 offset1:144", "wk")
    if cfg.get("QS") and 99 in cfg["QS"]: stamp(4 + cfg["QS"].index(99), True)
    rq = [("q", 0), ("k", 0), ("q", 1), ("k", 1), ("K", 4), ("q", 2), ("K", 5), ("k", 2), ("K", 6), ("q", 3), ("K", 7), ("k", 3), ("V", 0), ("V", 1)]
    rest = sum((vv(p) for p in range(NV, 8)), [])
    EB = cfg["EB"]
    for e, (acc, p, wop) in enumerate(rest):
        A(f"{SMF} {v(acc, 4)}, {v(M + 4 * p, 4)}, {wop}, v{vIdx}")
        if (e & 1) and p < 4: kfr(p)
        if e == EB: L.wait("wk"); A("s_barrier")
        if e > EB and rq and (rq[0][0] != "K" or rq[0][1] < p + (e & 1)): frag(*rq.pop(0))
        vslot(100 + e)
        if e < 2 and NEG != G: A(f"v_mov_b64 {v(NEG + 2 * e, 2)}, -1")
        if cfg.get("QS") and 100 + e in cfg["QS"]: stamp(4 + cfg["QS"].index(100 + e), True)
    stamp(3)
    Sm, S0, S1 = QA, QA + 4, QA + 8
    vq = addh(VA) + addh(VA + 4) + [f"v_cvt_pk_bf16_f32 v{KMQ + 2}, v{VA}, v{VA + 1}", f"v_cvt_pk_bf16_f32 v{KMQ + 3}, v{VA + 4}, v{VA + 5}"]
    zq = [f"v_mov_b64 {v(M + i, 2)}, 0" for i in range(0, 32, 2)]
    def z(n):
        for _ in range(n):
            if zq: A(zq.pop(0))
    for t in range(4):
        need = [("q", t), ("k", t), ("K", 2 * t), ("K", 2 * t + 1)]
        while any(x not in L.tags for x in need): frag(*rq.pop(0))
        L.wait(min((L.need(x), x) for x in need)[1])
        for i, (d, a_) in enumerate(((S0, M + 8 * t), (S1, M + 8 * t + 4), (Sm, G + 8 * t + 4))):
            A(f"{MF} {v(d, 4)}, {v(a_, 4)}, {v(G + 8 * t, 4)}, {v(d, 4) if t else 0}")
            e = 3 * t + i
            if rq and (rq[0][0] != "V" or e >= 2): frag(*rq.pop(0))
            if 2 <= e <= 4: A(vq[2 * (e - 2)] + "\n" + vq[2 * (e - 2) + 1])
            if e == 4: A(f"s_cmp_ge_u32 s{sSTEP}, {min(cfg['KEARLY'], cfg.get('LAST', NSEG - 1))}")
            if e == 5 and not cfg.get("XL"): A("s_cbranch_scc1 L_ch_km\nL_ch_kmb:")
            vslot(200 + e)
            if e == 7: A(f"v_mov_b64 {v(G + 8, 2)}, s[{sONE}:{sONE + 1}]\nv_mov_b64 {v(G + 10, 2)}, s[{sONE}:{sONE + 1}]")
            if e >= 8: z(2)
    assert not rq
    stamp(4)
    if cfg.get("XL"): A(f"s_cmp_eq_u32 s{sSTEP}, {NSEG - 1}\ns_cbranch_scc1 L_ch_exit")
    m1, m2, m3, tt = G + 28, G + 29, G + 30, G + 31
    z(1)
    A(f"""v_max3_f32 v{m1}, v{S0}, v{S0 + 1}, v{S0 + 2}
    v_max3_f32 v{m2}, v{S0 + 3}, v{S1}, v{S1 + 1}
    v_max3_f32 v{m3}, v{S1 + 2}, v{S1 + 3}, v{m1}
    v_max3_f32 v{m1}, v{Sm}, v{Sm + 1}, v{m2}
    v_max_f32 v{m2}, v{m1}, v{m3}
    v_max_f32 v{tt}, v{m1}, v{m3}""")
    z(2)
    A(f"v_permlane16_swap_b32 v{m2}, v{tt}\nv_max_f32 v{m1}, v{m2}, v{tt}\nv_max_f32 v{m3}, v{m2}, v{tt}")
    z(2)
    A(f"v_permlane32_swap_b32 v{m1}, v{m3}\nv_max_f32 v{m1}, v{m1}, v{m3}\nv_mul_f32 v{m1}, s{sC}, v{m1}")
    sv = [Sm, Sm + 1] + [S0 + i for i in range(8)]
    P = G + 12
    O0, O1, SU = G + 16, G + 20, G + 24
    fm = lambda x: f"v_fma_f32 v{x}, v{x}, s{sC}, -v{m1}"
    if cfg["PK"]:
        for i in range(0, 10, 2): A(f"v_pk_fma_f32 {v(sv[i], 2)}, {v(sv[i], 2)}, s[{sC2}:{sC2 + 1}], {v(m1, 2)} op_sel_hi:[1,1,0] neg_lo:[0,0,1] neg_hi:[0,0,1]")
    else: A(fm(sv[0]))
    for i in range(10):
        if i + 1 < 10 and not cfg["PK"]: A(fm(sv[i + 1]))
        A(f"v_exp_f32 v{sv[i]}, v{sv[i]}")
        if i == 2: A(f"v_cvt_pk_bf16_f32 v{PM}, v{Sm}, v{Sm + 1}\nv_cvt_pk_bf16_f32 v{PM + 3}, v{Sm}, v{Sm + 1}")
        if i in (4, 6, 8): A(f"v_cvt_pk_bf16_f32 v{P + (i - 4) // 2}, v{sv[i - 2]}, v{sv[i - 1]}")
        if i == 3: A(f"{MF16} {v(SU, 4)}, {v(G + 8, 2)}, {v(PM, 2)}, 0")
        if i == 5: A(f"{MF16} {v(O0, 4)}, {v(KMQ + 2, 2)}, {v(PM, 2)}, 0")
        if i == 7: A(f"{MF16} {v(O1, 4)}, {v(KMQ + 2, 2)}, {v(PM + 2, 2)}, 0")
    L.wait(("V", 1))
    A(f"v_cvt_pk_bf16_f32 v{P + 3}, v{sv[8]}, v{sv[9]}")
    stamp(5)
    z(2)
    A(f"{MF} {v(SU, 4)}, {v(G + 8, 4)}, {v(P, 4)}, {v(SU, 4)}"); z(2)
    A(f"{MF} {v(O0, 4)}, {v(G, 4)}, {v(P, 4)}, {v(O0, 4)}")
    A(f"{MF} {v(O1, 4)}, {v(G + 4, 4)}, {v(P, 4)}, {v(O1, 4)}")
    ost = lambda k: (VA, G, QA + 8, G + 24, G + 8, VA)[k]
    def owr(k, hf): L.op(f"ds_read_b128 {v(ost(k) + 4 * hf, 4)}, v{vWl1} offset:{k * 2048 + hf * 1024}", ("ow", k))
    owr(0, 0)
    A(f"v_rcp_f32 v{SU}, v{SU}")
    owr(0, 1)
    for o in (O0, O1):
        for i in range(4): A(f"v_mul_f32 v{o + i}, v{o + i}, v{SU}")
        for i in range(2): A(f"v_cvt_pk_bf16_f32 v{P + (o - O0) // 2 + i}, v{o + 2 * i}, v{o + 2 * i + 1}")
    assert not zq
    L.op(f"ds_write_b128 v{vOw}, {v(P, 4)}", "ow")
    owr(1, 0); owr(1, 1)
    for i in range(8 * cfg["PH"][1]): A("s_nop 0")
    L.wait("ow"); A("s_barrier")
    L.op(f"ds_read_b128 {v(QA, 4)}, v{vOr}", "o0"); L.op(f"ds_read_b128 {v(QA + 4, 4)}, v{vOr} offset:1024", "o1")
    stamp(6)
    L.wait("o0")
    OQ = G + 16
    tile = lambda t: addh(M + 4 * t) + [f"v_cvt_pk_bf16_f32 v{OQ + t}, v{M + 4 * t}, v{M + 4 * t + 1}"]
    def pstore(p): A(f"buffer_store_dwordx2 {v(OQ + 2 * p, 2)}, v{vPartSt}, {S4(rWS)}, s{sPW if p < 2 else sWO} offen offset:{2048 * (p & 1)}")
    rl = "\n".join(f"buffer_load_dwordx4 {v(RD + 4 * i, 4)}, v{vWl0}, {S4(rWS)}, s{sPR} offen offset:{1024 * i} sc1" for i in range(2))
    sq.extend(sc_next)
    for e in range(16):
        t, u = e >> 1, e & 1
        A(f"{SMF} {v(M + 4 * t, 4)}, {v(QA + 4 * u, 4)}, {W8(WO(t, u)) if t < 5 else v(ost(e - 10), 8)}, v{vIdx}")
        if e == 0: L.wait("o1")
        if e < 6: owr(2 + e // 2, e & 1)
        if e == 10: owr(5, 0); owr(5, 1)
        if e == 9: L.wait(("ow", 4))
        if e == 14: L.wait(("ow", 5))
        if e in (7, 11) or (e == 15 and cfg['PREP'] != 'c'): pstore((e - 7) // 4)
        if cfg.get("WS") and e in cfg["WS"]: stamp(cfg["WS"].index(e), True)
        if e >= 1: sal(1)
        if e in (1, 2): A(f"v_xor_b32 v{vKr if e == 1 else vVr}, 0x3c000, v{vKr if e == 1 else vVr}")
        if e >= 3 and (e & 1): A(tile((e - 3) // 2)[0] + "\n" + tile((e - 3) // 2)[1])
        if e >= 4 and not (e & 1): A(tile((e - 4) // 2)[2])
    assert not sq
    A(tile(6)[2])
    for i in range(0, 8, 2): A(f"v_mov_b64 {v(RD + i, 2)}, -1")
    pre = f"s_mov_b64 exec, s[{sPX}:{sPX + 1}]\n{rl}\ns_mov_b64 exec, -1"
    if cfg["PREP"] == "c": A(pre); pstore(2)
    for x in tile(7): A(x)
    if cfg["PREP"] == "a": A(pre)
    pstore(3)
    stamp(7)
    rmf = lambda i: f"{MF} {v(RA, 4)}, {v(SEL, 4)}, {v(RD + 4 * i, 4)}, {v(RA, 4) if i else 0}"
    def steplog():
        if PROF:
            A(f"""s_memrealtime s[100:101]
            s_waitcnt lgkmcnt(0)
            s_bitcmp1_b32 s{sW}, 0
            s_cselect_b32 s3, s100, s{sTS + 14}
            v_mov_b32 v{vT}, s3
            s_lshl_b32 s{st0}, s{sRK}, 6
            s_add_u32 s{st0}, s{st0}, s{sSTEP}
            s_lshl_b32 s{st0}, s{st0}, 2
            s_add_u32 s{st0}, s{st0}, {WS_DBG + 0x8000}
            s_lshl_b32 s3, s{sW}, 13
            s_add_u32 s{st0}, s{st0}, s3
            s_mov_b64 exec, 1
            buffer_store_dword v{vT}, off, {S4(rWS)}, s{st0}
            s_mov_b64 exec, -1""")
    def progchk():
        prog_spin()
        if NKV == 2: A(f"s_xor_b32 s{sPG}, s{sPG}, 4096")
        A(prog_ld(vProg)); steplog()
    def odd(n):
        l = A.lab()
        A(f"s_bitcmp1_b32 s{sW}, 0\ns_cbranch_scc0 {l}"); delay(n); A(f"{l}:")
    chores = {"s": lambda: [A(f"v_cndmask_b32 v{SEL + i}, 0, v{vSel}, s[{sMSK + 2 * i}:{sMSK + 2 * i + 1}]") for i in range(4)] +
                           [fill_ones(A, ES, 8)],
              "p": preload, "z": zero_acc, "A": lambda: A(rl), "e": lambda: delay(4), "d": lambda: delay(8), "D": lambda: delay(16),
              "k": progchk, "o": lambda: odd(8), "O": lambda: odd(16)}
    A(f"s_cmp_lt_u32 s{sW}, 2\ns_cbranch_scc1 L_early")
    def run(c):
        for ch in c:
            if isinstance(ch, str): chores[ch]()
            elif ch > 0: delay(ch)
            elif ch < 0: odd(-ch)
    run(cfg["RED"][1])
    A("s_branch L_red0\nL_early:")
    run(cfg["RED"][0])
    A("L_red0:")
    spin_init(A)
    def unit():
        for x in mx(RD, 8) + [CMP, rmf(0), rmf(1)]: A(x)
        A("s_cbranch_vccz L_pub")
    A("s_mov_b64 vcc, -1\nL_red:\n" + masked(rl))
    if PROF: A(f"s_add_u32 s{sTS + 23}, s{sTS + 23}, 1")
    spin_step(A)
    A(f"s_waitcnt vmcnt({2 * cfg['RED'][0].count('A')})")
    for x in mx(RD, 8)[:2] + [rmf(0)] + mx(RD, 8)[2:] + [rmf(1), CMP]: A(x)
    A("s_cbranch_vccnz L_red")
    stamp(8)
    for r in (4, 8):
        for i in range(4): A(f"v_add_f32_dpp v{RA + i}, v{RA + i}, v{RA + i} row_ror:{r} row_mask:0xf bank_mask:0xf")
    A(f"""v_cvt_pk_bf16_f32 v{RA}, v{RA}, v{RA + 1}
    s_mov_b64 exec, {PUBX}
    v_cvt_pk_bf16_f32 v{RA + 1}, v{RA + 2}, v{RA + 3}
    buffer_store_dwordx2 {v(RA, 2)}, v{vMemSt}, {S4(rWS)}, s{sMN} offen
    buffer_store_dwordx2 {v(ES, 2)}, v{vMemSt}, {S4(rWS)}, s{sMZ} offen
    s_mov_b64 exec, -1""")
    stamp(9)
    A("s_branch L_fetch")
    A(f"L_ch_km:\n{kmst}\ns_cmp_lt_u32 s{sSTEP}, {cfg.get('LAST', NSEG - 1)}\ns_cbranch_scc1 L_ch_kmb\nL_ch_exit:")
    if cfg.get("XL"): A(kmst)
    timeline(A, cfg, 3, vT)
    if PROF:
        A(f"""s_waitcnt lgkmcnt(0)
        s_lshl_b32 s{st0}, s{sRK}, 2
        s_add_u32 s{st0}, s{st0}, s{sW}
        s_lshl_b32 s{st0}, s{st0}, 7
        s_add_u32 s{st0}, s{st0}, {WS_DBG}
        s_mov_b64 exec, 1""")
        for i, r in enumerate([sTS + 2 * i for i in range(11)] + [sTS + 23, 2, sTS + 22]): A(f"v_mov_b32 v0, s{r}\nbuffer_store_dword v0, v{vZ}, {S4(rWS)}, s{st0} offen offset:{4 * i}")
    A("s_endpgm")
```

```python
from common import *
from ln import *

def role_ffn(A, cfg):
    NF, S1 = cfg["NFFN"], cfg["S_FFN"]
    sT, sC, sCNT, sI, sSEG, sFLG, sIN, sPW, sFS, sTH, sB1, sB2, sROW, sL2E, st0, st1, st2, sPA, sPN, sXA, sHX = range(56, 77)
    sIB = 78
    vLane, vOff1, vOff2, vT, vT0, vL16, vXw, vXr, vHw, vSt, vRl, vRow, vL4, vZ, t0, t1, t2, vPG, vHl, vFV = range(96, 116)
    vPV = vOff1
    SEL, NEG, NEGL, XR = 116, 120, 124, 80
    L_H = 18432
    A(f"L_ffn:\ns_mov_b32 s{sCNT}, s3\nL_ffn2:\ns_mov_b32 s{sT}, s3")
    timeline(A, cfg, 0, 1)
    srd(A, rD, pX, 1 << 21)
    lane_fields(A, 140)
    A(f"""s_lshl_b32 s{sC}, s{sT}, 5
    s_add_u32 s{sC}, s{sC}, s{sRK}
    s_cmp_ge_u32 s{sC}, 64
    s_cbranch_scc1 L_ffn_noln""")
    ln_stage(A, sC, 140, st0, st1)
    A("s_waitcnt vmcnt(0)\ns_barrier")
    signal_done(A, 1, 2, DBG_LN)
    A("L_ffn_noln:")
    lane_fields(A, vLane)
    A(f"v_lshlrev_b32 v{vL16}, 4, v{vLane}\nv_mov_b32 v{vZ}, 0")
    row_consts(A, vLane, vRl, vRow, SEL, sHX, t0, t1, st0)
    fill_ones(A, NEG, 4)
    A(f"v_cmp_gt_u32 vcc, 32, v{vLane}")
    for i in range(4): A(f"v_cndmask_b32 v{NEGL + i}, 0, -1, vcc")
    def reset():
        ops = inbox_ops(4, NEG, vRl, sIN, st0, True)
        for x in ops[:3]: A(x)
        A(ops[3].replace(v(NEG, 4), v(NEGL, 4)))
    A(f"""s_lshl_b32 s{sFLG}, s{sT}, 8
    s_add_u32 s{sFLG}, s{sFLG}, {WS_FLG2}
    s_lshl_b32 s{sIB}, s{sT}, 20
    s_add_u32 s{sIB}, s{sIB}, {WS_PART2}
    s_cmp_eq_u32 s{sT}, {NF}
    s_cbranch_scc1 L_ffn_w
    s_lshl_b32 s{st0}, s{sRK}, 2
    s_add_u32 s{st0}, s{st0}, s{sFLG}
    s_mov_b64 exec, 1
    buffer_store_dword v{vZ}, v{vZ}, {S4(rWS)}, s{st0} offen
    s_mov_b64 exec, -1""")
    for sl in range(0 if cfg.get('NOCLR') else 2):
        A(f"s_lshl_b32 s{sIN}, s{sRK}, 14\ns_add_u32 s{sIN}, s{sIN}, s{sIB}\ns_add_u32 s{sIN}, s{sIN}, {sl << 19}")
        reset()
    A("s_waitcnt vmcnt(0)\ns_barrier")
    timeline(A, cfg, 1, t0)
    signal_done(A, t0, t1)
    if "ffn" not in cfg["ENABLE"]:
        A("L_ffn_w:\ns_endpgm"); return
    if cfg["GATE"]: wait_done1(A, t0, t1, st0, DBG_CH, 32)
    A("L_ffn_w:")
    srd(A, rA, pW1, 512 * 3584); srd(A, rB, pW3, 512 * 3584); srd(A, rC, pW2, 1792 * 1024); srd(A, rD, pOUT, 1 << 21)
    A(f"""s_cmp_ge_u32 s{sRK}, 14
    s_cselect_b32 s{sTH}, 1, 0
    s_cselect_b32 s{st0}, 14, 0
    s_sub_u32 s{sFS}, s{sRK}, s{st0}
    v_lshrrev_b32 v{t0}, 2, v{vLane}
    v_mul_u32_u24 v{t0}, 1088, v{t0}
    v_and_b32 v{t1}, 3, v{vLane}
    v_mul_u32_u24 v{t1}, 272, v{t1}
    s_lshl_b32 s{st0}, s{sW}, 6
    v_add3_u32 v{vXw}, v{t0}, v{t1}, s{st0}
    v_and_b32 v{t0}, 15, v{vLane}
    v_lshrrev_b32 v{t1}, 4, v{vLane}
    v_mul_u32_u24 v{t2}, 272, v{t1}
    v_lshl_add_u32 v{vXr}, v{t0}, 4, v{t2}
    s_lshl_b32 s{st0}, s{sW}, 10
    v_add_u32 v{vHw}, s{st0}, v{vL16}
    s_lshl_b32 s{st0}, s{sW}, 8
    v_lshlrev_b32 v{t2}, 4, v{t1}
    v_lshl_or_b32 v{t2}, v{t0}, 14, v{t2}
    v_add_u32 v{vSt}, s{st0}, v{t2}
    s_mov_b32 s{sL2E}, 0xbfb8aa3b
    v_and_b32 v{vL4}, 31, v{vLane}
    v_lshlrev_b32 v{vPG}, 7, v{vL4}
    v_lshlrev_b32 v{vL4}, 2, v{vL4}
    s_lshr_b32 s{st0}, s{sW}, 1
    s_lshl_b32 s{st1}, s{st0}, 3
    v_add_u32 v{vHl}, s{st1}, v{vL16}
    s_lshl_b32 s{st1}, s{st0}, 9
    v_add_u32 v{vRow}, s{st1}, v{vRow}
    s_mov_b32 s{sI}, 0
    s_mov_b32 s{sSEG}, s{sCNT}
    s_cmp_ge_u32 s{sRK}, 28
    s_cbranch_scc1 L_ffn_go""")
    dma_col(A, t2, vLane, t0, t1, st0)
    rows_out(A, vOff2, t2, vLane, t0, st0, st1)
    A(f"""s_and_b32 s{st0}, s{sW}, 1
    s_lshl_b32 s{st0}, s{st0}, 8
    s_lshr_b32 s{st1}, s{sW}, 1
    s_lshl_b32 s{st1}, s{st1}, 2
    s_add_u32 s{st0}, s{st0}, s{st1}
    v_lshrrev_b32 v{t0}, 4, v{vLane}
    v_add_u32 v{t0}, s{st0}, v{t0}
    v_mul_u32_u24 v{t0}, 3584, v{t0}
    v_add_u32 v{vOff1}, v{t0}, v{t2}
    s_lshl_b32 s{sB1}, s{sFS}, 8
    s_lshl_b32 s{sB2}, s{sFS}, 17""")
    tr_base(A, vT, vLane, t0, t1)
    A(f"s_lshl_b32 s{st0}, s{sW}, 6\nv_xor_b32 v{vT0}, s{st0}, v{vT}")
    chunks = []
    drow = lambda ks, i: 8 * (i & 1) + 128 * (ks >> 3) + 32 * (ks & 3) + 16 * ((ks >> 2) & 1)
    for C in range(8):
        for m, r in ((0, rA), (1, rB)):
            def ex(A, base, m=m, C=C):
                A(f"v_add_u32 v{t0}, {base}, v{vT0}\nv_xor_b32 v{t1}, 32, v{t0}")
                tr_tile(A, "a", 128 * m + 8 * C, t0); tr_tile(A, "a", 128 * m + 64 + 8 * C, t1)
            chunks.append(dict(srd=r, voff=vOff1, sbase=sB1, offs=[drow(2 * C + (i >> 1), i) * 3584 for i in range(4)], extract=ex))
    for u in range(2):
        for w in range(4):
            chunks.append(dict(srd=rC, voff=vOff2, sbase=sB2, offs=[(64 * u + r) * 1024 + w * 256 for r in ROWS_OUT],
                               extract=lambda A, base, u=u, w=w: extract8(A, base, w, vT, t0, t1, lambda t: 128 + 16 * t + 8 * u, "v")))
    load_chunks(A, chunks, 10, cfg["FFN_DEPTH"], 0, st0, st1, nt='nt' if 'f' in cfg['NT'] else '')
    A("L_ffn_go:")
    timeline(A, cfg, 2, t0)
    wait_done1(A, t0, t1, st0)

    def next_addr():
        if cfg["NKV"] == 2: A(f"s_and_b32 s{sPA}, s{sSEG}, 1\ns_lshl_b32 s{sPA}, s{sPA}, 12\ns_add_u32 s{sPA}, s{sPA}, {WS_PROG}\ns_lshr_b32 s{sPN}, s{sSEG}, 1\ns_add_u32 s{sPN}, s{sPN}, 1")
        else: A(f"s_mov_b32 s{sPA}, {WS_PROG}\ns_add_u32 s{sPN}, s{sSEG}, 1")
        A(f"""s_lshl_b32 s{sXA}, s{sSEG}, 1
        s_add_u32 s{sXA}, s{sXA}, s{sTH}
        s_lshl_b32 s{sXA}, s{sXA}, 2
        s_add_u32 s{sXA}, s{sXA}, s{sW}
        s_lshl_b32 s{sXA}, s{sXA}, 12
        s_add_u32 s{sXA}, s{sXA}, {WS_XN2}
        s_cmp_gt_u32 s{sSEG}, {NSEG - 1}
        s_cselect_b32 s{sPN}, 0, s{sPN}""")
    xld = [f"buffer_load_dwordx4 {v(XR + 4 * i, 4)}, v{vL16}, {S4(rWS)}, s{sXA} offen offset:{i * 1024} sc1" for i in range(4)]
    def tell():
        l = A.lab()
        A(f"""s_cmp_lg_u32 s{sW}, 0
        s_cbranch_scc1 {l}
        s_sub_u32 s{st1}, s{sI}, 1
        v_mov_b32 v{t0}, s{st1}
        s_lshl_b32 s{st0}, s{sRK}, 2
        s_add_u32 s{st0}, s{st0}, s{sFLG}
        s_mov_b64 exec, 1
        buffer_store_dword v{t0}, v{vZ}, {S4(rWS)}, s{st0} offen
        s_mov_b64 exec, -1
        {l}:""")
    next_addr()
    wait_flags(A, vPV, vPG, sPA, sPN)
    fill_ones(A, XR, 16)
    A(f"""L_ffn_loop:
    s_and_b32 s{st0}, s{sI}, 1
    s_lshl_b32 s{st0}, s{st0}, 19
    s_add_u32 s{st0}, s{st0}, s{sIB}
    s_lshl_b32 s{st1}, s{sRK}, 14
    s_add_u32 s{sIN}, s{st0}, s{st1}
    s_lshl_b32 s{st1}, s{sFS}, 10
    s_add_u32 s{sPW}, s{st0}, s{st1}
    s_lshl_b32 s{st1}, s{sTH}, 18
    s_add_u32 s{sPW}, s{sPW}, s{st1}
    s_lshl_b32 s{sROW}, s{sSEG}, 5
    s_add_u32 s{sROW}, s{sROW}, s{sRK}
    s_lshl_b32 s{sROW}, s{sROW}, 10
    s_add_u32 s{sI}, s{sI}, 1
    s_cmp_ge_u32 s{sSEG}, {S1}
    s_addc_u32 s{sSEG}, s{sSEG}, {NF}
    s_cmp_ge_u32 s{sRK}, 28
    s_cbranch_scc1 L_ffn_idle""")
    spin_init(A)
    A("s_branch L_ffn_x1\nL_ffn_x:")
    if cfg["SLEEP"]: A(f"s_sleep {cfg['SLEEP']}")
    for x in xld: A(x)
    spin_step(A)
    A("L_ffn_x1:")
    for i in range(4):
        A(f"s_waitcnt vmcnt({3 - i})\nds_write_b128 v{vXw}, {v(XR + 4 * i, 4)} offset:{16 * i}")
        for k in range(2): A(f"v_max3_u32 v{t0}, v{t0 if i or k else XR}, v{XR + 4 * i + 2 * k}, v{XR + 4 * i + 2 * k + 1}")
    A(f"v_cmp_eq_u32 vcc, -1, v{t0}\ns_cbranch_vccnz L_ffn_x\ns_waitcnt lgkmcnt(0)\ns_barrier")
    timeline(A, cfg, 72, t0)
    NB = 4
    xf = lambda ks: 16 + (ks % NB) * 4
    def rd(ks): A(f"ds_read_b128 {v(xf(ks), 4)}, v{vXr} offset:{ks * 1088}")
    rd(0); rd(1); rd(2)
    tell()
    A(f"s_add_u32 s{st1}, s{sROW}, {WS_HB}")
    R, X, H = 64, 68, 72
    hld = f"buffer_load_dwordx2 {v(H, 2)}, v{vHl}, {S4(rWS)}, s{st1} offen sc1"
    for ks in range(16):
        A(f"s_waitcnt lgkmcnt({min(2, 15 - ks)})")
        for k, (m, b) in enumerate(((0, 0), (1, 0), (0, 1), (1, 1))):
            c = (2 * m + b) * 4
            A(f"{MF} {v(c, 4)}, {a(128 * m + 64 * b + 4 * ks, 4)}, {v(xf(ks), 4)}, {v(c, 4) if ks else 0}")
            if k == 0 and ks + 3 < 16: rd(ks + 3)
            if k == 1 and ks == 1: A(hld)
            if k == 1 and ks == 2: next_addr()
            if k == 1 and ks == 3: A(f"buffer_load_dword v{vPV}, v{vPG}, {S4(rWS)}, s{sPA} offen sc1")
            if k == 1 and ks == 4: A(f"s_sub_u32 s{st2}, s{sI}, 2\ns_max_i32 s{st2}, s{st2}, 0\nbuffer_load_dword v{vFV}, v{vL4}, {S4(rWS)}, s{sFLG} offen sc1")
    timeline(A, cfg, 75, t0)
    E = 16
    A(f"s_waitcnt vmcnt(0)\nv_cmp_gt_u32 vcc, s{sPN}, v{vPV}\nv_cmp_gt_u32 s[{sIB + 2}:{sIB + 3}], s{st2}, v{vFV}")
    for j in range(8): A(f"v_mul_f32 v{E + j}, s{sL2E}, v{j}\nv_exp_f32 v{E + j}, v{E + j}")
    for j in range(8): A(f"v_mul_f32 v{8 + j}, v{8 + j}, v{j}\nv_add_f32 v{E + j}, 1.0, v{E + j}\nv_rcp_f32 v{E + j}, v{E + j}")
    for j in range(8): A(f"v_mul_f32 v{8 + j}, v{8 + j}, v{E + j}")
    pack(A, 24, 8, 4)
    A(f"ds_write_b128 v{vHw}, v[24:27] offset:{L_H}\ns_or_b64 vcc, vcc, s[{sIB + 2}:{sIB + 3}]\ns_cbranch_vccz L_ffn_fok")
    wait_flags(A, vPV, vPG, sPA, sPN)
    wait_flags(A, vFV, vL4, sFLG, st2)
    A("L_ffn_fok:\ns_waitcnt lgkmcnt(0)\ns_barrier")
    timeline(A, cfg, 76, t0)
    HF, ACC, OUT = 16, 32, 0
    for i in range(4): A(f"ds_read_b128 {v(HF + 4 * i, 4)}, v{vL16} offset:{L_H + 1024 * i}")
    ep = []
    for t in range(8):
        for ks in range(4):
            if t == 0: A(f"s_waitcnt lgkmcnt({3 - ks})")
            c = ACC + 4 * t
            A(f"{MF} {v(c, 4)}, {v(128 + 16 * t + 4 * ks, 4)}, {v(HF + 4 * ks, 4)}, {v(c, 4) if ks else 0}")
            if (t & 1 or ks >= 2) and ep: A(ep.pop(0))
        if t & 1:
            p = t >> 1; c = ACC + 8 * p; o = OUT + 4 * (p & 1)
            ep = [f"v_cvt_pk_bf16_f32 v{o + i}, v{c + 2 * i}, v{c + 2 * i + 1}" for i in range(4)]
            ep.append(f"buffer_store_dwordx4 {v(o, 4)}, v{vSt}, {S4(rWS)}, s{sPW} offen offset:{64 * p}")
    while ep: A(ep.pop(0))
    timeline(A, cfg, 77, t0)
    A("s_branch L_ffn_row\nL_ffn_idle:\ns_waitcnt vmcnt(0)\ns_barrier")
    tell()
    next_addr()
    wait_flags(A, vPV, vPG, sPA, sPN)
    A(f"s_add_u32 s{st1}, s{sROW}, {WS_HB}")
    spin_init(A)
    A("s_branch L_ffn_h0\nL_ffn_h:")
    if cfg["SLEEP"]: A(f"s_sleep {cfg['SLEEP']}")
    A(f"L_ffn_h0:\n{hld}")
    spin_step(A)
    A(f"s_waitcnt vmcnt(0)\nv_max_u32 v{t0}, v{H}, v{H + 1}\nv_cmp_eq_u32 vcc, -1, v{t0}\ns_cbranch_vccnz L_ffn_h\nL_ffn_row:")
    D = 16
    row_sum(A, 4, D, R, SEL, vRl, sIN, st0, t0)
    timeline(A, cfg, 79, t0)
    spin_init(A)
    A(f"s_add_u32 s{st1}, s{sROW}, {WS_HB}\nL_ffn_h2:\nv_max_u32 v{t0}, v{H}, v{H + 1}\nv_cmp_eq_u32 vcc, -1, v{t0}\ns_cbranch_vccz L_ffn_hok\n{hld}")
    spin_step(A)
    A("s_waitcnt vmcnt(0)\ns_branch L_ffn_h2\nL_ffn_hok:")
    unpack(A, X, H, 2)
    pack(A, H, R, 2); unpack(A, R, H, 2)
    for i in range(4): A(f"v_add_f32 v{R + i}, v{R + i}, v{X + i}")
    pack(A, H, R, 2)
    A(f"s_mov_b64 exec, s[{sHX}:{sHX + 1}]\nbuffer_store_dwordx2 {v(H, 2)}, v{vRow}, {S4(rD)}, s{sROW} offen\ns_mov_b64 exec, -1")
    timeline(A, cfg, 7, t0, sI)
    A(f"s_cmp_ge_u32 s{sSEG}, {NSEG}\ns_cbranch_scc1 L_ffn_end")
    reset()
    A(f"s_cmp_ge_u32 s{sRK}, 28\ns_cbranch_scc1 L_ffn_loop")
    for x in xld: A(x)
    A("s_branch L_ffn_loop\nL_ffn_end:\ns_endpgm")
```

```python
from common import *
from ln import *

def role_ffn(A, cfg):
    NF = cfg["NFFN"]
    sT, sC, sCNT, sI, sSEG, sFLG, sIN, sPW, sPW1, sB1, sB2, sROW, sL2E, st0, st1, st2 = range(56, 72)
    vLane, vOff1, vOff2, vT, vT0, vL16, vXw, vXr, vHw, vSt, vRl, vRow, vL4, vZ, t0, t1, t2, vPG, vHl, vFV = range(200, 220)
    SELA, NEG, sHX, sIB = 224, 228, 76, 78
    L_H = 36864
    S1 = cfg["S_FFN"]
    A(f"L_ffn:\ns_mov_b32 s{sCNT}, s3\nL_ffn2:\ns_mov_b32 s{sT}, s3")
    timeline(A, cfg, 0, 1)
    srd(A, rD, pX, 1 << 21)
    lane_fields(A, vLane)
    A(f"""v_lshlrev_b32 v{vL16}, 4, v{vLane}
    v_mov_b32 v{vZ}, 0
    s_lshl_b32 s{sC}, s{sT}, 5
    s_add_u32 s{sC}, s{sC}, s{sRK}
    s_cmp_ge_u32 s{sC}, 64
    s_cbranch_scc1 L_ffn_noln""")
    ln_stage(A, sC, vLane, st0, st1)
    A("s_waitcnt vmcnt(0)\ns_barrier")
    signal_done(A, t0, t1, DBG_LN)
    A("L_ffn_noln:")
    row_consts(A, vLane, vRl, vRow, SELA, sHX, t0, t1, st0)
    fill_ones(A, NEG, 4)
    A(f"""
    s_lshl_b32 s{sFLG}, s{sT}, 8
    s_add_u32 s{sFLG}, s{sFLG}, {WS_FLG2}
    s_cmp_eq_u32 s{sT}, {NF}
    s_cbranch_scc1 L_ffn_w
    s_lshl_b32 s{st0}, s{sRK}, 2
    s_add_u32 s{st0}, s{st0}, s{sFLG}
    s_mov_b64 exec, 1
    buffer_store_dword v{vZ}, v{vZ}, {S4(rWS)}, s{st0} offen
    s_mov_b64 exec, -1
    s_lshl_b32 s{sIB}, s{sT}, 21
    s_lshl_b32 s{st0}, s{sRK}, 15
    s_add_u32 s{sIB}, s{sIB}, s{st0}
    s_add_u32 s{sIB}, s{sIB}, {WS_PART2}""")
    for sl in range(2):
        A(f"s_add_u32 s{sIN}, s{sIB}, {sl << 20}")
        inbox_reset(A, 7, NEG, vRl, sIN, st0)
    A("s_waitcnt vmcnt(0)\ns_barrier")
    timeline(A, cfg, 1, t0)
    signal_done(A, t0, t1)
    if "ffn" not in cfg["ENABLE"]:
        A("L_ffn_w:\ns_endpgm"); return
    A("L_ffn_w:")
    srd(A, rA, pW1, 512 * 3584); srd(A, rB, pW3, 512 * 3584); srd(A, rC, pW2, 1792 * 1024); srd(A, rD, pOUT, 1 << 21)
    A(f"""v_lshrrev_b32 v{t0}, 2, v{vLane}
    v_mul_u32_u24 v{t0}, 1088, v{t0}
    v_and_b32 v{t1}, 3, v{vLane}
    v_mul_u32_u24 v{t1}, 272, v{t1}
    s_lshr_b32 s{st0}, s{sW}, 1
    s_mul_i32 s{st0}, s{st0}, 17408
    s_and_b32 s{st1}, s{sW}, 1
    s_lshl_b32 s{st2}, s{st1}, 7
    s_add_u32 s{st0}, s{st0}, s{st2}
    v_add3_u32 v{vXw}, v{t0}, v{t1}, s{st0}
    v_and_b32 v{t0}, 15, v{vLane}
    v_lshrrev_b32 v{t1}, 4, v{vLane}
    v_mul_u32_u24 v{t2}, 272, v{t1}
    v_lshl_add_u32 v{vXr}, v{t0}, 4, v{t2}
    s_lshr_b32 s{st0}, s{sW}, 1
    s_lshl_b32 s{st0}, s{st0}, 10
    s_lshl_b32 s{st1}, s{st1}, 3
    s_add_u32 s{st0}, s{st0}, s{st1}
    v_add_u32 v{vHw}, s{st0}, v{vL16}
    s_lshl_b32 s{st0}, s{sW}, 8
    v_lshlrev_b32 v{t2}, 4, v{t1}
    v_lshl_or_b32 v{t2}, v{t0}, 15, v{t2}
    v_add_u32 v{vSt}, s{st0}, v{t2}
    s_mov_b32 s{sL2E}, 0xbfb8aa3b""")
    A(f"""v_and_b32 v{vL4}, 31, v{vLane}
    v_lshlrev_b32 v{vPG}, 7, v{vL4}
    v_and_b32 v{vL4}, 3, v{vLane}
    v_lshlrev_b32 v{vL4}, 2, v{vL4}
    v_add_u32 v{vL4}, 112, v{vL4}
    s_lshr_b32 s{st0}, s{sW}, 1
    s_lshl_b32 s{st1}, s{st0}, 3
    v_add_u32 v{vHl}, s{st1}, v{vL16}
    s_lshl_b32 s{st1}, s{st0}, 9
    v_add_u32 v{vRow}, s{st1}, v{vRow}
    s_mov_b32 s{sI}, 0
    s_mov_b32 s{sSEG}, s{sCNT}
    s_cmp_ge_u32 s{sRK}, 28
    s_cbranch_scc1 L_ffn_go""")
    dma_col(A, t2, vLane, t0, t1, st0)
    rows_out(A, vOff2, t2, vLane, t0, st0, st1)
    A(f"""s_and_b32 s{st0}, s{sW}, 1
    s_lshl_b32 s{st0}, s{st0}, 8
    s_lshr_b32 s{st1}, s{sW}, 1
    s_lshl_b32 s{st1}, s{st1}, 2
    s_add_u32 s{st0}, s{st0}, s{st1}
    v_lshrrev_b32 v{t0}, 4, v{vLane}
    v_add_u32 v{t0}, s{st0}, v{t0}
    v_lshrrev_b32 v{t1}, 7, v{t2}
    v_lshl_add_u32 v{t0}, v{t1}, 6, v{t0}
    v_mul_u32_u24 v{t0}, 3584, v{t0}
    v_and_b32 v{t2}, 127, v{t2}
    v_add_u32 v{vOff1}, v{t0}, v{t2}
    s_lshl_b32 s{sB1}, s{sRK}, 7
    s_lshl_b32 s{sB2}, s{sRK}, 16""")
    tr_base(A, vT, vLane, t0, t1)
    A(f"s_lshl_b32 s{st0}, s{sW}, 5\nv_xor_b32 v{vT0}, s{st0}, v{vT}")
    chunks = []
    for SC in range(4):
        for m, r in ((0, rA), (1, rB)):
            def ex(A, base, m=m, SC=SC):
                A(f"v_add_u32 v{t0}, {base}, v{vT0}\nv_xor_b32 v{t1}, 128, v{t0}")
                tr_tile(A, "a", 64 * m + 16 * SC, t0); tr_tile(A, "a", 64 * m + 16 * SC + 8, t1)
            chunks.append(dict(srd=r, voff=vOff1, sbase=sB1, offs=[(8 * (i & 1) + 32 * (i >> 1) + 16 * (SC & 1) + 128 * (SC >> 1)) * 3584 for i in range(4)], extract=ex))
    for w in range(4):
        chunks.append(dict(srd=rC, voff=vOff2, sbase=sB2, offs=[r * 1024 + w * 256 for r in ROWS_OUT],
                           extract=lambda A, base, w=w: extract8(A, base, w, vT, t0, t1, lambda t: 128 + 8 * t)))
    load_chunks(A, chunks, 10, cfg["FFN_DEPTH"], 0, st0, st1)
    A("L_ffn_go:")
    timeline(A, cfg, 2, t0)
    wait_done1(A, t0, t1, st0)

    XR, vPV = 160, 192
    sPA, sPN, sXA, sXB = range(72, 76)
    def next_addr():
        if cfg["NKV"] == 2: A(f"s_and_b32 s{sPA}, s{sSEG}, 1\ns_lshl_b32 s{sPA}, s{sPA}, 12\ns_add_u32 s{sPA}, s{sPA}, {WS_PROG}\ns_lshr_b32 s{sPN}, s{sSEG}, 1\ns_add_u32 s{sPN}, s{sPN}, 1")
        else: A(f"s_mov_b32 s{sPA}, {WS_PROG}\ns_add_u32 s{sPN}, s{sSEG}, 1")
        A(f"""s_lshl_b32 s{sXA}, s{sSEG}, 15
        s_lshl_b32 s{sXB}, s{sW}, 13
        s_add_u32 s{sXA}, s{sXA}, s{sXB}
        s_add_u32 s{sXA}, s{sXA}, {WS_XN2}
        s_add_u32 s{sXB}, s{sXA}, 4096""")
    xld = [f"buffer_load_dwordx4 {v(XR + 4 * i, 4)}, v{vL16}, {S4(rWS)}, s{sXA if i < 4 else sXB} offen offset:{(i % 4) * 1024} sc1" for i in range(8)]
    next_addr()
    wait_flags(A, vPV, vPG, sPA, sPN)
    fill_ones(A, XR, 32)
    A("L_ffn_loop:")
    A(f"""s_and_b32 s{st0}, s{sI}, 1
    s_lshl_b32 s{st0}, s{st0}, 20
    s_lshl_b32 s{st1}, s{sT}, 21
    s_add_u32 s{st0}, s{st0}, s{st1}
    s_add_u32 s{st0}, s{st0}, {WS_PART2}
    s_lshl_b32 s{st1}, s{sRK}, 10
    s_add_u32 s{sPW}, s{st0}, s{st1}
    s_add_u32 s{sPW1}, s{sPW}, {16 * 32768}
    s_lshl_b32 s{st1}, s{sRK}, 15
    s_add_u32 s{sIN}, s{st0}, s{st1}
    s_lshl_b32 s{sROW}, s{sSEG}, 15
    s_add_u32 s{sI}, s{sI}, 1
    s_cmp_ge_u32 s{sSEG}, {S1}
    s_addc_u32 s{sSEG}, s{sSEG}, {NF}
    s_cmp_ge_u32 s{sRK}, 28
    s_cbranch_scc1 L_ffn_idle""")
    spin_init(A)
    A("s_branch L_ffn_x1\nL_ffn_x:")
    if cfg["SLEEP"]: A(f"s_sleep {cfg['SLEEP']}")
    for x in xld: A(x)
    spin_step(A)
    A("L_ffn_x1:")
    for i in range(8):
        A(f"s_waitcnt vmcnt({7 - i})\nds_write_b128 v{vXw}, {v(XR + 4 * i, 4)} offset:{16 * i}")
        for k in range(2): A(f"v_max3_u32 v{t0}, v{t0 if i or k else XR}, v{XR + 4 * i + 2 * k}, v{XR + 4 * i + 2 * k + 1}")
    A(f"v_cmp_eq_u32 vcc, -1, v{t0}\ns_cbranch_vccnz L_ffn_x\ns_waitcnt lgkmcnt(0)\ns_barrier")
    timeline(A, cfg, 72, t0)
    NB = 4
    xf = lambda ks, a_: 16 + ((ks % NB) * 2 + a_) * 4
    def rd(ks):
        for a_ in range(2): A(f"ds_read_b128 {v(xf(ks, a_), 4)}, v{vXr} offset:{a_ * 17408 + ks * 1088}")
    rd(0); rd(1); rd(2)
    next_addr()
    A(f"s_cmp_gt_u32 s{sSEG}, {NSEG - 1}\ns_cselect_b32 s{sPN}, 0, s{sPN}\nbuffer_load_dword v{vPV}, v{vPG}, {S4(rWS)}, s{sPA} offen sc1")
    A(f"s_sub_u32 s{st2}, s{sI}, 2\ns_max_i32 s{st2}, s{st2}, 0\nbuffer_load_dword v{vFV}, v{vL4}, {S4(rWS)}, s{sFLG} offen sc1")
    for ks in range(16):
        A(f"s_waitcnt lgkmcnt({min(4, 2 * (15 - ks))})")
        for k, (a_, m) in enumerate(((0, 0), (0, 1), (1, 0), (1, 1))):
            c = (2 * m + a_) * 4
            A(f"{MF} {v(c, 4)}, {a(m * 64 + 4 * ks, 4)}, {v(xf(ks, a_), 4)}, {v(c, 4) if ks else 0}")
            if k == 0 and ks + 3 < 16: rd(ks + 3)
    timeline(A, cfg, 75, t0)
    E = 16
    for a_ in range(2):
        g, u = 4 * a_, 8 + 4 * a_
        for j in range(4): A(f"v_mul_f32 v{E + j}, s{sL2E}, v{g + j}\nv_exp_f32 v{E + j}, v{E + j}")
        for j in range(4): A(f"v_mul_f32 v{u + j}, v{u + j}, v{g + j}\nv_add_f32 v{E + j}, 1.0, v{E + j}\nv_rcp_f32 v{E + j}, v{E + j}")
        for j in range(4): A(f"v_mul_f32 v{u + j}, v{u + j}, v{E + j}")
        pack(A, 24 + 2 * a_, u, 2)
        A(f"ds_write_b64 v{vHw}, {v(24 + 2 * a_, 2)} offset:{L_H + 2048 * a_}")
    A(f"s_waitcnt vmcnt(0)\nv_cmp_gt_u32 vcc, s{sPN}, v{vPV}\ns_cbranch_vccz L_ffn_pok")
    wait_flags(A, vPV, vPG, sPA, sPN)
    A(f"L_ffn_pok:\nv_cmp_gt_u32 vcc, s{st2}, v{vFV}\ns_cbranch_vccz L_ffn_fok")
    wait_flags(A, vFV, vL4, sFLG, st2)
    A("L_ffn_fok:\ns_waitcnt lgkmcnt(0)\ns_barrier")
    timeline(A, cfg, 76, t0)
    HF, ACC, OUT = 32, 64, 16
    for i in range(4): A(f"ds_read_b128 {v(HF + 4 * i, 4)}, v{vL16} offset:{L_H + 1024 * i}")
    A("s_waitcnt lgkmcnt(0)")
    proj_out(A, 2, lambda t, ks: 128 + 8 * t + 4 * ks, HF, ACC, OUT, vSt, sPW)
    timeline(A, cfg, 77, t0)
    A("s_branch L_ffn_row\nL_ffn_idle:")
    next_addr()
    A(f"s_cmp_gt_u32 s{sSEG}, {NSEG - 1}\ns_cselect_b32 s{sPN}, 0, s{sPN}")
    wait_flags(A, vPV, vPG, sPA, sPN)
    if cfg["SLEEP"]:
        pass
    D, R, X, H = 0, 128, 136, 144
    A(f"""L_ffn_row:
    s_lshl_b32 s{st0}, s{sRK}, 10
    s_add_u32 s{sROW}, s{sROW}, s{st0}
    s_add_u32 s{st1}, s{sROW}, {WS_HB}""")
    hld = f"buffer_load_dwordx2 {v(H, 2)}, v{vHl}, {S4(rWS)}, s{st1} offen sc1"
    spin_init(A)
    A("s_branch L_ffn_h0\nL_ffn_h:")
    if cfg["SLEEP"]: A(f"s_sleep {cfg['SLEEP']}")
    A(f"""L_ffn_h0:
    {hld}""")
    A(f"s_cmp_lt_u32 s{sRK}, 28\ns_cbranch_scc1 L_ffn_h1")
    spin_step(A)
    A(f"s_waitcnt vmcnt(0)\nv_max_u32 v{t0}, v{H}, v{H + 1}\nv_cmp_eq_u32 vcc, -1, v{t0}\ns_cbranch_vccnz L_ffn_h\nL_ffn_h1:")
    row_sum(A, 7, D, R, SELA, vRl, sIN, st0, t0)
    timeline(A, cfg, 79, t0)
    A(f"s_cmp_ge_u32 s{sRK}, 28\ns_cbranch_scc1 L_ffn_nox\ns_cmp_ge_u32 s{sSEG}, {NSEG}\ns_cbranch_scc1 L_ffn_nox")
    for x in xld: A(x)
    A("L_ffn_nox:")
    spin_init(A)
    A(f"L_ffn_h2:\nv_max_u32 v{t0}, v{H}, v{H + 1}\nv_cmp_eq_u32 vcc, -1, v{t0}\ns_cbranch_vccz L_ffn_hok\n{hld}")
    spin_step(A)
    A("s_waitcnt vmcnt(0)\ns_branch L_ffn_h2\nL_ffn_hok:")
    unpack(A, X, H, 2)
    pack(A, H, R, 2); unpack(A, R, H, 2)
    for i in range(4): A(f"v_add_f32 v{R + i}, v{R + i}, v{X + i}")
    pack(A, H, R, 2)
    A(f"s_mov_b64 exec, s[{sHX}:{sHX + 1}]\nbuffer_store_dwordx2 {v(H, 2)}, v{vRow}, {S4(rD)}, s{sROW} offen\ns_mov_b64 exec, -1")
    inbox_reset(A, 7, NEG, vRl, sIN, st0)
    A(f"""s_cmp_lt_u32 s{sRK}, 28
    s_cbranch_scc1 L_ffn_next
    v_mov_b32 v{t0}, s{sI}
    s_lshl_b32 s{st0}, s{sRK}, 2
    s_add_u32 s{st0}, s{st0}, s{sFLG}
    s_waitcnt vmcnt(0)
    s_barrier
    s_mov_b64 exec, 1
    buffer_store_dword v{t0}, v{vZ}, {S4(rWS)}, s{st0} offen
    s_mov_b64 exec, -1
    L_ffn_next:""")
    timeline(A, cfg, 7, t0, sI)
    A(f"""s_cmp_lt_u32 s{sSEG}, {NSEG}
    s_cbranch_scc1 L_ffn_loop
    s_endpgm""")
```

```python
from common import *

def role_kv(A, cfg):
    NKV = cfg["NKV"]
    sT, sCNT, sI, sSEG, sHB, sXB, sKVO, sPROG, st0, st1, st2, sCL = range(56, 68)
    vLane, vOff, vT0, vT1, vL16, vXr, t0, t1, t2 = 100, 101, 102, 103, 104, 105, 106, 107, 108
    A(f"L_kv:\ns_mov_b32 s{sT}, s3")
    timeline(A, cfg, 0, 1)
    srd(A, rA, pWK, 1 << 22); srd(A, rB, pWV, 1 << 22)
    lane_fields(A, vLane)
    A(f"""s_lshl_b32 s{sPROG}, s{sT}, 5
    s_add_u32 s{sPROG}, s{sPROG}, s{sRK}
    s_lshl_b32 s{sPROG}, s{sPROG}, 7
    s_add_u32 s{sPROG}, s{sPROG}, {WS_PROG}
    v_mov_b32 v{t2}, 0
    s_mov_b64 exec, 1
    buffer_store_dword v{t2}, v{t2}, {S4(rWS)}, s{sPROG} offen sc1
    s_mov_b64 exec, -1""")
    conv = NKV == 2 and min(cfg["S_QO"], cfg["S_FFN"]) < NSEG
    if conv:
        assert not (cfg['F2D'] and cfg['S_FFN'] < NSEG)
        assert (cfg["S_QO"] % cfg["NQO"] == 0 or cfg["S_QO"] >= NSEG) and cfg["S_FFN"] % cfg["NFFN"] == 0
        fill_ones(A, 80, 4)
        if cfg["S_QO"] >= NSEG: A(f"s_cmp_eq_u32 s{sT}, 0\ns_cbranch_scc1 L_kv_nc")
        A(f"""s_mov_b32 s{st0}, {WS_PART2 + (cfg['NFFN'] << 21)}
        s_cmp_eq_u32 s{sT}, 0
        s_cselect_b32 s{st0}, {WS_PART1 + (cfg['NQO'] << 21)}, s{st0}
        s_lshl_b32 s{st1}, s{sRK}, 15
        s_add_u32 s{st0}, s{st0}, s{st1}
        s_lshl_b32 s{st1}, s{sW}, 13
        s_add_u32 s{st0}, s{st0}, s{st1}
        v_lshlrev_b32 v{vL16}, 4, v{vLane}""")
        clear_region(A, vL16, 80, st0, 8, "", st1)
        A(f"s_add_u32 s{st0}, s{st0}, {1 << 20}")
        clear_region(A, vL16, 80, st0, 8, "", st1)
        A(f"""s_lshl_b32 s{st0}, s{sRK}, 2
        s_add_u32 s{st0}, s{st0}, {WS_FLG2 + (cfg['NFFN'] << 8)}
        s_cmp_eq_u32 s{sT}, 0
        s_cselect_b32 s{st0}, {WS_SIZE}, s{st0}
        s_mov_b64 exec, 1
        buffer_store_dword v{t2}, v{t2}, {S4(rWS)}, s{st0} offen
        s_mov_b64 exec, -1
        L_kv_nc:""")
    dma_col(A, vOff, vLane, t0, t1, st0)
    A(f"""v_lshrrev_b32 v{t0}, 4, v{vLane}
    s_lshl_b32 s{st0}, s{sW}, 2
    v_add_u32 v{t0}, s{st0}, v{t0}
    v_lshl_add_u32 v{vOff}, v{t0}, 13, v{vOff}
    s_lshl_b32 s{sHB}, s{sRK}, 8""")
    tr_base(A, vT0, vLane, t0, t1)
    A(f"""s_lshl_b32 s{st0}, s{sW}, 6
    v_xor_b32 v{vT0}, s{st0}, v{vT0}
    v_lshlrev_b32 v{vL16}, 4, v{vLane}""")
    chunks = []
    for C in range(8):
        for m, r in ((0, rA), (1, rB)):
            def ex(A, base, m=m, C=C):
                A(f"v_add_u32 v{t0}, {base}, v{vT0}\nv_xor_b32 v{t1}, 32, v{t0}")
                tr_tile(A, "a", m * 128 + C * 8, t0)
                tr_tile(A, "a", m * 128 + 64 + C * 8, t1)
            chunks.append(dict(srd=r, voff=vOff, sbase=sHB, offs=[(64 * C + 16 * i) * 8192 for i in range(4)], extract=ex))
    load_chunks(A, chunks, 10, cfg["KV_DEPTH"], 0, st0, st1, nt='nt' if 'k' in cfg['NT'] else '', hooks={0: lambda: signal_done(A, t0, t1)})
    timeline(A, cfg, 1, t0)
    wait_done1(A, t0, t1, st0, DBG_LN, 64)
    timeline(A, cfg, 2, t0)
    cnt_expr = [(NSEG - t + NKV - 1) // NKV for t in range(NKV)]
    A(f"s_mov_b32 s{sCNT}, {cnt_expr[0]}")
    for t in range(1, NKV):
        if cnt_expr[t] != cnt_expr[0]: A(f"s_cmp_eq_u32 s{sT}, {t}\ns_cselect_b32 s{sCNT}, {cnt_expr[t]}, s{sCNT}")
    sXR, sXS, sO0, sO1, sO2 = range(68, 73)
    def dma_setup(segreg, bufreg):
        return [f"s_lshl_b32 s{sXS}, s{segreg}, 15", f"s_lshl_b32 s{st1}, s{sW}, 13", f"s_add_u32 s{sXS}, s{sXS}, s{st1}",
                f"s_add_u32 m0, s{bufreg}, s{st1}", f"s_add_u32 s{sXS}, s{sXS}, {WS_XN}"]
    def dma(i):
        pre = f"s_add_u32 s{sXS}, s{sXS}, 4096\ns_add_u32 m0, m0, 4096\ns_nop 0\n" if i == 4 else ""
        return pre + f"buffer_load_dwordx4 v{vL16}, {S4(rWS)}, s{sXS} offen offset:{(i % 4) * 1024} sc1 lds"
    A(f"s_mov_b32 s{sI}, 0\ns_mov_b32 s{sSEG}, s{sT}\ns_mov_b32 s{sXB}, 0")
    for k in range(2):
        if k: A(f"s_add_u32 s{st2}, s{sSEG}, {NKV}\ns_mov_b32 s{sXB}, 32768")
        for x in dma_setup(st2 if k else sSEG, sXB): A(x)
        for i in range(8): A(dma(i))
    fill_ones(A, 80, 4)
    A(f"""s_lshl_b32 s{sCL}, s{sRK}, 10
    s_and_b32 s{st0}, s{sW}, 1
    s_mul_i32 s{st0}, s{st0}, {WS_HB - WS_XN2}
    s_add_u32 s{sCL}, s{sCL}, s{st0}
    s_add_u32 s{sCL}, s{sCL}, {WS_XN2}
    s_mov_b32 s{sXR}, 0
    s_mov_b32 s{sXB}, 65536
    s_mov_b32 s{sO0}, {WS_SIZE}
    s_mov_b32 s{sO1}, {WS_SIZE}
    s_mov_b32 s{sO2}, {WS_SIZE}
    s_waitcnt vmcnt(8)""")
    outs = [f"buffer_store_dwordx4 {v(72 + 4 * a_, 4)}, v{vL16}, {S4(rWS)}, s{sO0} offen offset:{2048 + a_ * 1024} {cfg['KVST']}" for a_ in range(2)] + \
           [f"buffer_store_dwordx4 {v(64 + 4 * b, 4)}, v{vL16}, {S4(rWS)}, s{sO0} offen offset:{b * 1024} {cfg['KVST']}" for b in range(2)] + \
           [f"buffer_store_dwordx4 v[80:83], v{vL16}, {S4(rWS)}, s{x} offen sc1" for x in (sO1, sO2)]
    def publish():
        l = A.lab()
        A(f"""s_cmp_lg_u32 s{sW}, 0
        s_cbranch_scc1 {l}
        v_mov_b32 v{t0}, s{sI}
        s_mov_b64 exec, 1
        buffer_store_dword v{t0}, v{t2}, {S4(rWS)}, s{sPROG} offen sc1
        s_mov_b64 exec, -1
        {l}:""")
    A(f"L_kv_loop:\ns_barrier\nv_add_u32 v{vXr}, s{sXR}, v{vL16}")
    NB = 3
    xf = lambda ks, a_: 32 + ((ks % NB) * 2 + a_) * 4
    def rd(ks):
        for a_ in range(2): A(f"ds_read_b128 {v(xf(ks, a_), 4)}, v{vXr} offset:{(a_ * 16 + ks) * 1024}")
    rd(0); rd(1)
    A(f"s_add_u32 s{st2}, s{sSEG}, {2 * NKV}\ns_min_u32 s{st2}, s{st2}, {NSEG - 1}")
    for x in dma_setup(st2, sXB): A(x)
    vq = outs + [dma(i) for i in range(8)]
    for ks in range(16):
        if ks == 14:
            A("s_waitcnt vmcnt(8)\ns_barrier"); publish()
        A(f"s_waitcnt lgkmcnt({2 if ks < 15 else 0})")
        k = 0
        for a_ in range(2):
            for b in range(2):
                c = (2 * b + a_) * 4
                A(f"v_mfma_f32_16x16x32_bf16 {v(c, 4)}, {a(b * 64 + 4 * ks, 4)}, {v(xf(ks, a_), 4)}, {v(c, 4) if ks else 0}")
                c = 16 + (2 * b + a_) * 4
                A(f"v_mfma_f32_16x16x32_bf16 {v(c, 4)}, {v(xf(ks, a_), 4)}, {a(128 + b * 64 + 4 * ks, 4)}, {v(c, 4) if ks else 0}")
                k += 1
                if k == 1 and ks + 2 < 16: rd(ks + 2)
                if k == 3 and vq: A(vq.pop(0))
    A(f"""s_lshl_b32 s{sKVO}, s{sSEG}, 5
    s_add_u32 s{sKVO}, s{sKVO}, s{sRK}
    s_lshl_b32 s{sKVO}, s{sKVO}, 2
    s_add_u32 s{sKVO}, s{sKVO}, s{sW}
    s_lshl_b32 s{sO1}, s{sKVO}, 10
    s_add_u32 s{sO1}, s{sO1}, {WS_KM}
    s_lshl_b32 s{sO2}, s{sSEG}, 15
    s_add_u32 s{sO2}, s{sO2}, s{sCL}
    s_lshl_b32 s{sO0}, s{sKVO}, 12
    s_add_u32 s{sO0}, s{sO0}, {WS_KV}
    s_add_u32 s{sXR}, s{sXR}, 32768
    s_cmp_eq_u32 s{sXR}, 98304
    s_cselect_b32 s{sXR}, 0, s{sXR}
    s_add_u32 s{sXB}, s{sXB}, 32768
    s_cmp_eq_u32 s{sXB}, 98304
    s_cselect_b32 s{sXB}, 0, s{sXB}""")
    for a_ in range(2):
        for j in range(4): A(f"v_cvt_pk_bf16_f32 v{72 + 4 * a_ + j}, v{a_ * 4 + j}, v{(2 + a_) * 4 + j}")
    for b in range(2):
        for a_ in range(2):
            c = 16 + (2 * b + a_) * 4
            for j in range(2): A(f"v_cvt_pk_bf16_f32 v{64 + 4 * b + 2 * a_ + j}, v{c + 2 * j}, v{c + 2 * j + 1}")
    timeline(A, cfg, 8, t0, sI)
    A(f"""s_add_u32 s{sI}, s{sI}, 1
    s_add_u32 s{sSEG}, s{sSEG}, {NKV}
    s_cmp_le_u32 s{sI}, {cfg['KVFL']}
    s_cbranch_scc1 L_kv_flush
    s_cmp_lt_u32 s{sI}, s{sCNT}
    s_cbranch_scc1 L_kv_loop
    L_kv_flush:""")
    for x in outs: A(x)
    A(f"s_mov_b32 s{sO0}, {WS_SIZE}\ns_mov_b32 s{sO1}, {WS_SIZE}\ns_mov_b32 s{sO2}, {WS_SIZE}\ns_waitcnt vmcnt(0)\ns_barrier")
    publish()
    if cfg["PROF"] == -1:
        A(f"s_cmp_lg_u32 s{sI}, 1\ns_cbranch_scc1 L_dg3"); timeline(A, cfg, 9, t0); A("L_dg3:")
    A(f"s_cmp_lt_u32 s{sI}, s{sCNT}\ns_cbranch_scc1 L_kv_loop")
    if conv and "qo" in cfg["ENABLE"]:
        A(f"""v_mov_b32 v0, v{vLane}
        s_cmp_eq_u32 s{sT}, 0
        s_cbranch_scc0 L_kv_ffn
        s_mov_b32 s3, {cfg['NQO']}
        s_mov_b32 s57, {cfg['S_QO'] + cfg['NQO']}
        {'s_branch L_qo2' if cfg['S_QO'] < NSEG else 's_endpgm'}
        L_kv_ffn:
        s_mov_b32 s3, {cfg['NFFN']}
        s_mov_b32 s58, {cfg['S_FFN'] + cfg['NFFN']}
        s_branch L_ffn2""")
    else: A("s_endpgm")
```

```python
from common import *
from ln import round_bf, ln_scale

def role_qo(A, cfg):
    NQO, NKV = cfg["NQO"], cfg["NKV"]
    sT, sCNT, sI, sSEG, sHB, sFLG, sIN, sPW, sPW1, sKM, sNEED, sPG, sC, sROW, st0, st1, st2 = range(56, 73)
    sMSK, sHX = 74, 90
    NEG, L_R = 228, 110592
    sBUF, sNX, sRS = 92, 93, 94
    vB, vBo, vVb, vQw, vRr, vPV = 248, 249, 250, 251, 252, 253
    L_X, L_KV, L_O, BUF = 0, 32768, 0, 49152
    L_Q, L_KMK, L_KMV = 98304, 106496, 108544
    vLane, vOffQ, vOffO, vT, vT0, vL16, vWl0, vWk, vWv, vRk, vRv, vSt, vRl, vRow, vL4, vQr, vVr, vZ, t0, t1, t2 = range(200, 221)
    SELA, ONES, PM, KMD = 224, 232, 236, 240
    SW = cfg["S_QO"]
    A(f"L_qo:\ns_mov_b32 s{sCNT}, s3\nL_qo2:\ns_mov_b32 s{sT}, s3")
    timeline(A, cfg, 0, 1)
    srd(A, rA, pWQ, 1 << 22); srd(A, rB, pWO, 1 << 22); srd(A, rD, pX, 1 << 21)
    lane_fields(A, vLane)
    A(f"""v_lshlrev_b32 v{vL16}, 4, v{vLane}
    s_lshl_b32 s{st0}, s{sW}, 12
    v_add_u32 v{vWl0}, s{st0}, v{vL16}
    v_mov_b32 v{vZ}, 0""")
    A(f"""
    s_lshl_b32 s{sFLG}, s{sT}, 21
    s_lshl_b32 s{st0}, s{sRK}, 15
    s_add_u32 s{sFLG}, s{sFLG}, s{st0}
    s_add_u32 s{sFLG}, s{sFLG}, {WS_PART1}""")
    row_consts(A, vLane, vRl, vRow, SELA, sHX, t0, t1, st0)
    fill_ones(A, NEG, 4)
    A(f"s_cmp_eq_u32 s{sT}, {NQO}\ns_cbranch_scc1 L_qo_w")
    for sl in range(0 if cfg.get("NOCLR") else 2):
        A(f"s_add_u32 s{sIN}, s{sFLG}, {sl << 20}")
        inbox_reset(A, 8, NEG, vRl, sIN, st0)
    A("s_waitcnt vmcnt(0)\ns_barrier")
    signal_done(A, t0, t1)
    if "qo" not in cfg["ENABLE"]:
        A("L_qo_w:\ns_endpgm"); return
    if cfg["QO_LATE"] == 2: wait_done1(A, t0, t1, st0, DBG_CH, 32)
    elif cfg["QO_LATE"]: wait_done1(A, t0, t1, st0, DBG_LN, 64)
    A("L_qo_w:")
    dma_col(A, t2, vLane, t0, t1, st0)
    A(f"""v_lshrrev_b32 v{t0}, 4, v{vLane}
    s_lshl_b32 s{st0}, s{sW}, 2
    v_add_u32 v{t0}, s{st0}, v{t0}
    v_lshl_add_u32 v{vOffQ}, v{t0}, 13, v{t2}
    s_lshl_b32 s{sHB}, s{sRK}, 8
    s_lshl_b32 s{sIN}, s{sRK}, 17""")
    rows_out(A, vOffO, t2, vLane, t0, st0, st1)
    tr_base(A, vT, vLane, t0, t1)
    A(f"s_lshl_b32 s{st0}, s{sW}, 6\nv_xor_b32 v{vT0}, s{st0}, v{vT}")
    chunks = []
    for C in range(8):
        def ex(A, base, C=C):
            A(f"v_add_u32 v{t0}, {base}, v{vT0}\nv_xor_b32 v{t1}, 32, v{t0}")
            tr_tile(A, "a", C * 8, t0); tr_tile(A, "a", 64 + C * 8, t1)
        chunks.append(dict(srd=rA, voff=vOffQ, sbase=sHB, offs=[(64 * C + 16 * i) * 8192 for i in range(4)], extract=ex))
    for u in range(2):
        for w in range(4):
            chunks.append(dict(srd=rB, voff=vOffO, sbase=sIN, offs=[(64 * u + r) * 1024 + w * 256 for r in ROWS_OUT],
                               extract=lambda A, base, u=u, w=w: extract8(A, base, w, vT, t0, t1, lambda t: 128 + 16 * t + 8 * u)))
    load_chunks(A, chunks, 10, cfg["QO_DEPTH"], 0, st0, st1, nt='nt' if 'q' in cfg['NT'] else '')
    timeline(A, cfg, 1, t0)
    A(f"""v_and_b32 v{t0}, 15, v{vLane}
    v_lshrrev_b32 v{t1}, 4, v{vLane}
    v_and_b32 v{vL4}, 31, v{vLane}
    v_lshlrev_b32 v{vL4}, 2, v{vL4}
    s_lshl_b32 s{st0}, s{sW}, 9
    v_lshlrev_b32 v{t2}, 2, v{t0}
    v_lshl_or_b32 v{t2}, v{t1}, 7, v{t2}
    v_add_u32 v{t2}, s{st0}, v{t2}
    v_add_u32 v{vWk}, {L_KMK}, v{t2}
    v_lshl_add_u32 v{vWv}, v{vLane}, 3, s{st0}
    v_add_u32 v{vWv}, {L_KMV}, v{vWv}
    v_lshrrev_b32 v{t2}, 2, v{t0}
    v_lshlrev_b32 v{t2}, 7, v{t2}
    v_and_b32 v{vRk}, 1, v{t0}
    v_lshl_or_b32 v{t2}, v{vRk}, 6, v{t2}
    v_lshl_or_b32 v{t2}, v{t1}, 4, v{t2}
    v_add_u32 v{vRk}, {L_KMK}, v{t2}
    s_lshr_b32 s{st1}, s{sW}, 1
    s_lshl_b32 s{st0}, s{st1}, 10
    s_add_u32 s{st0}, s{st0}, {L_KMV}
    v_lshl_add_u32 v{vRv}, v{vLane}, 3, s{st0}
    s_lshl_b32 s{st0}, s{st1}, 13
    s_add_u32 s{st0}, s{st0}, {L_KV}
    v_add_u32 v{vVr}, s{st0}, v{vL16}
    s_and_b32 s{st1}, s{sW}, 1
    s_lshl_b32 s{st0}, s{st1}, 12
    v_add_u32 v{vBo}, s{st0}, v{vL16}
    v_add_u32 v{vQr}, {L_Q}, v{vBo}
    s_lshr_b32 s{st0}, s{sW}, 1
    s_lshl_b32 s{st0}, s{st0}, 11
    v_add_u32 v{vBo}, s{st0}, v{vBo}
    s_lshl_b32 s{st0}, s{sW}, 10
    s_add_u32 s{st0}, s{st0}, {L_Q}
    v_add_u32 v{vQw}, s{st0}, v{vL16}
    v_add_u32 v{vRr}, {L_R}, v{vL16}
    s_lshl_b32 s{st0}, s{sW}, 8
    v_lshlrev_b32 v{t2}, 4, v{t1}
    v_lshl_or_b32 v{t2}, v{t0}, 15, v{t2}
    v_add_u32 v{vSt}, s{st0}, v{t2}
    s_lshl_b32 s{st1}, s{st1}, 4
    v_add_u32 v{t0}, s{st1}, v{t0}
    v_lshlrev_b32 v{t1}, 2, v{t1}
    v_sub_u32 v{t0}, v{t0}, v{t1}
    s_mov_b32 s{sC}, {C_SCALE:#x}
    v_mov_b32 v{PM + 1}, 0
    v_mov_b32 v{PM + 2}, 0""")
    for i in range(8): A(f"v_cmp_le_i32 s[{sMSK + 2 * i}:{sMSK + 2 * i + 1}], {16 * (i >> 2) + (i & 3)}, v{t0}")
    for i in range(4): A(f"v_mov_b32 v{ONES + i}, 0x3f803f80")
    wait_done1(A, t0, t1, st0)
    A(f"s_mov_b32 s{sI}, 0\ns_mov_b32 s{sSEG}, s{sCNT}")

    def prog_addr(seg):
        if NKV == 2: A(f"s_and_b32 s{sPG}, s{seg}, 1\ns_lshl_b32 s{sPG}, s{sPG}, 5\ns_add_u32 s{sPG}, s{sPG}, s{sRK}\ns_lshr_b32 s{sNEED}, s{seg}, 1")
        else: A(f"s_mov_b32 s{sPG}, s{sRK}\ns_mov_b32 s{sNEED}, s{seg}")
        A(f"s_lshl_b32 s{sPG}, s{sPG}, 7\ns_add_u32 s{sPG}, s{sPG}, {WS_PROG}")
    pld = f"buffer_load_dword v{vPV}, v{vZ}, {S4(rWS)}, s{sPG} offen sc1"
    def fetch(seg):
        l, l2 = A.lab(), A.lab()
        spin_init(A)
        A(f"{l}:\nv_readfirstlane_b32 s{st0}, v{vPV}\ns_cmp_gt_u32 s{st0}, s{sNEED}\ns_cbranch_scc1 {l2}\n{pld}")
        spin_step(A)
        A(f"""s_waitcnt vmcnt(0)
        s_branch {l}
        {l2}:
        s_lshl_b32 s{st0}, s{seg}, 15
        s_lshl_b32 s{st1}, s{sW}, 13
        s_add_u32 s{st0}, s{st0}, s{st1}
        s_add_u32 m0, s{st1}, s{sBUF}
        s_add_u32 s{st0}, s{st0}, {WS_XN}""")
        for i in range(8):
            if i == 4: A(f"s_add_u32 s{st0}, s{st0}, 4096\ns_add_u32 m0, m0, 4096\ns_nop 0")
            A(f"buffer_load_dwordx4 v{vL16}, {S4(rWS)}, s{st0} offen offset:{(i % 4) * 1024} sc1 lds")
        A(f"""s_lshl_b32 s{st0}, s{seg}, 5
        s_add_u32 s{st0}, s{st0}, s{sRK}
        s_lshl_b32 s{st0}, s{st0}, 14
        s_add_u32 s{st0}, s{st0}, {WS_KV}
        s_lshl_b32 s{st1}, s{sW}, 12
        s_add_u32 s{st1}, s{st1}, s{sBUF}
        s_add_u32 m0, s{st1}, {L_KV}
        s_nop 0""")
        for i in range(4): A(f"buffer_load_dwordx4 v{vWl0}, {S4(rWS)}, s{st0} offen offset:{1024 * i} sc1 lds")
    A(f"s_mov_b32 s{sBUF}, 0\ns_mov_b32 s{sRS}, {WS_SIZE}\nv_mov_b32 v{vPV}, 0")
    prog_addr(sSEG); fetch(sSEG)
    A("s_waitcnt vmcnt(0)\ns_barrier")

    A(f"""L_qo_loop:
    v_add_u32 v{vB}, s{sBUF}, v{vL16}
    v_add_u32 v{vVb}, s{sBUF}, v{vVr}
    s_cmp_ge_u32 s{sSEG}, {SW}
    s_addc_u32 s{sNX}, s{sSEG}, {NQO}""")
    prog_addr(sNX)
    A(f"""s_lshl_b32 s{sKM}, s{sSEG}, 5
    s_add_u32 s{sKM}, s{sKM}, s{sRK}
    s_lshl_b32 s{sKM}, s{sKM}, 2
    s_add_u32 s{sKM}, s{sKM}, s{sW}
    s_lshl_b32 s{sKM}, s{sKM}, 10
    s_add_u32 s{sKM}, s{sKM}, {WS_KM}""")
    timeline(A, cfg, 75, t0)
    vq = [pld] + inbox_ops(8, NEG, vRl, sRS, st0, True)
    NB = 3
    xf = lambda ks, a_: 16 + ((ks % NB) * 2 + a_) * 4
    def rd(ks):
        for a_ in range(2): A(f"ds_read_b128 {v(xf(ks, a_), 4)}, v{vB} offset:{L_X + (a_ * 16 + ks) * 1024}")
    rd(0); rd(1)
    for ks in range(16):
        A(f"s_waitcnt lgkmcnt({2 if ks < 15 else 0})")
        for k, (a_, b) in enumerate(((0, 0), (0, 1), (1, 0), (1, 1))):
            c = (2 * b + a_) * 4
            A(f"{MF} {v(c, 4)}, {a(b * 64 + 4 * ks, 4)}, {v(xf(ks, a_), 4)}, {v(c, 4) if ks else 0}")
            if k == 0 and ks + 2 < 16: rd(ks + 2)
            if k == 2 and vq and ks % 3 != 2: A(vq.pop(0))
    assert not vq
    for a_ in range(2):
        for j in range(4): A(f"v_cvt_pk_bf16_f32 v{16 + 4 * a_ + j}, v{a_ * 4 + j}, v{(2 + a_) * 4 + j}")
        A(f"ds_write_b128 v{vQw}, {v(16 + 4 * a_, 4)} offset:{a_ * 4096}")
    A("s_waitcnt vmcnt(8) lgkmcnt(0)\ns_barrier")
    timeline(A, cfg, 76, t0)
    QF, KF, VF, MFR, VM = 32, 48, 80, 96, 112
    S0, Sm, P, O, SU = 0, 8, 12, 116, 132
    for t in range(4):
        A(f"ds_read_b128 {v(QF + 4 * t, 4)}, v{vQr} offset:{1024 * t}")
        for c in range(2): A(f"ds_read_b128 {v(KF + 4 * (2 * t + c), 4)}, v{vB} offset:{L_KV + 4096 * t + 2048 + 1024 * c}")
    for t in range(4):
        A(f"s_waitcnt lgkmcnt({9 - 3 * t})")
        for c in range(2): A(f"{MF} {v(S0 + 4 * c, 4)}, {v(KF + 4 * (2 * t + c), 4)}, {v(QF + 4 * t, 4)}, {v(S0 + 4 * c, 4) if t else 0}")
    for be in range(4): A(f"ds_read_b128 {v(VF + 4 * be, 4)}, v{vVb} offset:{4096 * (be >> 1) + 1024 * (be & 1)}")
    A(f"""s_and_b32 s{st0}, s{sI}, 1
    s_lshl_b32 s{st0}, s{st0}, 20
    s_lshl_b32 s{st1}, s{sT}, 21
    s_add_u32 s{st0}, s{st0}, s{st1}
    s_add_u32 s{st0}, s{st0}, {WS_PART1}
    s_lshl_b32 s{st1}, s{sRK}, 10
    s_add_u32 s{sPW}, s{st0}, s{st1}
    s_add_u32 s{sPW1}, s{sPW}, {16 * 32768}
    s_lshl_b32 s{st1}, s{sRK}, 15
    s_add_u32 s{sIN}, s{st0}, s{st1}
    s_lshl_b32 s{sROW}, s{sSEG}, 5
    s_add_u32 s{sROW}, s{sROW}, s{sRK}
    s_lshl_b32 s{sROW}, s{sROW}, 10
    v_mov_b32 v{t2}, 0xd028965f""")
    for i in range(8): A(f"v_cndmask_b32 v{S0 + i}, v{t2}, v{S0 + i}, s[{sMSK + 2 * i}:{sMSK + 2 * i + 1}]")
    m1, m2, m3, tt = 136, 137, 138, 139
    A(f"""v_max3_f32 v{m1}, v{S0}, v{S0 + 1}, v{S0 + 2}
    v_max3_f32 v{m2}, v{S0 + 3}, v{S0 + 4}, v{S0 + 5}
    v_max3_f32 v{m3}, v{S0 + 6}, v{S0 + 7}, v{m1}""")
    for i in range(2): A(f"buffer_load_dwordx2 {v(KMD + 4 + 2 * i, 2)}, v{vRow}, {S4(rD)}, s{sROW} offen offset:{512 * i}")
    A(f"v_add_u32 v{t2}, s{sBUF}, v{vBo}\ns_xor_b32 s{sBUF}, s{sBUF}, {BUF}\ns_cmp_ge_u32 s{sNX}, {NSEG}\ns_cbranch_scc1 L_qo_nf")
    fetch(sNX)
    A("L_qo_nf:")
    timeline(A, cfg, 72, t0)
    spin_init(A)
    A("s_branch L_qo_km1\nL_qo_km:")
    if cfg["SLEEP"]: A(f"s_sleep {cfg['SLEEP']}")
    A(f"L_qo_km1:\nbuffer_load_dwordx4 {v(KMD, 4)}, v{vL16}, {S4(rWS)}, s{sKM} offen sc1")
    spin_step(A)
    A("s_waitcnt vmcnt(0)")
    max_chk(A, t0, KMD, 4)
    A(f"""ds_write2_b32 v{vWk}, v{KMD}, v{KMD + 1} offset1:16
    ds_write_b64 v{vWv}, {v(KMD + 2, 2)}
    s_cbranch_vccnz L_qo_km
    s_waitcnt lgkmcnt(0)
    s_barrier""")
    timeline(A, cfg, 73, t0)
    for t in range(4): A(f"ds_read_b128 {v(MFR + 4 * t, 4)}, v{vRk} offset:{512 * t}")
    for i in range(2): A(f"ds_read_b64 {v(VM + 2 * i, 2)}, v{vRv} offset:{512 * i}")
    for t in range(4): A(f"s_waitcnt lgkmcnt({5 - t})\n{MF} {v(Sm, 4)}, {v(MFR + 4 * t, 4)}, {v(QF + 4 * t, 4)}, {v(Sm, 4) if t else 0}")
    A(f"""
    v_max3_f32 v{m1}, v{Sm}, v{Sm + 1}, v{m2}
    v_max_f32 v{m2}, v{m1}, v{m3}
    v_max_f32 v{tt}, v{m1}, v{m3}
    v_permlane16_swap_b32 v{m2}, v{tt}
    v_max_f32 v{m1}, v{m2}, v{tt}
    v_max_f32 v{m3}, v{m2}, v{tt}
    v_permlane32_swap_b32 v{m1}, v{m3}
    v_max_f32 v{m1}, v{m1}, v{m3}
    v_mul_f32 v{m1}, s{sC}, v{m1}""")
    for i in range(10): A(f"v_fma_f32 v{S0 + i}, v{S0 + i}, s{sC}, -v{m1}\nv_exp_f32 v{S0 + i}, v{S0 + i}")
    pack(A, P, S0, 4)
    A(f"v_cvt_pk_bf16_f32 v{PM}, v{Sm}, v{Sm + 1}\nv_cvt_pk_bf16_f32 v{PM + 3}, v{Sm}, v{Sm + 1}\ns_waitcnt lgkmcnt(0)")
    A(f"{MF} {v(SU, 4)}, {v(ONES, 4)}, {v(P, 4)}, 0")
    for be in range(4): A(f"{MF} {v(O + 4 * be, 4)}, {v(VF + 4 * be, 4)}, {v(P, 4)}, 0")
    A(f"{MF16} {v(SU, 4)}, {v(ONES, 2)}, {v(PM, 2)}, {v(SU, 4)}")
    for be in range(4): A(f"{MF16} {v(O + 4 * be, 4)}, {v(VM + 2 * (be >> 1), 2)}, {v(PM + 2 * (be & 1), 2)}, {v(O + 4 * be, 4)}")
    A(f"v_rcp_f32 v{SU}, v{SU}")
    for x in range(2):
        for i in range(8): A(f"v_mul_f32 v{O + 8 * x + i}, v{O + 8 * x + i}, v{SU}")
        pack(A, 16 + 4 * x, O + 8 * x, 4)
        A(f"ds_write_b128 v{t2}, {v(16 + 4 * x, 4)} offset:{L_O + 1024 * x}")
    A("s_waitcnt lgkmcnt(0)\ns_barrier")
    timeline(A, cfg, 77, t0)
    OF, ACC, OUT = 32, 64, 16
    for i in range(8): A(f"ds_read_b128 {v(OF + 4 * i, 4)}, v{vB} offset:{L_O + 1024 * i}")
    A("s_waitcnt lgkmcnt(0)")
    proj_out(A, 4, lambda t, ks: 128 + 16 * t + 4 * ks, OF, ACC, OUT, vSt, sPW)
    timeline(A, cfg, 78, t0)
    D, R, X, H = 0, 128, 136, 144
    row_sum(A, 8, D, R, SELA, vRl, sIN, st0, t0)
    timeline(A, cfg, 79, t0)
    A(f"""s_lshr_b32 s{st0}, s{sW}, 1
    s_lshl_b32 s{st0}, s{st0}, 10
    v_add_u32 v{t2}, s{st0}, v{vRr}
    s_add_u32 s{sI}, s{sI}, 1
    s_mov_b64 exec, s[{sHX}:{sHX + 1}]
    ds_write_b128 v{t2}, {v(R, 4)}
    s_mov_b64 exec, -1
    s_waitcnt lgkmcnt(0)
    s_barrier
    s_cmp_lg_u32 s{sW}, 0
    s_cbranch_scc1 L_qo_next
    ds_read_b128 {v(R, 4)}, v{vRr}
    ds_read_b128 {v(R + 4, 4)}, v{vRr} offset:1024""")
    timeline(A, cfg, 80, t0)
    unpack(A, X, KMD + 4, 4)
    A("s_waitcnt lgkmcnt(0)")
    pack(A, H, R, 4); unpack(A, R, H, 4)
    for i in range(8): A(f"v_add_f32 v{R + i}, v{R + i}, v{X + i}")
    pack(A, H, R, 4); unpack(A, R, H, 4)
    vm, vs = 150, 151
    A(f"v_add_f32 v{vm}, v{R}, v{R + 1}")
    for i in range(2, 8): A(f"v_add_f32 v{vm}, v{vm}, v{R + i}")
    for i in range(4): A(f"v_min_u32 v{H + i}, -2, v{H + i}")
    A(f"s_add_u32 s{st0}, s{sROW}, {WS_HB}\nbuffer_store_dwordx4 {v(H, 4)}, v{vL16}, {S4(rWS)}, s{st0} offen sc1")
    wave_sum(A, vm, t0)
    A(f"v_mul_f32 v{vm}, 0x3b000000, v{vm}")
    for i in range(8): A(f"v_sub_f32 v{X + i}, v{R + i}, v{vm}")
    A(f"v_mul_f32 v{vs}, v{X}, v{X}")
    for i in range(1, 8): A(f"v_fmac_f32 v{vs}, v{X + i}, v{X + i}")
    round_bf(A, vm)
    wave_sum(A, vs, t0)
    A(f"v_mul_f32 v{vs}, 0x3b000000, v{vs}")
    ln_scale(A, vs, t0)
    for i in range(8): A(f"v_sub_f32 v{R + i}, v{R + i}, v{vm}")
    pack(A, X, R, 4); unpack(A, R, X, 4)
    for i in range(8): A(f"v_mul_f32 v{R + i}, v{R + i}, v{vs}")
    pack(A, X, R, 4)
    for i in range(4): A(f"v_min_u32 v{X + i}, -2, v{X + i}")
    A(f"s_add_u32 s{st0}, s{sROW}, {WS_XN2}\nbuffer_store_dwordx4 {v(X, 4)}, v{vL16}, {S4(rWS)}, s{st0} offen sc1")
    timeline(A, cfg, 7, t0, sI)
    A(f"""L_qo_next:
    s_mov_b32 s{sRS}, s{sIN}
    s_mov_b32 s{sSEG}, s{sNX}
    s_cmp_lt_u32 s{sSEG}, {NSEG}
    s_cbranch_scc1 L_qo_loop
    s_endpgm""")
```

```python
import sys, json
from common import *
import align, role_kv, role_ffn, role_ffn1, role_chain, role_chain_g2, role_qo

DEFAULT = dict(ROLES=["chain", "kv", "kv", "qo", "qo", "qo", "ffn", "ffn"], KV_DEPTH=9, QO_DEPTH=1, FFN_DEPTH=1, CH_DEPTH=9, CH_PF=0, CH_MIX=0,
               ENABLE=["chain", "kv", "qo", "ffn"], PROF=0, SLEEP=0, CODEPF=1, WARM=0, G3=0, ALIGN=8, PAD=0, AL=0, PK=1, KEARLY=60, RS=8192, MEMOFF=0, PH=[0, 0, 32], TLB=1, QO_LATE=1, S_QO=99, S_FFN=98, GATE=0, F2D=1,
               LP=12, NVF=2, EB=4, PRE=0, PREP='n', FD=[24, 16, 16], SPEC=0, VS=dict(km=17, d0=0, d1=4, d2=8, d3=13, r0=30, r1=100), KVST='sc1', KVLD='sc1', RED=[["s", -4, "A", "z", "p", 4], ["k", "s", "p", "z", 16, -8, "A", 16]])

G3CFG = dict(LP=16, CS=5, BP=8, EB=3, PREP="c", RED=["szpA", "szpAd", "kspzdoAD"], FD=[24, 16, 16],
             VS=dict(km=29, d0=13, d1=17, d2=21, d3=25, r0=34, r1=100))

WS0 = {n: x for n, x in globals().items() if n.startswith('WS_') and n not in ('WS_SIZE', 'WS_DBG')}
HEAD = open("ref.txt").read().split("; Override launch")[0]

def generate(over=None, verbose=False):
    cfg = dict(DEFAULT)
    if (over or {}).get("G3", cfg["G3"]): cfg.update(G3CFG)
    cfg.update(over or {})
    for r in ("kv", "qo", "ffn"): cfg["N" + r.upper()] = cfg["ROLES"].count(r)
    import common, ln
    for n, d in WS0.items():
        for m in (common, ln, role_kv, role_ffn, role_ffn1, role_chain, role_chain_g2, role_qo): m.__dict__[n] = d + cfg.get("WSO", {}).get(n[3:], 0)
    A = Asm()
    prologue(A, cfg["ROLES"], cfg["PROF"], cfg["CODEPF"], (pWQ, pWK, pWV) if cfg["WARM"] else None)
    cfg["_dbg"] = {("chain", 1): 2, ("chain", 2): 3, ("chain", 3): 4, ("kv", 1): 5, ("kv", 2): 6, ("qo", 1): 7, ("qo", 73): 8, ("qo", 7): 9,
                   ("ffn", 1): 10, ("ffn", 2): 11, ("ffn", 72): 12, ("ffn", 7): 13, ("chain", 9): 14, ("kv", 9): 15}
    for r, m, vz in (("chain", (role_chain if cfg["G3"] else role_chain_g2).role_chain, 93), ("kv", role_kv.role_kv, 108), ("qo", role_qo.role_qo, 217), ("ffn", (role_ffn if cfg["F2D"] else role_ffn1).role_ffn, 109 if cfg["F2D"] else 213)):
        cfg["_role"] = r; cfg["_vz"] = vz
        m(A, cfg)
    A("L_end:")
    body = A.finish(verbose)
    if cfg["AL"]:
        out = align.run(A.out, "L_fetch", "L_ch_exit", 4 * cfg["PAD"], {"L_early": cfg["PH"][2]}, verbose)
        body = "\n".join(x if isinstance(x, str) else " " + x.text for x in out) + "\n"
    K = NAME + "_kernel"
    doc = open("header.txt").read()
    return (HEAD + f"; @launch grid=(256,1,1) block=(256,1,1) lds={LDS_BYTES}\n" + doc +
            f'.amdgcn_target "amdgcn-amd-amdhsa--gfx950"\n.text\n.globl {K}\n.p2align 8\n.type {K},@function\n{K}:\n' + body +
            f""".section .rodata,"a"
.p2align 6
.amdhsa_kernel {K}
  .amdhsa_next_free_vgpr 512
  .amdhsa_next_free_sgpr 102
  .amdhsa_accum_offset 256
  .amdhsa_group_segment_fixed_size 0
  .amdhsa_kernarg_size 112
  .amdhsa_user_sgpr_count 2
  .amdhsa_user_sgpr_kernarg_segment_ptr 1
  .amdhsa_system_sgpr_workgroup_id_x 1
  .amdhsa_float_denorm_mode_32 3
.end_amdhsa_kernel
""")

if __name__ == "__main__":
    out = sys.argv[1] if len(sys.argv) > 1 else "cdna_kernels/%s.s" % NAME
    over = json.loads(sys.argv[2]) if len(sys.argv) > 2 else None
    t = generate(over, verbose="-v" in sys.argv)
    open(out, "w").write(t)
    print(out, len(t), "bytes")
```

```python
from asmlib import *

NAME = "sequential_preLN__memory_aug_recurrent_mem_tr__glu_gated_swiglu__prompt"
NSEG = 64
WS_XN    = 0x0000000
WS_XN2   = 0x0200000
WS_HB    = 0x0400000
WS_KM    = 0x0600000
WS_PART  = 0x0E00000
WS_MEM   = 0x0F00000
WS_PROG  = 0x0F10000
WS_PART1 = 0x1000000
WS_PART2 = 0x1800000
WS_KV    = 0x2000000
WS_DBG   = 0x4000000
WS_SIZE  = 0x10000000
DBG_DONE = 192
DBG_CH = 196
DBG_LN = 64
SPIN = 1 << 19
LDS_BYTES = 163840

sW, sRK, sX, sSPIN = 4, 5, 6, 7
pX, pMEM0, pWQ, pWK, pWV, pWO = 8, 10, 12, 14, 16, 18
pW1, pW3, pW2, pOUT, pDBG, pWS = 24, 26, 28, 30, 32, 34
rWS, rA, rB, rC, rD = 36, 40, 44, 48, 52

def srd(A, r, p, size):
    A(f"s_mov_b32 s{r}, s{p}\ns_mov_b32 s{r+1}, s{p+1}\ns_mov_b32 s{r+2}, {size:#x}\ns_mov_b32 s{r+3}, 0x20000")

def S4(r): return s(r, 4)

def spin_init(A): A(f"s_mov_b32 s{sSPIN}, {SPIN}")
def spin_step(A): A(f"s_sub_u32 s{sSPIN}, s{sSPIN}, 1\ns_cbranch_scc1 L_abort")

def signal_done(A, vt0, vt1, word=DBG_DONE):
    l = A.lab()
    A(f"""s_cmp_lg_u32 s{sW}, 0
    s_cbranch_scc1 {l}
    v_mov_b32 v{vt0}, {word}
    v_mov_b32 v{vt1}, 1
    s_mov_b64 exec, 1
    global_atomic_add v{vt0}, v{vt1}, s[{pDBG}:{pDBG+1}] sc1
    s_mov_b64 exec, -1
    {l}:""")

DONE_N = 256
def wait_done(A, vt0, vt1, st, word=DBG_DONE, count=256):
    if count == 256: count = DONE_N
    l, l2 = A.lab(), A.lab()
    spin_init(A)
    A(f"v_mov_b32 v{vt0}, {word}\ns_branch {l2}\n{l}:\ns_sleep 4\n{l2}:\nglobal_load_dword v{vt1}, v{vt0}, s[{pDBG}:{pDBG+1}] sc1")
    spin_step(A)
    A(f"s_waitcnt vmcnt(0)\nv_readfirstlane_b32 s{st}, v{vt1}\ns_cmp_lt_u32 s{st}, {count}\ns_cbranch_scc1 {l}")

def wait_done1(A, vt0, vt1, st, word=DBG_DONE, count=256):
    l = A.lab()
    A(f"s_cmp_lg_u32 s{sW}, 0\ns_cbranch_scc1 {l}")
    wait_done(A, vt0, vt1, st, word, count)
    A(f"{l}:\ns_barrier")

def lane_fields(A, vlane):
    A(f"v_and_b32 v{vlane}, 63, v0")

def dma_col(A, dst, vlane, t0, t1, st):
    A(f"""v_lshrrev_b32 v{t0}, 4, v{vlane}
    s_lshr_b32 s{st}, s{sW}, 1
    s_lshl_b32 s{st}, s{st}, 2
    v_or_b32 v{t0}, s{st}, v{t0}
    v_bfe_u32 v{t1}, v{vlane}, 1, 3
    v_xor_b32 v{t0}, v{t0}, v{t1}
    v_lshlrev_b32 v{t0}, 5, v{t0}
    v_and_b32 v{t1}, 1, v{vlane}
    v_lshl_or_b32 v{dst}, v{t1}, 4, v{t0}""")

def tr_base(A, dst, vlane, t0, t1):
    A(f"""v_lshrrev_b32 v{t0}, 4, v{vlane}
    v_bfe_u32 v{t1}, v{vlane}, 2, 2
    v_lshl_add_u32 v{dst}, v{t0}, 3, v{t1}
    v_lshlrev_b32 v{dst}, 8, v{dst}
    v_and_b32 v{t0}, 1, v{t0}
    v_lshl_or_b32 v{t0}, v{t0}, 2, v{t1}
    v_lshl_or_b32 v{dst}, v{t0}, 5, v{dst}
    v_and_b32 v{t0}, 3, v{vlane}
    v_lshl_or_b32 v{dst}, v{t0}, 3, v{dst}""")

def tr_tile(A, pfx, d, vaddr):
    for i, off in enumerate((0, 1024, 8192, 9216)):
        A(f"ds_read_b64_tr_b16 {R(pfx, d + 2*i, 2)}, v{vaddr} offset:{off}")

def load_chunks(A, chunks, nslots, depth, slot0, st0, st1, hooks=None, lds0=0, pfd=0, vdummy=None, pre=None, slots=None, nt=''):
    n = len(chunks)
    slot = lambda c: lds0 + (slots[c] if slots else (c + slot0) % nslots) * 16384
    V = Cnt(A, "vmcnt")
    A(f"s_lshl_b32 s{st1}, s{sW}, 10")
    def pref(c):
        if pfd and c < n and chunks[c].get("pf"):
            vo, off = chunks[c]["pf"]
            A(f"s_mov_b32 s{st0}, {off}")
            V.op(f"buffer_load_dword v{vdummy}, v{vo}, {S4(chunks[c]['srd'])}, s{st0} offen")
    def issue(c):
        ch = chunks[c]
        A(f"s_lshl_b32 s{st1}, s{sW}, 10")
        for i in range(4):
            A(f"s_add_u32 m0, s{st1}, {slot(c) + i * 4096}")
            if ch.get("sbase") is not None: A(f"s_add_u32 s{st0}, s{ch['sbase']}, {ch['offs'][i]}")
            else: A(f"s_mov_b32 s{st0}, {ch['offs'][i]}")
            V.op(f"buffer_load_dwordx4 v{ch['voff']}, {S4(ch['srd'])}, s{st0} offen {ch.get('nt', nt)} lds", c)
    first = min(2, depth) if pfd else depth
    for c in range(first): issue(c)
    if pfd:
        for c in range(first, depth + pfd): pref(c)
        for c in range(first, depth): issue(c)
    for c in range(n):
        if pre and c in pre: pre[c]()
        V.wait(c); A("s_barrier")
        if hooks and c in hooks: hooks[c]()
        if c + depth < n:
            pref(c + depth + pfd); issue(c + depth)
        chunks[c]["extract"](A, slot(c))
        A("s_waitcnt lgkmcnt(0)")

def fill_ones(A, r, n):
    for i in range(0, n, 2): A(f"v_mov_b64 {v(r + i, 2)}, -1")

def clear_region(A, vaddr, vones, soff, nkb, sc, stmp):
    A(f"s_mov_b32 s{stmp}, s{soff}")
    for i in range(nkb):
        if i and i % 4 == 0: A(f"s_add_u32 s{stmp}, s{stmp}, 4096")
        A(f"buffer_store_dwordx4 {v(vones, 4)}, v{vaddr}, {S4(rWS)}, s{stmp} offen offset:{(i % 4) * 1024} {sc}")

def prologue(A, roles, prof=0, pf=1, warm=None):
    if prof == -1: A("s_memrealtime s[98:99]")
    A(f"""s_cmp_ge_u32 s2, 256
    s_cbranch_scc1 L_abort
    s_load_dwordx4 s[32:35], s[0:1], 96
    s_load_dwordx16 s[8:23], s[0:1], 0
    s_load_dwordx8 s[24:31], s[0:1], 64
    s_getreg_b32 s{sX}, hwreg(HW_REG_XCC_ID, 0, 4)
    v_lshrrev_b32 v1, 6, v0
    s_lshl_b32 s3, s{sX}, 2
    s_add_u32 s3, s3, 128
    s_cmp_eq_u32 s{sX}, 0
    s_cselect_b32 s3, 0, s3
    v_readfirstlane_b32 s{sW}, v1
    v_mov_b32 v1, s3
    v_mov_b32 v2, 1
    v_mov_b32 v4, 0
    s_waitcnt lgkmcnt(0)""")
    srd(A, rWS, pWS, WS_SIZE)
    A(f"""s_cmp_lg_u32 s{sW}, 0
    s_cbranch_scc1 L_p1
    s_mov_b64 exec, 1
    global_atomic_add v3, v1, v2, s[{pDBG}:{pDBG+1}] sc0 sc1
    s_mov_b64 exec, -1
    L_p1:""")
    if pf:
        order = ["chain", "kv", "qo", "ffn", "end"]
        A("s_getpc_b64 s[40:41]\nL_pc:\ns_mov_b32 s42, 0\ns_mov_b32 s43, 0")
        for x, r in enumerate(roles):
            A(f"s_cmp_eq_u32 s{sX}, {x}\ns_cselect_b32 s42, L_{r}-L_pc, s42\ns_cselect_b32 s43, L_{order[order.index(r) + 1]}-L_{r}, s43")
        A(f"""s_add_u32 s40, s40, s42
        s_addc_u32 s41, s41, 0
        v_lshlrev_b32 v5, 7, v0
        v_cmp_gt_u32 vcc, s43, v5
        s_and_saveexec_b64 s[44:45], vcc
        s_cbranch_execz L_p2
        global_load_dword v6, v5, s[40:41]
        L_p2:
        s_mov_b64 exec, -1""")
    A(f"""s_cmp_lg_u32 s{sW}, 0
    s_cbranch_scc1 L_p3
    s_waitcnt vmcnt({1 if pf else 0})
    s_mov_b64 exec, 1
    ds_write_b32 v4, v3
    s_waitcnt lgkmcnt(0)
    s_mov_b64 exec, -1
    L_p3:""")
    if warm:
        xs = [x for x, r in enumerate(roles) if r == "qo"][:3]
        A("s_mov_b32 s44, -1")
        for i, x in enumerate(xs): A(f"s_cmp_eq_u32 s{sX}, {x}\ns_cselect_b32 s44, {i}, s44")
        A(f"""s_cmp_eq_u32 s44, -1
        s_cbranch_scc1 L_p4
        s_lshl_b32 s44, s44, 5
        s_bfe_u32 s3, s2, 0x50003
        s_add_u32 s44, s44, s3
        s_lshl_b32 s44, s44, 12
        v_lshlrev_b32 v5, 4, v0""")
        for p in warm:
            srd(A, 40, {"q": pWQ, "k": pWK, "v": pWV, "o": pWO}[p], 1 << 22)
            A("s_mov_b32 s3, s44")
            for i in range(11): A(f"buffer_load_dwordx4 v[8:11], v5, s[40:43], s3 offen\ns_add_u32 s3, s3, {96 * 4096}")
        A("L_p4:")
    A(f"""
    s_barrier
    ds_read_b32 v3, v4
    s_waitcnt lgkmcnt(0)
    v_readfirstlane_b32 s{sRK}, v3
    s_barrier
    s_cmp_ge_u32 s{sRK}, 32
    s_cbranch_scc1 L_abort""")
    cnt = {}
    for x, r in enumerate(roles):
        A(f"s_mov_b32 s3, {cnt.get(r, 0)}\ns_cmp_eq_u32 s{sX}, {x}\ns_cbranch_scc1 L_go_{r}")
        cnt[r] = cnt.get(r, 0) + 1
    A("L_abort:\ns_endpgm")
    for r in cnt: A(f"L_go_{r}:\ns_branch L_{r}")

def timeline(A, cfg, idx, vt, sidx=None):
    if cfg["PROF"] == -1:
        slot = cfg["_dbg"].get((cfg["_role"], idx))
        if slot is None: return
        l = A.lab()
        A(f"""s_memrealtime s[100:101]
        s_or_b32 s3, s{sRK}, s{sW}
        s_cmp_lg_u32 s3, 0
        s_cbranch_scc1 {l}
        s_waitcnt lgkmcnt(0)
        v_mov_b32 v{vt}, s100
        s_mov_b64 exec, 1
        global_store_dword v{cfg['_vz']}, v{vt}, s[{pDBG}:{pDBG + 1}] offset:{4 * slot} sc1
        s_mov_b64 exec, -1
        {l}:""")
        return
    if not cfg["PROF"]: return
    A(f"""s_memrealtime s[100:101]
    s_lshl_b32 s3, s{sX}, 5
    s_add_u32 s3, s3, s{sRK}
    s_lshl_b32 s3, s3, 2
    s_add_u32 s3, s3, s{sW}
    s_lshl_b32 s3, s3, 9
    s_add_u32 s3, s3, {WS_DBG + 0x10000 + 4 * idx}""")
    if sidx is not None: A(f"s_lshl_b32 s2, s{sidx}, 2\ns_add_u32 s3, s3, s2")
    A(f"""s_waitcnt lgkmcnt(0)
    v_mov_b32 v{vt}, s100
    s_mov_b64 exec, 1
    buffer_store_dword v{vt}, off, {S4(rWS)}, s3
    s_mov_b64 exec, -1""")

MF = "v_mfma_f32_16x16x32_bf16"
MF16 = "v_mfma_f32_16x16x16_bf16"
C_SCALE = 0x3e0293ee
WS_FLG1 = 0x0F20000
WS_FLG2 = 0x0F21000

class Cnt:
    def __init__(self, A, name): self.A, self.name, self.n, self.tags = A, name, 0, {}
    def op(self, text, tag=None):
        self.A(text); self.n += 1
        if tag is not None: self.tags[tag] = self.n
    def need(self, tag): return self.n - self.tags[tag]
    def wait(self, tag): self.A(f"s_waitcnt {self.name}({min(self.need(tag), 15 if self.name == 'lgkmcnt' else 63)})")

def seg_count(A, sreg, sT, n):
    c = [(NSEG - t + n - 1) // n for t in range(n)]
    A(f"s_mov_b32 s{sreg}, {c[0]}")
    for t in range(1, n):
        if c[t] != c[0]: A(f"s_cmp_eq_u32 s{sT}, {t}\ns_cselect_b32 s{sreg}, {c[t]}, s{sreg}")

def rows_out(A, dst, vcol, vlane, t0, st0, st1):
    A(f"""s_and_b32 s{st0}, s{sW}, 1
    s_lshl_b32 s{st0}, s{st0}, 4
    s_lshr_b32 s{st1}, s{sW}, 1
    s_lshl_b32 s{st1}, s{st1}, 2
    s_add_u32 s{st0}, s{st0}, s{st1}
    v_lshrrev_b32 v{t0}, 4, v{vlane}
    v_add_u32 v{t0}, s{st0}, v{t0}
    v_lshl_add_u32 v{dst}, v{t0}, 10, v{vcol}""")
ROWS_OUT = [32 * (i >> 1) + 8 * (i & 1) for i in range(4)]

def extract8(A, base, w, vT, t0, t1, dst, pfx="a"):
    l = A.lab()
    A(f"s_cmp_lg_u32 s{sW}, {w}\ns_cbranch_scc1 {l}\nv_add_u32 v{t0}, {base}, v{vT}")
    for t in range(8):
        A(f"v_xor_b32 v{t1}, {32 * t}, v{t0}")
        tr_tile(A, pfx, dst(t), t1)
    A(f"{l}:")

def proj_out(A, nk, wreg, F, ACC, OUT, vSt, sBase):
    ep = []
    for p in range(4):
        for a_ in range(2):
            for b in range(2):
                c = ACC + ((p * 2 + a_) * 2 + b) * 4
                for ks in range(nk):
                    A(f"{MF} {v(c, 4)}, {a(wreg(2 * p + b, ks), 4)}, {v(F + 4 * (a_ * nk + ks), 4)}, {v(c, 4) if ks else 0}")
                    if (b or ks >= 2 or nk == 2 and False) and ep: A(ep.pop(0))
                    if b and ep: A(ep.pop(0))
            while ep: A(ep.pop(0))
            c = ACC + (p * 2 + a_) * 8; o = OUT + 4 * a_
            ep = [f"v_cvt_pk_bf16_f32 v{o + i}, v{c + 2 * i}, v{c + 2 * i + 1}" for i in range(4)]
            ep.append(f"buffer_store_dwordx4 {v(o, 4)}, v{vSt}, {S4(rWS)}, s{sBase + a_} offen offset:{64 * p}")
    while ep: A(ep.pop(0))

def row_consts(A, vlane, vRl, vRow, SEL, sHX, t0, t1, st):
    A(f"""v_lshrrev_b32 v{t0}, 4, v{vlane}
    v_and_b32 v{t1}, 15, v{vlane}
    v_lshlrev_b32 v{vRl}, 4, v{t1}
    v_lshl_or_b32 v{vRl}, v{t0}, 10, v{vRl}
    s_lshl_b32 s{st}, s{sW}, 8
    v_add_u32 v{vRl}, s{st}, v{vRl}
    v_and_b32 v{vRow}, 3, v{vlane}
    v_lshlrev_b32 v{vRow}, 3, v{vRow}
    v_bfe_u32 v{t0}, v{vlane}, 4, 1
    v_lshl_or_b32 v{vRow}, v{t0}, 5, v{vRow}
    v_bfe_u32 v{t0}, v{vlane}, 2, 2
    v_lshl_or_b32 v{vRow}, v{t0}, 6, v{vRow}
    v_lshrrev_b32 v{t0}, 5, v{vlane}
    v_lshl_or_b32 v{vRow}, v{t0}, 8, v{vRow}
    v_and_b32 v{t0}, 1, v{vlane}
    v_lshlrev_b32 v{t0}, 4, v{t0}
    v_mov_b32 v{SEL}, 0x3f80
    v_lshlrev_b32 v{t0}, v{t0}, v{SEL}
    v_lshrrev_b32 v{t1}, 1, v{t1}
    s_and_b32 s{st}, s{sW}, 1
    s_lshl_b32 s{st}, s{st}, 2
    v_subrev_u32 v{t1}, s{st}, v{t1}
    s_bitcmp1_b32 s{sW}, 0
    s_cselect_b32 s{sHX}, 0, -1
    s_cselect_b32 s{sHX + 1}, -1, 0""")
    for i in range(4): A(f"v_cmp_eq_u32 vcc, {i}, v{t1}\nv_cndmask_b32 v{SEL + i}, 0, v{t0}, vcc")

def inbox_ops(n4, D, vRl, sIn, st, store):
    ops = []
    for i in range(n4):
        x = f"buffer_store_dwordx4 {v(D, 4)}" if store else f"buffer_load_dwordx4 {v(D + 4 * i, 4)}"
        ops.append((f"s_add_u32 s{st}, s{sIn}, {4096 * i}\n" if i else "") + x + f", v{vRl}, {S4(rWS)}, s{st if i else sIn} offen" + ("" if store else " sc1"))
    return ops

def row_sum(A, n4, D, ACC, SEL, vRl, sIn, st, t):
    l = A.lab()
    spin_init(A)
    A(f"s_mov_b64 vcc, -1\n{l}:\ns_mov_b64 exec, vcc")
    for x in inbox_ops(n4, D, vRl, sIn, st, False): A(x)
    A("s_mov_b64 exec, -1")
    spin_step(A)
    for i in range(n4):
        A(f"s_waitcnt vmcnt({n4 - 1 - i})\n{MF} {v(ACC, 4)}, {v(SEL, 4)}, {v(D + 4 * i, 4)}, {v(ACC, 4) if i else 0}")
        for k in range(2): A(f"v_max3_u32 v{t}, v{t if i or k else D}, v{D + 4 * i + 2 * k}, v{D + 4 * i + 2 * k + 1}")
    A(f"v_cmp_eq_u32 vcc, -1, v{t}\ns_cbranch_vccnz {l}")

def inbox_reset(A, n4, NEG, vRl, sIn, st):
    for x in inbox_ops(n4, NEG, vRl, sIn, st, True): A(x)

def wait_flags(A, vF, vL4, sFlg, sNeed):
    l = A.lab()
    spin_init(A)
    A(f"{l}:\nbuffer_load_dword v{vF}, v{vL4}, {S4(rWS)}, s{sFlg} offen sc1")
    spin_step(A)
    A(f"s_waitcnt vmcnt(0)\nv_cmp_gt_u32 vcc, s{sNeed}, v{vF}\ns_cbranch_vccnz {l}")

def wave_sum(A, r, t):
    for k in (8, 4, 2, 1): A(f"v_add_f32_dpp v{r}, v{r}, v{r} row_ror:{k} row_mask:0xf bank_mask:0xf")
    for sw in ("v_permlane16_swap_b32", "v_permlane32_swap_b32"):
        A(f"v_mov_b32 v{t}, v{r}\n{sw} v{r}, v{t}\nv_add_f32 v{r}, v{r}, v{t}")

def unpack(A, dst, src, n):
    for i in range(n): A(f"v_and_b32 v{dst + 2 * i + 1}, 0xffff0000, v{src + i}\nv_lshlrev_b32 v{dst + 2 * i}, 16, v{src + i}")
def pack(A, dst, src, n):
    for i in range(n): A(f"v_cvt_pk_bf16_f32 v{dst + i}, v{src + 2 * i}, v{src + 2 * i + 1}")

def max_chk(A, t, b, n):
    for i in range(0, n, 2): A(f"v_max3_u32 v{t}, v{t if i else b}, v{b + i}, v{b + i + 1}")
    A(f"v_cmp_eq_u32 vcc, -1, v{t}")
```

```python
from common import *

SMF = "v_smfmac_f32_16x16x64_bf16"

def role_chain(A, cfg):
    NKV, PROF = cfg["NKV"], cfg["PROF"] >= 2
    assert NKV in (1, 2)
    M, G, QA, VA, KMQ, PM = 0, 32, 64, 80, 88, 92
    vIdx, vWl0, vWl1, vKr, vVr, vMr, vPartSt, vMemSt, vQw, vQr, vOw, vOr, vSel, vProg, vT, vMw = range(96, 112)
    vZ = PM + 1
    L_KV, L_Q, L_O, L_M = 112 * 1024, 144 * 1024, 148 * 1024, 150 * 1024
    PUBX = "0x000f000f"
    sSTEP, sX0, sX1, sX2, sPW, sPR, sPZ, sMN, sMZ, sKVS, sKVL, sKM, sPG, sNEED, sC, sME, sML, cME, sWO = range(56, 75)
    cPW, cPZ, cMD, cMC, cML = 40, 41, 42, 43, 44
    sONE, sMSK = 76, 78
    sKP = 75
    sPX = 86
    st0, st1 = 100, 101
    sTS = 8
    def wreg(i): return ("a", 8 * i) if i < 32 else ("v", 112 + 8 * (i - 32))
    WQ = lambda p, b: wreg(2 * p + b)
    WK = lambda p, b: wreg(16 + p + b)
    WV = lambda p, b: wreg(24 + 2 * p + b)
    WO = lambda t, u: wreg(40 + 2 * t + u) if t < 5 else ("v", 32 + 8 * (2 * (t - 5) + u))
    W8 = lambda w: R(w[0], w[1], 8)
    def stamp(i, force=False):
        if PROF and (force or not cfg.get("QS") or i < 4): A(f"{'s_memrealtime' if cfg.get('RT') else 's_memtime'} s[{sTS + 2 * i}:{sTS + 2 * i + 1}]")
    def delay(n):
        while n > 0:
            A(f"s_nop {min(n, 16) - 1}"); n -= 16

    A("L_chain:")
    timeline(A, cfg, 0, 1)
    srd(A, rA, pWQ, 1 << 22); srd(A, rB, pWK, 1 << 22); srd(A, rC, pWV, 1 << 22); srd(A, rD, pWO, 1 << 22)
    vLane, vOffA, vOffO, vT0, t0, t1, t2, vPF, vDum = range(20, 29)
    lane_fields(A, vLane)
    dma_col(A, vOffA, vLane, t0, t1, st0)
    A(f"""v_bfe_u32 v{t0}, v{vLane}, 4, 1
    v_lshrrev_b32 v{t1}, 5, v{vLane}
    s_and_b32 s{st0}, s{sW}, 1
    s_lshr_b32 s{st1}, s{sW}, 1
    v_lshl_add_u32 v{t2}, v{t1}, 5, v{t0}
    s_lshl_b32 s3, s{st1}, 4
    v_add_u32 v{t2}, s3, v{t2}
    s_lshl_b32 s3, s{st0}, 1
    v_add_u32 v{t2}, s3, v{t2}
    v_lshl_add_u32 v{vOffO}, v{t2}, 10, v{vOffA}
    v_lshlrev_b32 v{t0}, 4, v{t0}
    v_lshl_add_u32 v{t2}, v{t1}, 2, v{t0}
    v_add_u32 v{t2}, s{sW}, v{t2}
    v_lshl_add_u32 v{vOffA}, v{t2}, 13, v{vOffA}
    s_lshl_b32 s{sKVS}, s{sRK}, 8
    s_lshl_b32 s3, s{sRK}, 1
    s_add_u32 s3, s3, s{st1}
    s_lshr_b32 s{st1}, s3, 5
    s_lshl_b32 s{st1}, s{st1}, 7
    s_and_b32 s3, s3, 31
    s_add_u32 s3, s3, s{st1}
    s_lshl_b32 s3, s3, 13
    s_lshl_b32 s{st0}, s{st0}, 12
    s_add_u32 s3, s3, s{st0}
    v_lshl_add_u32 v{vPF}, v{vLane}, 6, s3
    s_lshl_b32 s{st0}, s{sW}, 12
    v_lshl_add_u32 v{vWl0}, v{vLane}, 4, s{st0}
    s_mul_i32 s{st0}, s{sW}, 12288
    s_add_u32 s{st0}, s{st0}, 0x10000
    v_lshl_add_u32 v{vWl1}, v{vLane}, 4, s{st0}""")
    tr_base(A, vT, vLane, t0, t1)
    A(f"s_lshl_b32 s{st0}, s{sW}, 6\nv_xor_b32 v{vT0}, s{st0}, v{vT}")
    for i in range(4):
        A(f"""s_add_u32 s{st0}, s{sRK}, {i}
        s_and_b32 s{sMSK + 4 + i}, s{st0}, 3
        s_lshl_b32 s{st0}, s{sMSK + 4 + i}, 8
        s_lshl_b32 s{st1}, s{sRK}, 17
        s_add_u32 s{sMSK + i}, s{st0}, s{st1}""")

    def startup():
        fill_ones(A, 0, 4)
        A(f"""s_lshl_b32 s{sPZ}, s{sRK}, 13
        s_add_u32 s{sPZ}, s{sPZ}, {WS_PART}
        s_lshl_b32 s{st0}, s{sW}, 11
        s_sub_u32 s{sPZ}, s{sPZ}, s{st0}
        v_bfe_u32 v{t0}, v{vLane}, 4, 1
        v_and_b32 v{t1}, 3, v{vLane}
        s_and_b32 s3, s{sRK}, 6
        v_add_u32 v{t2}, s3, v{t0}
        v_lshlrev_b32 v{t2}, 10, v{t2}
        v_lshl_add_u32 v{t2}, v{t1}, 2, v{t2}
        s_lshr_b32 s{st0}, s{sRK}, 3
        s_lshl_b32 s{sX0}, s{st0}, 8
        s_lshl_b32 s{sX1}, s{sW}, 6
        s_add_u32 s{sX0}, s{sX0}, s{sX1}
        s_and_b32 s{sX2}, s{sRK}, 1
        s_lshl_b32 s{sX1}, s{sX2}, 4
        s_add_u32 s{sX0}, s{sX0}, s{sX1}
        v_add_u32 v{t2}, s{sX0}, v{t2}""")
        for i, o in enumerate((0, 32, 2, 34)): A(f"global_load_ushort v{8 + i}, v{t2}, s[{pMEM0}:{pMEM0 + 1}] offset:{o}")
    def startup2():
        A(f"s_and_b32 s3, s{sRK}, 6\ns_lshr_b32 s{st0}, s{sRK}, 3\nv_bfe_u32 v{t0}, v{vLane}, 4, 1\nv_and_b32 v{t1}, 3, v{vLane}")
        for sl in range(3):
            A(f"s_add_u32 s{sX1}, s{sPZ}, {sl * 262144}")
            for i in range(2): A(f"buffer_store_dwordx4 {v(0, 4)}, v{vWl0}, {S4(rWS)}, s{sX1} offen offset:{i * 1024}")
        A(f"""s_lshl_b32 s{sX0}, s{sW}, 1
        s_lshr_b32 s{sX1}, s{st0}, 1
        s_add_u32 s{sX0}, s{sX0}, s{sX1}
        s_lshl_b32 s{sX0}, s{sX0}, 2
        s_and_b32 s{st0}, s{st0}, 1
        s_lshl_b32 s{st0}, s{st0}, 1
        s_add_u32 s{sX0}, s{sX0}, s{st0}
        s_add_u32 s{sX0}, s{sX0}, s{sX2}
        s_lshl_b32 s{sX0}, s{sX0}, 8
        s_lshl_b32 s3, s3, 5
        s_add_u32 s{sX0}, s{sX0}, s3
        v_lshlrev_b32 v{vMemSt}, 4, v{t0}
        v_lshrrev_b32 v{t0}, 1, v{t1}
        v_lshl_or_b32 v{vMemSt}, v{t0}, 5, v{vMemSt}
        v_and_b32 v{t0}, 1, v{t1}
        v_lshl_or_b32 v{vMemSt}, v{t0}, 3, v{vMemSt}
        v_add_u32 v{vMemSt}, s{sX0}, v{vMemSt}
        s_mov_b32 s{st0}, {WS_MEM}
        v_lshl_or_b32 v8, v9, 16, v8
        v_lshl_or_b32 v9, v11, 16, v10
        v_min_u32 v8, -2, v8
        v_min_u32 v9, -2, v9
        s_mov_b64 exec, {PUBX}
        buffer_store_dwordx2 v[8:9], v{vMemSt}, {S4(rWS)}, s{st0} offen
        s_add_u32 s{st0}, s{st0}, 8192
        buffer_store_dwordx2 v[0:1], v{vMemSt}, {S4(rWS)}, s{st0} offen
        s_add_u32 s{st0}, s{st0}, 8192
        buffer_store_dwordx2 v[0:1], v{vMemSt}, {S4(rWS)}, s{st0} offen
        s_mov_b64 exec, -1""")
    startup()
    chunks = []
    def two(d0, d1):
        def ex(A, base):
            A(f"v_add_u32 v{t0}, {base}, v{vT0}\nv_xor_b32 v{t1}, 32, v{t0}")
            tr_tile(A, d0[0], d0[1], t0); tr_tile(A, d1[0], d1[1], t1)
        return ex
    def cha(r, p, ex):
        base = (256 * (p & 1) + 32 * (p >> 1)) * 8192
        chunks.append(dict(srd=r, voff=vOffA, sbase=sKVS, offs=[base + (128 * (i >> 1) + 8 * (i & 1)) * 8192 for i in range(4)], extract=ex, pf=(vPF, base)))
    for u in range(2):
        for k in range(4):
            def ex(A, base, u=u, k=k):
                l = A.lab()
                A(f"s_cmp_lg_u32 s{sW}, s{sMSK + 4 + k}\ns_cbranch_scc1 {l}\nv_add_u32 v{t0}, {base}, v{vT}")
                for t in range(8):
                    A(f"v_xor_b32 v{t1}, {32 * t}, v{t0}")
                    tr_tile(A, WO(t, u)[0], WO(t, u)[1], t1)
                A(f"{l}:")
            chunks.append(dict(srd=rD, voff=vOffO, sbase=sMSK + k, offs=[(64 * u + 4 * i) * 1024 for i in range(4)], extract=ex))
    for p in range(8): cha(rA, p, two(WQ(p, 0), WQ(p, 1)))
    for p in range(0, 8, 2): cha(rB, p, two(WK(p, 0), WK(p, 1)))
    for p in range(8): cha(rC, p, two(WV(p, 0), WV(p, 1)))
    if cfg["CH_MIX"] == 2: chunks[:] = chunks[8:] + chunks[:8]
    if cfg["CH_MIX"] == 1:
        wo, rest = chunks[:8], chunks[8:]
        chunks[:] = sum(([wo[i]] + rest[(5 * i) // 2:(5 * i + 5) // 2] for i in range(8)), [])
        assert len(chunks) == 28
    def inplace(A, base):
        two(("v", 0), ("v", 8))(A, base)
        A(f"v_add_u32 v{t0}, {base}, v{vWl0}\ns_waitcnt lgkmcnt(0)\ns_barrier")
        for i in range(4): A(f"ds_write_b128 v{t0}, {v(4 * i, 4)} offset:{1024 * i}")
    for p in range(1, 8, 2): cha(rB, p, inplace)

    def prog_addr(seg):
        A(f"s_lshl_b32 s{sPG}, s{sRK}, 7\ns_add_u32 s{sPG}, s{sPG}, {WS_PROG + (seg % NKV) * 4096}\ns_mov_b32 s{sNEED}, {seg // NKV + 1}")
    prog_ld = lambda r: f"buffer_load_dword v{r}, v{vZ}, {S4(rWS)}, s{sPG} offen sc1"
    def prog_spin():
        l, l2 = A.lab(), A.lab()
        spin_init(A)
        A(f"{l}:\nv_readfirstlane_b32 s{st0}, v{vProg}\ns_cmp_ge_u32 s{st0}, s{sNEED}\ns_cbranch_scc1 {l2}\n" + prog_ld(vProg))
        spin_step(A)
        A(f"s_waitcnt vmcnt(0)\ns_branch {l}\n{l2}:")
    def done_probe():
        A(f"v_mov_b32 v{vZ}, 0\nv_mov_b32 v16, {DBG_DONE}\nglobal_load_dword v17, v16, s[{pDBG}:{pDBG + 1}] sc1")
    def first_probe():
        l = A.lab()
        A(f"v_readfirstlane_b32 s{st0}, v17\ns_cmp_ge_u32 s{st0}, 256\ns_cbranch_scc1 {l}")
        wait_done(A, 16, 17, st0)
        A(f"{l}:")
        prog_addr(1); A(prog_ld(18)); prog_addr(0); A(prog_ld(vProg))
    def first_kv():
        prog_spin()
        A(f"""s_lshl_b32 s{sKVS}, s{sRK}, 14
        s_add_u32 s{sKVS}, s{sKVS}, {WS_KV}
        s_lshl_b32 s{sKVL}, s{sW}, 12
        s_add_u32 s{sKVL}, s{sKVL}, {L_KV}
        s_mov_b32 m0, s{sKVL}""")
        A(f"v_mov_b32 v{vProg}, v18")
        for i in range(4): A(f"buffer_load_dwordx4 v{vWl0}, {S4(rWS)}, s{sKVS} offen offset:{1024 * i} sc1 lds")
    load_chunks(A, chunks, 10, cfg["CH_DEPTH"], 2, st0, st1, hooks={0: startup2, cfg["CH_DEPTH"]: lambda: signal_done(A, t0, t1), 31: first_kv,
                       },
                pfd=cfg["CH_PF"], vdummy=vDum, pre={30 - cfg['CH_DEPTH']: done_probe, 31: first_probe,
                     **{c: (lambda i=i: timeline(A, cfg, 4 + i, t0)) for i, c in enumerate(cfg.get('TLC', ()))}})
    for i in range(12): A(f"ds_write_b128 v{vWl1}, {v(32 + 4 * i, 4)} offset:{1024 * i}")
    timeline(A, cfg, 1, t0)
    if cfg["PROF"] == -1:
        A(f"s_or_b32 s3, s{sRK}, s{sW}\ns_cmp_lg_u32 s3, 0\ns_cbranch_scc1 L_dg1\nv_mov_b32 v{t0}, s98\ns_mov_b64 exec, 1\nglobal_store_dword v{vZ}, v{t0}, s[{pDBG}:{pDBG + 1}] offset:4 sc1\ns_mov_b64 exec, -1\nL_dg1:")
    if "chain" not in cfg["ENABLE"]:
        A("s_endpgm"); return
    for i in range(8): A(f"s_mov_b32 s{sMSK + i}, {0x11111111 << (i >> 1):#x}")
    A(f"""v_and_b32 v{t0}, 15, v{vLane}
    v_lshrrev_b32 v{t1}, 4, v{vLane}
    v_mov_b32 v{vIdx}, 0x4444
    v_mov_b32 v{t2}, 0xeeee
    s_mov_b32 vcc_lo, 0xcccccccc
    s_mov_b32 vcc_hi, 0xcccccccc
    v_cndmask_b32 v{vIdx}, v{vIdx}, v{t2}, vcc
    v_mov_b32 v{vSel}, 0x3f80
    v_mov_b32 v{t2}, 1.0
    s_mov_b32 vcc_lo, 0xf0f0f0f0
    s_mov_b32 vcc_hi, 0xf0f0f0f0
    v_cndmask_b32 v{vSel}, v{vSel}, v{t2}, vcc
    s_mov_b32 s{sONE}, 0x3f803f80
    s_mov_b32 s{sONE + 1}, 0x3f803f80
    s_mov_b32 s{sC}, {C_SCALE:#x}
    v_mov_b32 v{vZ + 1}, 0
    v_lshrrev_b32 v27, 2, v{t0}
    v_and_b32 v28, 1, v{t0}
    v_lshl_or_b32 v27, v27, 1, v28
    v_bfe_u32 v28, v{t0}, 1, 1
    v_lshlrev_b32 v{vMr}, 4, v{vLane}
    v_add_u32 v{vKr}, {L_KV}, v{vMr}
    v_add_u32 v{vVr}, {L_KV}, v{vWl0}
    v_add_u32 v{vMr}, {L_M}, v{vMr}
    s_add_u32 s{st0}, s{sW}, 1
    s_cmp_eq_u32 s{sW}, 0
    s_cselect_b32 s{st0}, 0, s{st0}
    s_lshl_b32 s{st0}, s{st0}, 10
    s_add_u32 s{cMD}, s{st0}, {L_M}
    s_lshl_b32 s{st1}, s{sW}, 12
    s_sub_u32 s{cME}, {WS_MEM}, s{st1}
    s_add_u32 s{cME}, s{cME}, s{st0}
    s_mov_b32 s{sME}, s{cME}
    s_lshl_b32 s{st0}, s{sW}, 10
    s_add_u32 s{cMC}, s{st0}, {L_M + 4096}
    s_sub_u32 s{cML}, {WS_MEM + 4096}, s{st1}
    s_add_u32 s{cML}, s{cML}, s{st0}
    s_mov_b32 s{sML}, s{cML}
    s_lshl_b32 s{st0}, s{sW}, 10
    s_add_u32 s{st0}, s{st0}, {L_Q}
    v_lshlrev_b32 v{t2}, 2, v{t0}
    v_lshl_or_b32 v{t2}, v{t1}, 7, v{t2}
    v_add_u32 v{vQw}, s{st0}, v{t2}
    v_lshrrev_b32 v{t2}, 3, v{t0}
    v_lshl_or_b32 v{t2}, v{t1}, 1, v{t2}
    s_lshl_b32 s{st0}, s{sW}, 3
    v_add_u32 v{t2}, s{st0}, v{t2}
    v_and_b32 v29, 7, v{t0}
    v_lshlrev_b32 v29, 3, v29
    v_lshl_or_b32 v{vPartSt}, v{t2}, 13, v29
    v_lshlrev_b32 v{t2}, 4, v{t1}
    v_lshl_or_b32 v{t2}, v27, 6, v{t2}
    v_add_u32 v{vQr}, {L_Q}, v{t2}
    v_lshlrev_b32 v{t2}, 4, v27
    v_lshl_or_b32 v{t2}, v{t1}, 8, v{t2}
    s_lshr_b32 s{st0}, s{sW}, 1
    s_lshl_b32 s{st0}, s{st0}, 10
    s_and_b32 s{st1}, s{sW}, 1
    s_lshl_b32 s{st1}, s{st1}, 7
    s_add_u32 s{st0}, s{st0}, s{st1}
    s_add_u32 s{st0}, s{st0}, {L_O}
    v_add_u32 v{vOw}, s{st0}, v{t2}
    v_lshl_or_b32 v{t2}, v28, 7, v{t2}
    v_add_u32 v{vOr}, {L_O}, v{t2}
    s_mul_i32 s{st0}, s{sW}, 3072
    s_lshl_b32 s{sKM}, s{sRK}, 12
    s_add_u32 s{sKM}, s{sKM}, {WS_KM}
    s_sub_u32 s{sKM}, s{sKM}, s{st0}
    s_lshl_b32 s{cPW}, s{sRK}, 6
    s_add_u32 s{cPW}, s{cPW}, {WS_PART}
    s_mov_b32 s{cPZ}, s{sPZ}
    s_mov_b32 s{sKP}, {WS_SIZE}
    s_mov_b32 s{sSTEP}, 0
    s_mov_b32 s{sX0}, 0
    s_mov_b32 s{sX1}, 8192
    s_mov_b32 s{sX2}, 16384
    s_cmp_lt_u32 s{sW}, {cfg['PRE']}
    s_cselect_b64 s[{sPX}:{sPX + 1}], -1, 0""")
    prog_addr(1); prog_spin()
    if PROF: A(f"s_mov_b32 s{sTS + 23}, 0\ns_mov_b32 s{sTS + 22}, 0\ns_mov_b32 s2, 0")

    def lw(j, half):
        return f"ds_read_b128 {v(G + 8 * (j % 4) + 4 * half, 4)}, v{vWl0} offset:{(j // 2) * 16384 + (j & 1) * 2048 + half * 1024}"
    def zero_acc():
        for i in range(QA, VA + 8, 2): A(f"v_mov_b64 {v(i, 2)}, 0")
    def preload():
        for j in range(4):
            for hf in range(2): A(lw(j, hf))
    sc_part = [f"s_lshl_b32 s{st0}, s{sX0}, 5", f"s_add_u32 s{sPW}, s{st0}, s{cPW}", f"s_add_u32 s{sWO}, s{sPW}, 4096",
               f"s_add_u32 s{sPR}, s{st0}, s{cPZ}", f"s_lshl_b32 s{st0}, s{sX2}, 5", f"s_add_u32 s{sPZ}, s{st0}, s{cPZ}",
               f"s_add_u32 s{sMN}, s{sX1}, {WS_MEM}", f"s_add_u32 s{sMZ}, s{sX0}, {WS_MEM}"] + \
              ([f"s_xor_b32 s{sPG}, s{sPG}, 4096", f"s_lshr_b32 s{sNEED}, s{sSTEP}, 1", f"s_add_u32 s{sNEED}, s{sNEED}, 2"] if NKV == 2 else
               [f"s_add_u32 s{sNEED}, s{sSTEP}, 3"]) + \
              [f"s_cmp_gt_u32 s{sSTEP}, {NSEG - 3}\ns_cselect_b32 s{sNEED}, 0, s{sNEED}"]
    sc_next = [f"s_add_u32 s{sME}, s{sX1}, s{cME}", f"s_add_u32 s{sML}, s{sX1}, s{cML}",
               f"s_mov_b32 s{st0}, s{sX0}", f"s_mov_b32 s{sX0}, s{sX1}", f"s_mov_b32 s{sX1}, s{sX2}", f"s_mov_b32 s{sX2}, s{st0}",
               f"s_add_u32 s{sSTEP}, s{sSTEP}, 1"] + \
              [f"s_mov_b32 s{sKP}, s{sKM}", f"s_add_u32 s{sKM}, s{sKM}, {32 * 4096}"]
    sq = []
    def sal(n):
        for _ in range(n):
            if sq: A(sq.pop(0))
    SEL, RA, RD, ES = M, M + 4, M + 16, M + 24
    A("s_waitcnt lgkmcnt(0)")
    zero_acc(); preload()
    fill_ones(A, ES, 8)
    timeline(A, cfg, 2, vT)
    A("s_branch L_fetch")

    eld = "\n".join(f"buffer_load_dwordx4 {v(ES + 4 * i, 4)}, v{vWl0}, {S4(rWS)}, s{sME} offen offset:{1024 * i} sc1" for i in range(2))
    shot = lambda r, so: [f"buffer_load_dwordx4 {v(r, 4)}, v{vWl0}, {S4(rWS)}, s{so} offen sc1", f"buffer_load_dwordx4 v{vWl0}, {S4(rWS)}, s{so} offen sc1 lds"]
    bld, cld = shot(ES, sME), shot(ES + 4, sML)
    ewr = f"ds_write_b128 v{vMr}, {v(ES, 4)}\nds_write_b128 v{vMr}, {v(ES + 4, 4)} offset:1024"
    masked = lambda x: "s_mov_b64 exec, vcc\n" + x + "\ns_mov_b64 exec, -1"
    def mx(b, n): return [f"v_max3_u32 v{vT}, v{vT if i else b}, v{b + i}, v{b + i + 1}" for i in range(0, n, 2)]
    CMP = f"v_cmp_eq_u32 vcc, -1, v{vT}"
    dmakv = lambda i: f"buffer_load_dwordx4 v{vWl0}, {S4(rWS)}, s{sKVS} offen offset:{1024 * i} {cfg['KVLD']} lds" if not cfg.get("NODMA") else "s_nop 0"
    for nm, ld, r, m_in, m_out in (("b", bld, ES, cMD, cMC), ("c", cld, ES + 4, cMC, sKVL)):
        A(f"L_r{nm}:\ns_mov_b32 m0, s{m_in}")
        spin_init(A)
        A(f"L_r{nm}1:")
        if PROF: A(f"s_add_u32 s{sTS + 22}, s{sTS + 22}, {1 if nm == 'b' else 0x10000}")
        for x in ld: A(x)
        spin_step(A)
        A("s_waitcnt vmcnt(0)")
        for x in mx(r, 4) + [CMP]: A(x)
        A(f"s_cbranch_vccnz L_r{nm}1\ns_mov_b32 m0, s{m_out}\ns_branch L_k{nm}")
    A(f"L_fl:\ns_mov_b32 m0, s{cMD}\ns_cmp_eq_u32 s{sW}, 3")
    stamp(10)
    A(f"s_barrier\ns_cbranch_scc1 L_fl3\n{bld[0]}\n{bld[1]}\ns_branch L_b0\nL_fl3:\nv_mov_b64 {v(ES, 2)}, 0\nv_mov_b64 {v(ES + 2, 2)}, 0\ns_branch L_b0")
    A(f".p2align 6\nL_fetch:\ns_cmp_lg_u32 s{sW}, 0\ns_cbranch_scc1 L_fl")
    spin_init(A)
    for i, d in enumerate(cfg["FD"]):
        if i: A(eld)
        delay(d)
    A("s_mov_b64 vcc, -1\nL_er:\n" + masked(eld))
    if PROF: A("s_add_u32 s2, s2, 1")
    spin_step(A)
    A(f"s_waitcnt vmcnt({2 * (len(cfg['FD']) - 1)})")
    for x in mx(ES, 8) + [CMP]: A(x)
    A("s_cbranch_vccnz L_er")
    if not cfg["SPEC"]: A(ewr)
    stamp(10)
    if cfg["PROF"] == -1:
        A(f"s_cmp_lg_u32 s{sSTEP}, 1\ns_cbranch_scc1 L_dg2"); timeline(A, cfg, 9, vT); A("L_dg2:")
    A("s_barrier\nL_b0:")
    L = Cnt(A, "lgkmcnt")
    def mrd(p): L.op(f"ds_read_b128 {v(M + 4 * p, 4)}, v{vMr} offset:{1024 * p}", ("m", p))
    def lwr(j, hf): L.op(lw(j, hf), ("w", j))
    def kfr(kf): L.op(f"ds_read_b128 {v(M + 4 * kf, 4)}, v{vKr} offset:{(kf >> 1) * 4096 + 2048 + (kf & 1) * 1024}", ("K", kf))
    def frag(k, t):
        if k == "K": kfr(t)
        elif k == "V": L.op(f"ds_read_b128 {v(G + 4 * t, 4)}, v{vVr} offset:{1024 * t}", ("V", t))
        else: L.op(f"ds_read_b128 {v(G + 8 * t + (4 if k == 'k' else 0), 4)}, v{vQr} offset:{t * 1024 + (512 if k == 'k' else 0)}", (k, t))
    A("s_waitcnt lgkmcnt(0)\ns_barrier")
    stamp(0)
    mrd(0); mrd(1)
    A(f"s_add_u32 s{sKVS}, s{sKVS}, {32 * 16384}\ns_xor_b32 s{sKVL}, s{sKVL}, 0x3c000\ns_mov_b32 m0, s{cMC}")
    sq.extend(sc_part); sal(3)
    L.wait(("m", 0))
    stamp(1)
    NV = 4
    qk = lambda p: [(QA, p, W8(WQ(p, 0))), (QA + 4, p, W8(WQ(p, 1)))] + \
                   [(QA + 8 + 4 * b, p, W8(WK(p, b)) if p % 2 == 0 else v(G + 8 * ((p - 1 + b) % 4), 8)) for b in range(2)]
    vv = lambda p: [(VA + 4 * b, p, W8(WV(p, b))) for b in range(2)]
    seq = qk(0) + qk(1) + vv(0) + vv(1) + qk(2) + qk(3) + vv(2) + vv(3) + sum((qk(p) for p in range(4, 8)), [])
    H = 24
    gap = {}; val = {}
    def at(k, fn): gap.setdefault(k, []).append(fn)
    for k, (j, hf) in zip((6, 7, 8, 9), ((4, 0), (4, 1), (5, 0), (5, 1))): at(k + (k > 6), lambda j=j, hf=hf: lwr(j, hf))
    CS, BP, LP = cfg["CS"], cfg["BP"], cfg["LP"]
    at(CS, lambda: A(cld[0])); at(CS + 1, lambda: A(cld[1]))
    at(BP, lambda: A("s_waitcnt vmcnt(2)"))
    for i, x in enumerate(mx(ES, 4) + [CMP]): val.setdefault(BP + i // 2, []).append(x)
    def bb():
        A("s_cbranch_vccnz L_rb\nL_kb:\ns_barrier"); mrd(2); mrd(3)
        A(f"s_mov_b32 m0, s{sKVL}")
    at(11, bb)
    VS = cfg["VS"]
    NEG = G if min(VS["r0"], VS["r1"]) < 200 else QA + 12
    kmst = f"buffer_store_dwordx4 {v(KMQ, 4)}, v{vWl0}, {S4(rWS)}, s{sKM} offen sc1"
    vop = {"km": kmst if VS["km"] >= 200 else kmst.replace(f"s{sKM} ", f"s{sKP} ")}
    vop["pg"] = prog_ld(vProg)
    for i in range(4): vop[f"d{i}"] = dmakv(i)
    for i in range(2): vop[f"r{i}"] = f"buffer_store_dwordx4 {v(NEG, 4)}, v{vWl0}, {S4(rWS)}, s{sPZ} offen offset:{1024 * i}"
    def vslot(k):
        for n in sorted(VS):
            if VS[n] == k: A(vop[n])
    for n in VS:
        if VS[n] < 100 and VS[n] != LP: at(VS[n], lambda n=n: A(vop[n]))
    assert LP not in VS.values()
    if NEG == G: val[H + 8] = [f"v_mov_b64 {v(NEG, 2)}, -1"]; val[H + 9] = [f"v_mov_b64 {v(NEG + 2, 2)}, -1"]
    at(LP, lambda: A(f"s_waitcnt vmcnt({sum(x < LP for x in VS.values())})"))
    for i, x in enumerate(mx(ES + 4, 4) + [CMP]): val.setdefault(LP + i, []).append(x)
    at(LP + 4, lambda: A("s_cbranch_vccnz L_rc\nL_kc:\ns_barrier"))
    for i in range(4): at(LP + 4 + (i if i < 2 else 2 * i), lambda i=i: mrd(4 + i))
    for k, (j, hf) in zip((H + 1, H + 2, H + 5, H + 6), ((6, 0), (6, 1), (7, 0), (7, 1))): at(k, lambda j=j, hf=hf: lwr(j, hf))
    at(H + 5, lambda: L.wait(("w", 5))); at(H + 13, lambda: L.wait(("w", 7)))
    for i in range(NV): at(H + 8 + 2 * i, lambda i=i: kfr(i))
    for k, (acc, p, wop) in enumerate(seq):
        A(f"{SMF} {v(acc, 4)}, {v(M + 4 * p, 4)}, {wop}, v{vIdx}")
        g = gap.get(k, [])
        for fn in g: fn()
        n = len(g)
        if k + 1 < len(seq) and seq[k + 1][0] == QA: L.wait(("m", seq[k + 1][1])); n += 1
        if cfg.get("QS") and k in cfg["QS"]: stamp(4 + cfg["QS"].index(k), True)
        sal((2 if k in val else 3) - n)
        for x in val.get(k, []): A(x)
    assert not sq
    stamp(2)
    qd = G + 16
    def addh(d): return [f"v_add_f32 v{d}, v{d}, v{d + 2}", f"v_add_f32 v{d + 1}, v{d + 1}, v{d + 3}"]
    for x in addh(QA) + addh(QA + 4): A(x)
    A(f"v_cvt_pk_bf16_f32 v{qd}, v{QA}, v{QA + 4}\nv_cvt_pk_bf16_f32 v{qd + 1}, v{QA + 1}, v{QA + 5}")
    L.op(f"ds_write2_b32 v{vQw}, v{qd}, v{qd + 1} offset1:16")
    for x in addh(QA + 8) + addh(QA + 12): A(x)
    A(f"v_cvt_pk_bf16_f32 v{KMQ}, v{QA + 8}, v{QA + 12}\nv_cvt_pk_bf16_f32 v{KMQ + 1}, v{QA + 9}, v{QA + 13}")
    L.op(f"ds_write2_b32 v{vQw}, v{KMQ}, v{KMQ + 1} offset0:128 offset1:144", "wk")
    if cfg.get("QS") and 99 in cfg["QS"]: stamp(4 + cfg["QS"].index(99), True)
    rq = [("q", 0), ("k", 0), ("q", 1), ("k", 1), ("K", 4), ("q", 2), ("K", 5), ("k", 2), ("K", 6), ("q", 3), ("K", 7), ("k", 3), ("V", 0), ("V", 1)]
    rest = sum((vv(p) for p in range(NV, 8)), [])
    EB = cfg["EB"]
    for e, (acc, p, wop) in enumerate(rest):
        A(f"{SMF} {v(acc, 4)}, {v(M + 4 * p, 4)}, {wop}, v{vIdx}")
        if (e & 1) and p < 4: kfr(p)
        if e == EB: L.wait("wk"); A("s_barrier")
        if e > EB and rq and (rq[0][0] != "K" or rq[0][1] < p + (e & 1)): frag(*rq.pop(0))
        vslot(100 + e)
        if e < 2 and NEG != G: A(f"v_mov_b64 {v(NEG + 2 * e, 2)}, -1")
        if cfg.get("QS") and 100 + e in cfg["QS"]: stamp(4 + cfg["QS"].index(100 + e), True)
    stamp(3)
    Sm, S0, S1 = QA, QA + 4, QA + 8
    vq = addh(VA) + addh(VA + 4) + [f"v_cvt_pk_bf16_f32 v{KMQ + 2}, v{VA}, v{VA + 1}", f"v_cvt_pk_bf16_f32 v{KMQ + 3}, v{VA + 4}, v{VA + 5}"]
    zq = [f"v_mov_b64 {v(M + i, 2)}, 0" for i in range(0, 32, 2)]
    def z(n):
        for _ in range(n):
            if zq: A(zq.pop(0))
    for t in range(4):
        need = [("q", t), ("k", t), ("K", 2 * t), ("K", 2 * t + 1)]
        while any(x not in L.tags for x in need): frag(*rq.pop(0))
        L.wait(min((L.need(x), x) for x in need)[1])
        for i, (d, a_) in enumerate(((S0, M + 8 * t), (S1, M + 8 * t + 4), (Sm, G + 8 * t + 4))):
            A(f"{MF} {v(d, 4)}, {v(a_, 4)}, {v(G + 8 * t, 4)}, {v(d, 4) if t else 0}")
            e = 3 * t + i
            if rq and (rq[0][0] != "V" or e >= 2): frag(*rq.pop(0))
            if 2 <= e <= 4: A(vq[2 * (e - 2)] + "\n" + vq[2 * (e - 2) + 1])
            if e == 4: A(f"s_cmp_eq_u32 s{sSTEP}, {cfg.get('LAST', NSEG - 1)}")
            if e == 5 and not cfg.get("XL"): A("s_cbranch_scc1 L_ch_exit")
            vslot(200 + e)
            if e == 7: A(f"v_mov_b64 {v(G + 8, 2)}, s[{sONE}:{sONE + 1}]\nv_mov_b64 {v(G + 10, 2)}, s[{sONE}:{sONE + 1}]")
            if e >= 8: z(2)
    assert not rq
    stamp(4)
    if cfg.get("XL"): A(f"s_cmp_eq_u32 s{sSTEP}, {NSEG - 1}\ns_cbranch_scc1 L_ch_exit")
    m1, m2, m3, tt = G + 28, G + 29, G + 30, G + 31
    z(1)
    A(f"""v_max3_f32 v{m1}, v{S0}, v{S0 + 1}, v{S0 + 2}
    v_max3_f32 v{m2}, v{S0 + 3}, v{S1}, v{S1 + 1}
    v_max3_f32 v{m3}, v{S1 + 2}, v{S1 + 3}, v{m1}
    v_max3_f32 v{m1}, v{Sm}, v{Sm + 1}, v{m2}
    v_max_f32 v{m2}, v{m1}, v{m3}
    v_max_f32 v{tt}, v{m1}, v{m3}""")
    z(2)
    A(f"v_permlane16_swap_b32 v{m2}, v{tt}\nv_max_f32 v{m1}, v{m2}, v{tt}\nv_max_f32 v{m3}, v{m2}, v{tt}")
    z(2)
    A(f"v_permlane32_swap_b32 v{m1}, v{m3}\nv_max_f32 v{m1}, v{m1}, v{m3}\nv_mul_f32 v{m1}, s{sC}, v{m1}")
    sv = [Sm, Sm + 1] + [S0 + i for i in range(8)]
    P = G + 12
    O0, O1, SU = G + 16, G + 20, G + 24
    fm = lambda x: f"v_fma_f32 v{x}, v{x}, s{sC}, -v{m1}"
    A(fm(sv[0]))
    for i in range(10):
        if i + 1 < 10: A(fm(sv[i + 1]))
        A(f"v_exp_f32 v{sv[i]}, v{sv[i]}")
        if i == 2: A(f"v_cvt_pk_bf16_f32 v{PM}, v{Sm}, v{Sm + 1}\nv_cvt_pk_bf16_f32 v{PM + 3}, v{Sm}, v{Sm + 1}")
        if i in (4, 6, 8): A(f"v_cvt_pk_bf16_f32 v{P + (i - 4) // 2}, v{sv[i - 2]}, v{sv[i - 1]}")
        if i == 3: A(f"{MF16} {v(SU, 4)}, {v(G + 8, 2)}, {v(PM, 2)}, 0")
        if i == 5: A(f"{MF16} {v(O0, 4)}, {v(KMQ + 2, 2)}, {v(PM, 2)}, 0")
        if i == 7: A(f"{MF16} {v(O1, 4)}, {v(KMQ + 2, 2)}, {v(PM + 2, 2)}, 0")
    L.wait(("V", 1))
    A(f"v_cvt_pk_bf16_f32 v{P + 3}, v{sv[8]}, v{sv[9]}")
    stamp(5)
    z(2)
    A(f"{MF} {v(SU, 4)}, {v(G + 8, 4)}, {v(P, 4)}, {v(SU, 4)}"); z(2)
    A(f"{MF} {v(O0, 4)}, {v(G, 4)}, {v(P, 4)}, {v(O0, 4)}")
    A(f"{MF} {v(O1, 4)}, {v(G + 4, 4)}, {v(P, 4)}, {v(O1, 4)}")
    ost = lambda k: (VA, G, QA + 8, G + 24, G + 8, VA)[k]
    def owr(k, hf): L.op(f"ds_read_b128 {v(ost(k) + 4 * hf, 4)}, v{vWl1} offset:{k * 2048 + hf * 1024}", ("ow", k))
    owr(0, 0)
    A(f"v_rcp_f32 v{SU}, v{SU}")
    owr(0, 1)
    for o in (O0, O1):
        for i in range(4): A(f"v_mul_f32 v{o + i}, v{o + i}, v{SU}")
        for i in range(2): A(f"v_cvt_pk_bf16_f32 v{P + (o - O0) // 2 + i}, v{o + 2 * i}, v{o + 2 * i + 1}")
    assert not zq
    L.op(f"ds_write_b128 v{vOw}, {v(P, 4)}", "ow")
    owr(1, 0); owr(1, 1)
    L.wait("ow"); A("s_barrier")
    L.op(f"ds_read_b128 {v(QA, 4)}, v{vOr}", "o0"); L.op(f"ds_read_b128 {v(QA + 4, 4)}, v{vOr} offset:1024", "o1")
    stamp(6)
    L.wait("o0")
    OQ = G + 16
    tile = lambda t: addh(M + 4 * t) + [f"v_cvt_pk_bf16_f32 v{OQ + t}, v{M + 4 * t}, v{M + 4 * t + 1}"]
    def pstore(p): A(f"buffer_store_dwordx2 {v(OQ + 2 * p, 2)}, v{vPartSt}, {S4(rWS)}, s{sPW if p < 2 else sWO} offen offset:{2048 * (p & 1)}")
    rl = "\n".join(f"buffer_load_dwordx4 {v(RD + 4 * i, 4)}, v{vWl0}, {S4(rWS)}, s{sPR} offen offset:{1024 * i} sc1" for i in range(2))
    sq.extend(sc_next)
    for e in range(16):
        t, u = e >> 1, e & 1
        A(f"{SMF} {v(M + 4 * t, 4)}, {v(QA + 4 * u, 4)}, {W8(WO(t, u)) if t < 5 else v(ost(e - 10), 8)}, v{vIdx}")
        if e == 0: L.wait("o1")
        if e < 6: owr(2 + e // 2, e & 1)
        if e == 10: owr(5, 0); owr(5, 1)
        if e == 9: L.wait(("ow", 4))
        if e == 14: L.wait(("ow", 5))
        if e in (7, 11) or (e == 15 and cfg['PREP'] != 'c'): pstore((e - 7) // 4)
        if e >= 1: sal(1)
        if e in (1, 2): A(f"v_xor_b32 v{vKr if e == 1 else vVr}, 0x3c000, v{vKr if e == 1 else vVr}")
        if e >= 3 and (e & 1): A(tile((e - 3) // 2)[0] + "\n" + tile((e - 3) // 2)[1])
        if e >= 4 and not (e & 1): A(tile((e - 4) // 2)[2])
    assert not sq
    A(tile(6)[2])
    for i in range(0, 8, 2): A(f"v_mov_b64 {v(RD + i, 2)}, -1")
    pre = f"s_cbranch_scc1 L_nopre\n{rl}\nL_nopre:"
    A(f"s_cmp_lg_u32 s{sW}, 0")
    if cfg["PREP"] == "c": A(pre); pstore(2)
    for x in tile(7): A(x)
    if cfg["PREP"] == "a": A(pre)
    pstore(3)
    stamp(7)
    rmf = lambda i: f"{MF} {v(RA, 4)}, {v(SEL, 4)}, {v(RD + 4 * i, 4)}, {v(RA, 4) if i else 0}"
    def steplog():
        if PROF:
            A(f"""s_memrealtime s[100:101]
            s_waitcnt lgkmcnt(0)
            s_bitcmp1_b32 s{sW}, 0
            s_cselect_b32 s3, s100, s{sTS + 14}
            v_mov_b32 v{vT}, s3
            s_lshl_b32 s{st0}, s{sRK}, 6
            s_add_u32 s{st0}, s{st0}, s{sSTEP}
            s_lshl_b32 s{st0}, s{st0}, 2
            s_add_u32 s{st0}, s{st0}, {WS_DBG + 0x8000}
            s_lshl_b32 s3, s{sW}, 13
            s_add_u32 s{st0}, s{st0}, s3
            s_mov_b64 exec, 1
            buffer_store_dword v{vT}, off, {S4(rWS)}, s{st0}
            s_mov_b64 exec, -1""")
    def progchk():
        A("s_waitcnt vmcnt(4)"); prog_spin(); steplog()
    def odd(n):
        l = A.lab()
        A(f"s_bitcmp1_b32 s{sW}, 0\ns_cbranch_scc0 {l}"); delay(n); A(f"{l}:")
    chores = {"s": lambda: [A(f"v_cndmask_b32 v{SEL + i}, 0, v{vSel}, s[{sMSK + 2 * i}:{sMSK + 2 * i + 1}]") for i in range(4)] +
                           [fill_ones(A, ES, 8)],
              "p": preload, "z": zero_acc, "A": lambda: A(rl), "e": lambda: delay(4), "d": lambda: delay(8), "D": lambda: delay(16),
              "k": progchk, "o": lambda: odd(8), "O": lambda: odd(16)}
    A(f"s_cbranch_scc0 L_early\ns_cmp_eq_u32 s{sW}, 1\ns_cbranch_scc1 L_mid")
    for ch in cfg["RED"][2]: chores[ch]()
    A("s_branch L_red0\nL_mid:")
    for ch in cfg["RED"][1]: chores[ch]()
    A("s_branch L_red0\nL_early:")
    for ch in cfg["RED"][0]: chores[ch]()
    if cfg["PREP"] in "ac":
        A(f"s_waitcnt vmcnt({(2 if cfg['PREP'] == 'c' else 1) + 2 * cfg['RED'][0].count('A')})")
        for x in mx(RD, 8) + [CMP, rmf(0), rmf(1)]: A(x)
        A("s_cbranch_vccz L_pub0")
    A("L_red0:")
    spin_init(A)
    def unit():
        for x in mx(RD, 8) + [CMP, rmf(0), rmf(1)]: A(x)
        A("s_cbranch_vccz L_pub")
    A("s_mov_b64 vcc, -1\nL_red:\n" + masked(rl))
    if PROF: A(f"s_add_u32 s{sTS + 23}, s{sTS + 23}, 1")
    spin_step(A)
    A(f"s_waitcnt vmcnt({2 * cfg['RED'][1].count('A')})")
    for x in mx(RD, 8) + [CMP, rmf(0), rmf(1)]: A(x)
    A("s_cbranch_vccnz L_red\ns_nop 2\nL_pub0:\ns_nop 3")
    stamp(8)
    for r in (4, 8):
        for i in range(4): A(f"v_add_f32_dpp v{RA + i}, v{RA + i}, v{RA + i} row_ror:{r} row_mask:0xf bank_mask:0xf")
    A(f"""v_cvt_pk_bf16_f32 v{RA}, v{RA}, v{RA + 1}
    s_mov_b64 exec, {PUBX}
    v_cvt_pk_bf16_f32 v{RA + 1}, v{RA + 2}, v{RA + 3}
    buffer_store_dwordx2 {v(RA, 2)}, v{vMemSt}, {S4(rWS)}, s{sMN} offen
    buffer_store_dwordx2 {v(ES, 2)}, v{vMemSt}, {S4(rWS)}, s{sMZ} offen
    s_mov_b64 exec, -1""")
    stamp(9)
    A("s_branch L_fetch")
    A("L_ch_exit:\n" + kmst)
    timeline(A, cfg, 3, vT)
    if PROF:
        A(f"""s_waitcnt lgkmcnt(0)
        s_lshl_b32 s{st0}, s{sRK}, 2
        s_add_u32 s{st0}, s{st0}, s{sW}
        s_lshl_b32 s{st0}, s{st0}, 7
        s_add_u32 s{st0}, s{st0}, {WS_DBG}
        s_mov_b64 exec, 1""")
        for i, r in enumerate([sTS + 2 * i for i in range(11)] + [sTS + 23, 2, sTS + 22]): A(f"v_mov_b32 v0, s{r}\nbuffer_store_dword v0, v{vZ}, {S4(rWS)}, s{st0} offen offset:{4 * i}")
    A("s_endpgm")
```

```python
from common import *

SMF = "v_smfmac_f32_16x16x64_bf16"

def role_chain(A, cfg):
    NKV, PROF = cfg["NKV"], cfg["PROF"] >= 2
    assert NKV in (1, 2)
    M, G, QA, VA, KMQ, PM = 0, 32, 64, 80, 88, 92
    vIdx, vWl0, vWl1, vKr, vVr, vMr, vPartSt, vMemSt, vQw, vQr, vOw, vOr, vSel, vProg, vT, vMw = range(96, 112)
    vZ = PM + 1
    L_KV, L_Q, L_O, L_M = 112 * 1024, 144 * 1024, 148 * 1024, 150 * 1024
    PUBX = "0x000f000f"
    RS = cfg["RS"]
    WS_MEM = globals()["WS_MEM"] + cfg["MEMOFF"]
    sSTEP, sX0, sX1, sX2, sPW, sPR, sPZ, sMN, sMZ, sKVS, sKVL, sKM, sPG, sNEED, sC, sME, sML, cME, sWO = range(56, 75)
    cPW, cPZ, cMD = 40, 41, 42
    sONE, sMSK = 76, 78
    sKP, sC2 = 75, 88
    sPX = 86
    st0, st1 = 100, 101
    sTS = 8
    def wreg(i): return ("a", 8 * i) if i < 32 else ("v", 112 + 8 * (i - 32))
    WQ = lambda p, b: wreg(2 * p + b)
    WK = lambda p, b: wreg(16 + p + b)
    WV = lambda p, b: wreg(24 + 2 * p + b)
    WO = lambda t, u: wreg(40 + 2 * t + u) if t < 5 else ("v", 32 + 8 * (2 * (t - 5) + u))
    W8 = lambda w: R(w[0], w[1], 8)
    def stamp(i, force=False):
        if PROF and (force or (not cfg.get("QS") or i < 4) and (not cfg.get("WS") or i >= 5)): A(f"{'s_memrealtime' if cfg.get('RT') else 's_memtime'} s[{sTS + 2 * i}:{sTS + 2 * i + 1}]")
    def delay(n):
        while n > 0:
            A(f"s_nop {min(n, 16) - 1}"); n -= 16

    A("L_chain:")
    timeline(A, cfg, 0, 1)
    srd(A, rA, pWQ, 1 << 22); srd(A, rB, pWK, 1 << 22); srd(A, rC, pWV, 1 << 22); srd(A, rD, pWO, 1 << 22)
    vLane, vOffA, vOffO, vT0, t0, t1, t2, vPF, vDum = range(20, 29)
    lane_fields(A, vLane)
    dma_col(A, vOffA, vLane, t0, t1, st0)
    A(f"""v_bfe_u32 v{t0}, v{vLane}, 4, 1
    v_lshrrev_b32 v{t1}, 5, v{vLane}
    s_and_b32 s{st0}, s{sW}, 1
    s_lshr_b32 s{st1}, s{sW}, 1
    v_lshl_add_u32 v{t2}, v{t1}, 5, v{t0}
    s_lshl_b32 s3, s{st1}, 4
    v_add_u32 v{t2}, s3, v{t2}
    s_lshl_b32 s3, s{st0}, 1
    v_add_u32 v{t2}, s3, v{t2}
    v_lshl_add_u32 v{vOffO}, v{t2}, 10, v{vOffA}
    v_lshlrev_b32 v{t0}, 4, v{t0}
    v_lshl_add_u32 v{t2}, v{t1}, 2, v{t0}
    v_add_u32 v{t2}, s{sW}, v{t2}
    v_lshl_add_u32 v{vOffA}, v{t2}, 13, v{vOffA}
    s_lshl_b32 s{sKVS}, s{sRK}, 8
    s_lshl_b32 s3, s{sRK}, 1
    s_add_u32 s3, s3, s{st1}
    s_lshr_b32 s{st1}, s3, 5
    s_lshl_b32 s{st1}, s{st1}, 7
    s_and_b32 s3, s3, 31
    s_add_u32 s3, s3, s{st1}
    s_lshl_b32 s3, s3, 13
    s_lshl_b32 s{st0}, s{st0}, 12
    s_add_u32 s3, s3, s{st0}
    v_lshl_add_u32 v{vPF}, v{vLane}, 6, s3
    s_lshl_b32 s{st0}, s{sW}, 12
    v_lshl_add_u32 v{vWl0}, v{vLane}, 4, s{st0}
    s_mul_i32 s{st0}, s{sW}, 12288
    s_add_u32 s{st0}, s{st0}, 0x10000
    v_lshl_add_u32 v{vWl1}, v{vLane}, 4, s{st0}""")
    tr_base(A, vT, vLane, t0, t1)
    A(f"s_lshl_b32 s{st0}, s{sW}, 6\nv_xor_b32 v{vT0}, s{st0}, v{vT}")
    for i in range(4):
        A(f"""s_add_u32 s{st0}, s{sRK}, {i}
        s_and_b32 s{sMSK + 4 + i}, s{st0}, 3
        s_lshl_b32 s{st0}, s{sMSK + 4 + i}, 8
        s_lshl_b32 s{st1}, s{sRK}, 17
        s_add_u32 s{sMSK + i}, s{st0}, s{st1}""")

    def startup():
        fill_ones(A, 0, 4)
        A(f"""s_mul_i32 s{sPZ}, s{sRK}, {RS}
        s_add_u32 s{sPZ}, s{sPZ}, {WS_PART}
        s_lshl_b32 s{st0}, s{sW}, 11
        s_sub_u32 s{sPZ}, s{sPZ}, s{st0}
        v_bfe_u32 v{t0}, v{vLane}, 4, 1
        v_and_b32 v{t1}, 3, v{vLane}
        s_and_b32 s3, s{sRK}, 6
        v_add_u32 v{t2}, s3, v{t0}
        v_lshlrev_b32 v{t2}, 10, v{t2}
        v_lshl_add_u32 v{t2}, v{t1}, 2, v{t2}
        s_lshr_b32 s{st0}, s{sRK}, 3
        s_lshl_b32 s{sX0}, s{st0}, 8
        s_lshl_b32 s{sX1}, s{sW}, 6
        s_add_u32 s{sX0}, s{sX0}, s{sX1}
        s_and_b32 s{sX2}, s{sRK}, 1
        s_lshl_b32 s{sX1}, s{sX2}, 4
        s_add_u32 s{sX0}, s{sX0}, s{sX1}
        v_add_u32 v{t2}, s{sX0}, v{t2}""")
        for i, o in enumerate((0, 32, 2, 34)): A(f"global_load_ushort v{8 + i}, v{t2}, s[{pMEM0}:{pMEM0 + 1}] offset:{o}")
    def startup2():
        A(f"s_and_b32 s3, s{sRK}, 6\ns_lshr_b32 s{st0}, s{sRK}, 3\nv_bfe_u32 v{t0}, v{vLane}, 4, 1\nv_and_b32 v{t1}, 3, v{vLane}")
        for sl in range(3):
            A(f"s_add_u32 s{sX1}, s{sPZ}, {sl * 8192 * 40}")
            for i in range(2): A(f"buffer_store_dwordx4 {v(0, 4)}, v{vWl0}, {S4(rWS)}, s{sX1} offen offset:{i * 1024}")
        A(f"""s_lshl_b32 s{sX0}, s{sW}, 1
        s_lshr_b32 s{sX1}, s{st0}, 1
        s_add_u32 s{sX0}, s{sX0}, s{sX1}
        s_lshl_b32 s{sX0}, s{sX0}, 2
        s_and_b32 s{st0}, s{st0}, 1
        s_lshl_b32 s{st0}, s{st0}, 1
        s_add_u32 s{sX0}, s{sX0}, s{st0}
        s_add_u32 s{sX0}, s{sX0}, s{sX2}
        s_lshl_b32 s{sX0}, s{sX0}, 8
        s_lshl_b32 s3, s3, 5
        s_add_u32 s{sX0}, s{sX0}, s3
        v_lshlrev_b32 v{vMemSt}, 4, v{t0}
        v_lshrrev_b32 v{t0}, 1, v{t1}
        v_lshl_or_b32 v{vMemSt}, v{t0}, 5, v{vMemSt}
        v_and_b32 v{t0}, 1, v{t1}
        v_lshl_or_b32 v{vMemSt}, v{t0}, 3, v{vMemSt}
        v_add_u32 v{vMemSt}, s{sX0}, v{vMemSt}
        s_mov_b32 s{st0}, {WS_MEM}
        v_lshl_or_b32 v8, v9, 16, v8
        v_lshl_or_b32 v9, v11, 16, v10
        v_min_u32 v8, -2, v8
        v_min_u32 v9, -2, v9
        s_mov_b64 exec, {PUBX}
        buffer_store_dwordx2 v[8:9], v{vMemSt}, {S4(rWS)}, s{st0} offen
        s_add_u32 s{st0}, s{st0}, 8192
        buffer_store_dwordx2 v[0:1], v{vMemSt}, {S4(rWS)}, s{st0} offen
        s_add_u32 s{st0}, s{st0}, 8192
        buffer_store_dwordx2 v[0:1], v{vMemSt}, {S4(rWS)}, s{st0} offen
        s_mov_b64 exec, -1""")
    startup()
    chunks = []
    def two(d0, d1):
        def ex(A, base):
            A(f"v_add_u32 v{t0}, {base}, v{vT0}\nv_xor_b32 v{t1}, 32, v{t0}")
            tr_tile(A, d0[0], d0[1], t0); tr_tile(A, d1[0], d1[1], t1)
        return ex
    def cha(r, p, ex):
        base = (256 * (p & 1) + 32 * (p >> 1)) * 8192
        chunks.append(dict(srd=r, voff=vOffA, sbase=sKVS, offs=[base + (128 * (i >> 1) + 8 * (i & 1)) * 8192 for i in range(4)], extract=ex, pf=(vPF, base)))
    for u in range(2):
        for k in range(4):
            def ex(A, base, u=u, k=k):
                l = A.lab()
                A(f"s_cmp_lg_u32 s{sW}, s{sMSK + 4 + k}\ns_cbranch_scc1 {l}\nv_add_u32 v{t0}, {base}, v{vT}")
                for t in range(8):
                    A(f"v_xor_b32 v{t1}, {32 * t}, v{t0}")
                    tr_tile(A, WO(t, u)[0], WO(t, u)[1], t1)
                A(f"{l}:")
            chunks.append(dict(srd=rD, voff=vOffO, sbase=sMSK + k, offs=[(64 * u + 4 * i) * 1024 for i in range(4)], extract=ex))
    for p in range(8): cha(rA, p, two(WQ(p, 0), WQ(p, 1)))
    for p in range(0, 8, 2): cha(rB, p, two(WK(p, 0), WK(p, 1)))
    for p in range(8): cha(rC, p, two(WV(p, 0), WV(p, 1)))
    if cfg["CH_MIX"] == 2: chunks[:] = chunks[8:] + chunks[:8]
    if cfg["CH_MIX"] == 1:
        wo, rest = chunks[:8], chunks[8:]
        chunks[:] = sum(([wo[i]] + rest[(5 * i) // 2:(5 * i + 5) // 2] for i in range(8)), [])
        assert len(chunks) == 28
    def inplace(A, base):
        two(("v", 0), ("v", 8))(A, base)
        A(f"v_add_u32 v{t0}, {base}, v{vWl0}\ns_waitcnt lgkmcnt(0)\ns_barrier")
        for i in range(4): A(f"ds_write_b128 v{t0}, {v(4 * i, 4)} offset:{1024 * i}")
    for p in range(1, 8, 2): cha(rB, p, inplace)

    def prog_addr(seg):
        A(f"s_lshl_b32 s{sPG}, s{sRK}, 7\ns_add_u32 s{sPG}, s{sPG}, {WS_PROG + (seg % NKV) * 4096}\ns_mov_b32 s{sNEED}, {seg // NKV + 1}")
    prog_ld = lambda r: f"buffer_load_dword v{r}, v{vZ}, {S4(rWS)}, s{sPG} offen sc1"
    def prog_spin():
        l, l2 = A.lab(), A.lab()
        spin_init(A)
        A(f"{l}:\nv_readfirstlane_b32 s{st0}, v{vProg}\ns_cmp_ge_u32 s{st0}, s{sNEED}\ns_cbranch_scc1 {l2}\n" + prog_ld(vProg))
        spin_step(A)
        A(f"s_waitcnt vmcnt(0)\ns_branch {l}\n{l2}:")
    def done_probe():
        if cfg["TLB"]: A(f"v_lshlrev_b32 v19, 21, v{vLane}\nbuffer_load_dword v19, v19, {S4(rWS)}, 0 offen")
        A(f"v_mov_b32 v{vZ}, 0\nv_mov_b32 v16, {DBG_DONE}\nglobal_load_dword v17, v16, s[{pDBG}:{pDBG + 1}] sc1")
    def first_probe():
        l = A.lab()
        A(f"v_readfirstlane_b32 s{st0}, v17\ns_cmp_ge_u32 s{st0}, 256\ns_cbranch_scc1 {l}")
        wait_done(A, 16, 17, st0)
        A(f"{l}:")
        prog_addr(1); A(prog_ld(18)); prog_addr(0); A(prog_ld(vProg))
    def first_kv():
        prog_spin()
        A(f"""s_lshl_b32 s{sKVS}, s{sRK}, 14
        s_add_u32 s{sKVS}, s{sKVS}, {WS_KV}
        s_lshl_b32 s{sKVL}, s{sW}, 12
        s_add_u32 s{sKVL}, s{sKVL}, {L_KV}
        s_mov_b32 m0, s{sKVL}""")
        A(f"v_mov_b32 v{vProg}, v18")
        for i in range(4): A(f"buffer_load_dwordx4 v{vWl0}, {S4(rWS)}, s{sKVS} offen offset:{1024 * i} sc1 lds")
    load_chunks(A, chunks, 10, cfg["CH_DEPTH"], 2, st0, st1, hooks={0: startup2, cfg["CH_DEPTH"]: lambda: signal_done(A, t0, t1), 31: first_kv,
                       **({cfg['GATE']: lambda: signal_done(A, t0, t1, DBG_CH)} if cfg['GATE'] else {}),
                       },
                pfd=cfg["CH_PF"], vdummy=vDum, pre={30 - cfg['CH_DEPTH']: done_probe, 31: first_probe,
                     **{c: (lambda i=i: timeline(A, cfg, 4 + i, t0)) for i, c in enumerate(cfg.get('TLC', ()))}})
    for i in range(12): A(f"ds_write_b128 v{vWl1}, {v(32 + 4 * i, 4)} offset:{1024 * i}")
    timeline(A, cfg, 1, t0)
    if cfg["PROF"] == -1:
        A(f"s_or_b32 s3, s{sRK}, s{sW}\ns_cmp_lg_u32 s3, 0\ns_cbranch_scc1 L_dg1\nv_mov_b32 v{t0}, s98\ns_mov_b64 exec, 1\nglobal_store_dword v{vZ}, v{t0}, s[{pDBG}:{pDBG + 1}] offset:4 sc1\ns_mov_b64 exec, -1\nL_dg1:")
    if "chain" not in cfg["ENABLE"]:
        A("s_endpgm"); return
    for i in range(8): A(f"s_mov_b32 s{sMSK + i}, {0x11111111 << (i >> 1):#x}")
    A(f"""v_and_b32 v{t0}, 15, v{vLane}
    v_lshrrev_b32 v{t1}, 4, v{vLane}
    v_mov_b32 v{vIdx}, 0x4444
    v_mov_b32 v{t2}, 0xeeee
    s_mov_b32 vcc_lo, 0xcccccccc
    s_mov_b32 vcc_hi, 0xcccccccc
    v_cndmask_b32 v{vIdx}, v{vIdx}, v{t2}, vcc
    v_mov_b32 v{vSel}, 0x3f80
    v_mov_b32 v{t2}, 1.0
    s_mov_b32 vcc_lo, 0xf0f0f0f0
    s_mov_b32 vcc_hi, 0xf0f0f0f0
    v_cndmask_b32 v{vSel}, v{vSel}, v{t2}, vcc
    s_mov_b32 s{sONE}, 0x3f803f80
    s_mov_b32 s{sONE + 1}, 0x3f803f80
    s_mov_b32 s{sC}, {C_SCALE:#x}
    s_mov_b32 s{sC2}, {C_SCALE:#x}
    s_mov_b32 s{sC2 + 1}, {C_SCALE:#x}
    v_mov_b32 v{vZ + 1}, 0
    v_lshrrev_b32 v27, 2, v{t0}
    v_and_b32 v28, 1, v{t0}
    v_lshl_or_b32 v27, v27, 1, v28
    v_bfe_u32 v28, v{t0}, 1, 1
    v_lshlrev_b32 v{vMr}, 4, v{vLane}
    v_add_u32 v{vKr}, {L_KV}, v{vMr}
    v_add_u32 v{vVr}, {L_KV}, v{vWl0}
    v_add_u32 v{vMr}, {L_M}, v{vMr}
    s_lshl_b32 s{st0}, s{sW}, 11
    v_add_u32 v{vMw}, s{st0}, v{vMr}
    s_add_u32 s{cMD}, s{st0}, {L_M}
    s_sub_u32 s{cME}, {WS_MEM}, s{st0}
    s_mov_b32 s{sME}, s{cME}
    s_lshl_b32 s{st0}, s{sW}, 10
    s_add_u32 s{st0}, s{st0}, {L_Q}
    v_lshlrev_b32 v{t2}, 2, v{t0}
    v_lshl_or_b32 v{t2}, v{t1}, 7, v{t2}
    v_add_u32 v{vQw}, s{st0}, v{t2}
    v_lshrrev_b32 v{t2}, 3, v{t0}
    v_lshl_or_b32 v{t2}, v{t1}, 1, v{t2}
    s_lshl_b32 s{st0}, s{sW}, 3
    v_add_u32 v{t2}, s{st0}, v{t2}
    v_and_b32 v29, 7, v{t0}
    v_lshlrev_b32 v29, 3, v29
    v_mul_u32_u24 v{t2}, {RS}, v{t2}
    v_add_u32 v{vPartSt}, v{t2}, v29
    v_lshlrev_b32 v{t2}, 4, v{t1}
    v_lshl_or_b32 v{t2}, v27, 6, v{t2}
    v_add_u32 v{vQr}, {L_Q}, v{t2}
    v_lshlrev_b32 v{t2}, 4, v27
    v_lshl_or_b32 v{t2}, v{t1}, 8, v{t2}
    s_lshr_b32 s{st0}, s{sW}, 1
    s_lshl_b32 s{st0}, s{st0}, 10
    s_and_b32 s{st1}, s{sW}, 1
    s_lshl_b32 s{st1}, s{st1}, 7
    s_add_u32 s{st0}, s{st0}, s{st1}
    s_add_u32 s{st0}, s{st0}, {L_O}
    v_add_u32 v{vOw}, s{st0}, v{t2}
    v_lshl_or_b32 v{t2}, v28, 7, v{t2}
    v_add_u32 v{vOr}, {L_O}, v{t2}
    s_mul_i32 s{st0}, s{sW}, 3072
    s_lshl_b32 s{sKM}, s{sRK}, 12
    s_add_u32 s{sKM}, s{sKM}, {WS_KM}
    s_sub_u32 s{sKM}, s{sKM}, s{st0}
    s_lshl_b32 s{cPW}, s{sRK}, 6
    s_add_u32 s{cPW}, s{cPW}, {WS_PART}
    s_mov_b32 s{cPZ}, s{sPZ}
    s_mov_b32 s{sKP}, {WS_SIZE}
    s_mov_b32 s{sSTEP}, 0
    s_mov_b32 s{sX0}, 0
    s_mov_b32 s{sX1}, 8192
    s_mov_b32 s{sX2}, 16384
    s_cmp_lt_u32 s{sW}, {cfg['PRE']}
    s_cselect_b64 s[{sPX}:{sPX + 1}], -1, 0""")
    prog_addr(1); prog_spin()
    if PROF: A(f"s_mov_b32 s{sTS + 23}, 0\ns_mov_b32 s{sTS + 22}, 0\ns_mov_b32 s2, 0")

    def lw(j, half):
        return f"ds_read_b128 {v(G + 8 * (j % 4) + 4 * half, 4)}, v{vWl0} offset:{(j // 2) * 16384 + (j & 1) * 2048 + half * 1024}"
    def zero_acc():
        for i in range(QA, VA + 8, 2): A(f"v_mov_b64 {v(i, 2)}, 0")
    def preload():
        for j in range(4):
            for hf in range(2): A(lw(j, hf))
    sc_part = [f"s_mul_i32 s{st0}, s{sX0}, 40", f"s_add_u32 s{sPW}, s{st0}, s{cPW}", f"s_add_u32 s{sWO}, s{sPW}, 4096",
               f"s_add_u32 s{sPR}, s{st0}, s{cPZ}", f"s_mul_i32 s{st0}, s{sX2}, 40", f"s_add_u32 s{sPZ}, s{st0}, s{cPZ}",
               f"s_add_u32 s{sMN}, s{sX1}, {WS_MEM}", f"s_add_u32 s{sMZ}, s{sX0}, {WS_MEM}"] + \
              ([f"s_xor_b32 s{sPG}, s{sPG}, 4096", f"s_lshr_b32 s{sNEED}, s{sSTEP}, 1", f"s_add_u32 s{sNEED}, s{sNEED}, 2"] if NKV == 2 else
               [f"s_add_u32 s{sNEED}, s{sSTEP}, 3"]) + \
              [f"s_cmp_gt_u32 s{sSTEP}, {NSEG - 3}\ns_cselect_b32 s{sNEED}, 0, s{sNEED}"]
    sc_next = [f"s_add_u32 s{sME}, s{sX1}, s{cME}",
               f"s_mov_b32 s{st0}, s{sX0}", f"s_mov_b32 s{sX0}, s{sX1}", f"s_mov_b32 s{sX1}, s{sX2}", f"s_mov_b32 s{sX2}, s{st0}",
               f"s_add_u32 s{sSTEP}, s{sSTEP}, 1"] + \
              [f"s_mov_b32 s{sKP}, s{sKM}", f"s_add_u32 s{sKM}, s{sKM}, {32 * 4096}"]
    sq = []
    def sal(n):
        for _ in range(n):
            if sq: A(sq.pop(0))
    SEL, RA, RD, ES = M, M + 4, M + 16, M + 24
    A("s_waitcnt lgkmcnt(0)")
    zero_acc(); preload()
    fill_ones(A, ES, 8)
    timeline(A, cfg, 2, vT)
    A("s_branch L_fetch")

    eld = "\n".join(f"buffer_load_dwordx4 {v(ES + 4 * i, 4)}, v{vWl0}, {S4(rWS)}, s{sME} offen offset:{1024 * i} sc1" for i in range(2))
    lld = eld + "\n" + "\n".join(f"buffer_load_dwordx4 v{vWl0}, {S4(rWS)}, s{sME} offen offset:{1024 * i} sc1 lds" for i in range(2))
    ewr = f"ds_write_b128 v{vMw}, {v(ES, 4)}\nds_write_b128 v{vMw}, {v(ES + 4, 4)} offset:1024"
    masked = lambda x: "s_mov_b64 exec, vcc\n" + x + "\ns_mov_b64 exec, -1"
    def mx(b, n): return [f"v_max3_u32 v{vT}, v{vT if i else b}, v{b + i}, v{b + i + 1}" for i in range(0, n, 2)]
    CMP = f"v_cmp_eq_u32 vcc, -1, v{vT}"
    dmakv = lambda i: f"buffer_load_dwordx4 v{vWl0}, {S4(rWS)}, s{sKVS} offen offset:{1024 * i} {cfg['KVLD']} lds" if not cfg.get("NODMA") else "s_nop 0"
    A(f"L_lr:\ns_mov_b32 m0, s{cMD}")
    if cfg["PROF"] == -1: A(f"v_mov_b32 v{vT}, 1\ns_mov_b64 exec, 1\nglobal_atomic_add v{vZ}, v{vT}, s[{pDBG}:{pDBG + 1}] offset:80 sc1\ns_mov_b64 exec, -1")
    spin_init(A)
    A("L_lr1:")
    if PROF: A(f"s_add_u32 s{sTS + 22}, s{sTS + 22}, 1")
    A(lld); spin_step(A)
    A("s_waitcnt vmcnt(0)")
    for x in mx(ES, 8) + [CMP]: A(x)
    A(f"s_cbranch_vccnz L_lr1\ns_mov_b32 m0, s{sKVL}\ns_branch L_lk")
    A(f"L_fl:\ns_mov_b32 m0, s{cMD}")
    stamp(10)
    A("s_barrier\n" + lld + "\ns_branch L_b0")
    A(f".p2align {cfg['ALIGN']}")
    if cfg["PAD"]: A(f".fill {cfg['PAD']}, 4, 0xbf800000")
    A(f"L_fetch:\ns_cmp_ge_u32 s{sW}, 2\ns_cbranch_scc1 L_fl")
    spin_init(A)
    for i, d in enumerate(cfg["FD"]):
        if i: A(eld)
        delay(d)
    A("s_mov_b64 vcc, -1\nL_er:\n" + masked(eld))
    if PROF: A("s_add_u32 s2, s2, 1")
    spin_step(A)
    A(f"s_waitcnt vmcnt({2 * (len(cfg['FD']) - 1)})")
    for x in mx(ES, 8) + [CMP]: A(x)
    A("s_cbranch_vccnz L_er")
    if not cfg["SPEC"]: A(ewr)
    stamp(10)
    if cfg["PROF"] == -1:
        A(f"s_cmp_lg_u32 s{sSTEP}, 1\ns_cbranch_scc1 L_dg2"); timeline(A, cfg, 9, vT); A("L_dg2:")
    A("s_barrier\nL_b0:")
    L = Cnt(A, "lgkmcnt")
    def mrd(p): L.op(f"ds_read_b128 {v(M + 4 * p, 4)}, v{vMr} offset:{1024 * p}", ("m", p))
    def lwr(j, hf): L.op(lw(j, hf), ("w", j))
    def kfr(kf): L.op(f"ds_read_b128 {v(M + 4 * kf, 4)}, v{vKr} offset:{(kf >> 1) * 4096 + 2048 + (kf & 1) * 1024}", ("K", kf))
    def frag(k, t):
        if k == "K": kfr(t)
        elif k == "V": L.op(f"ds_read_b128 {v(G + 4 * t, 4)}, v{vVr} offset:{1024 * t}", ("V", t))
        else: L.op(f"ds_read_b128 {v(G + 8 * t + (4 if k == 'k' else 0), 4)}, v{vQr} offset:{t * 1024 + (512 if k == 'k' else 0)}", (k, t))
    A("s_waitcnt lgkmcnt(0)\ns_barrier")
    stamp(0)
    for p in range(4): mrd(p)
    for i in range(cfg["PH"][0]): A("s_nop 0")
    A(f"s_add_u32 s{sKVS}, s{sKVS}, {32 * 16384}\ns_xor_b32 s{sKVL}, s{sKVL}, 0x3c000\ns_mov_b32 m0, s{sKVL}")
    sq.extend(sc_part); sal(2)
    L.wait(("m", 0))
    stamp(1)
    NV = cfg["NVF"]
    qk = lambda p: [(QA, p, W8(WQ(p, 0))), (QA + 4, p, W8(WQ(p, 1)))] + \
                   [(QA + 8 + 4 * b, p, W8(WK(p, b)) if p % 2 == 0 else v(G + 8 * ((p - 1 + b) % 4), 8)) for b in range(2)]
    vv = lambda p: [(VA + 4 * b, p, W8(WV(p, b))) for b in range(2)]
    seq = sum((qk(p) for p in range(4)), []) + sum((vv(p) for p in range(NV)), []) + sum((qk(p) for p in range(4, 8)), [])
    H = 16 + 2 * NV
    gap = {}; val = {}
    def at(k, fn): gap.setdefault(k, []).append(fn)
    for k, (j, hf) in zip((6, 8, 9, 10), ((4, 0), (4, 1), (5, 0), (5, 1))): at(k, lambda j=j, hf=hf: lwr(j, hf))
    LP = cfg["LP"]
    VS = cfg["VS"]
    NEG = G if min(VS["r0"], VS["r1"]) < 200 else QA + 12
    kmst = f"buffer_store_dwordx4 {v(KMQ, 4)}, v{vWl0}, {S4(rWS)}, s{sKM} offen sc1"
    vop = {"km": kmst if VS["km"] >= 200 else kmst.replace(f"s{sKM} ", f"s{sKP} ")}
    if cfg.get("NOKM"): vop["km"] = vop["km"].replace(" sc1", "")
    vop["pg"] = prog_ld(vProg)
    for i in range(4): vop[f"d{i}"] = dmakv(i)
    for i in range(2): vop[f"r{i}"] = f"buffer_store_dwordx4 {v(NEG, 4)}, v{vWl0}, {S4(rWS)}, s{sPZ} offen offset:{1024 * i}"
    def vslot(k):
        for n in sorted(VS):
            if VS[n] == k: A(vop[n])
    for n in VS:
        if VS[n] < 100 and VS[n] != LP: at(VS[n], lambda n=n: A(vop[n]))
    assert LP not in VS.values()
    if NEG == G: val[H + 8] = [f"v_mov_b64 {v(NEG, 2)}, -1"]; val[H + 9] = [f"v_mov_b64 {v(NEG + 2, 2)}, -1"]
    at(LP, lambda: A(f"s_waitcnt vmcnt({sum(x < LP for x in VS.values())})"))
    for i, x in enumerate(mx(ES, 8) + [CMP]): val.setdefault(LP + (i + 1) // 2, []).append(x)
    at(LP + 4, lambda: A("s_cbranch_vccnz L_lr\nL_lk:\ns_barrier"))
    for i in range(4): at(LP + 4 + (i if i < 2 else 2 * i), lambda i=i: mrd(4 + i))
    for k, (j, hf) in zip((H + 1, H + 2, H + 5, H + 6), ((6, 0), (6, 1), (7, 0), (7, 1))): at(k, lambda j=j, hf=hf: lwr(j, hf))
    at(H + 5, lambda: L.wait(("w", 5))); at(H + 13, lambda: L.wait(("w", 7)))
    for i in range(NV): at(H + 9 + 2 * i, lambda i=i: kfr(i))
    for k, (acc, p, wop) in enumerate(seq):
        A(f"{SMF} {v(acc, 4)}, {v(M + 4 * p, 4)}, {wop}, v{vIdx}")
        g = gap.get(k, [])
        for fn in g: fn()
        n = len(g)
        if k + 1 < len(seq) and seq[k + 1][0] == QA: L.wait(("m", seq[k + 1][1])); n += 1
        if cfg.get("QS") and k in cfg["QS"]: stamp(4 + cfg["QS"].index(k), True)
        sal((2 if k in val else 3) - n)
        for x in val.get(k, []): A(x)
    assert not sq
    stamp(2)
    qd = G + 16
    def addh(d): return [f"v_add_f32 v{d}, v{d}, v{d + 2}", f"v_add_f32 v{d + 1}, v{d + 1}, v{d + 3}"]
    for x in addh(QA) + addh(QA + 4): A(x)
    A(f"v_cvt_pk_bf16_f32 v{qd}, v{QA}, v{QA + 4}\nv_cvt_pk_bf16_f32 v{qd + 1}, v{QA + 1}, v{QA + 5}")
    L.op(f"ds_write2_b32 v{vQw}, v{qd}, v{qd + 1} offset1:16")
    for x in addh(QA + 8) + addh(QA + 12): A(x)
    A(f"v_cvt_pk_bf16_f32 v{KMQ}, v{QA + 8}, v{QA + 12}\nv_cvt_pk_bf16_f32 v{KMQ + 1}, v{QA + 9}, v{QA + 13}")
    L.op(f"ds_write2_b32 v{vQw}, v{KMQ}, v{KMQ + 1} offset0:128 offset1:144", "wk")
    if cfg.get("QS") and 99 in cfg["QS"]: stamp(4 + cfg["QS"].index(99), True)
    rq = [("q", 0), ("k", 0), ("q", 1), ("k", 1), ("K", 4), ("q", 2), ("K", 5), ("k", 2), ("K", 6), ("q", 3), ("K", 7), ("k", 3), ("V", 0), ("V", 1)]
    rest = sum((vv(p) for p in range(NV, 8)), [])
    EB = cfg["EB"]
    for e, (acc, p, wop) in enumerate(rest):
        A(f"{SMF} {v(acc, 4)}, {v(M + 4 * p, 4)}, {wop}, v{vIdx}")
        if (e & 1) and p < 4: kfr(p)
        if e == EB: L.wait("wk"); A("s_barrier")
        if e > EB and rq and (rq[0][0] != "K" or rq[0][1] < p + (e & 1)): frag(*rq.pop(0))
        vslot(100 + e)
        if e < 2 and NEG != G: A(f"v_mov_b64 {v(NEG + 2 * e, 2)}, -1")
        if cfg.get("QS") and 100 + e in cfg["QS"]: stamp(4 + cfg["QS"].index(100 + e), True)
    stamp(3)
    Sm, S0, S1 = QA, QA + 4, QA + 8
    vq = addh(VA) + addh(VA + 4) + [f"v_cvt_pk_bf16_f32 v{KMQ + 2}, v{VA}, v{VA + 1}", f"v_cvt_pk_bf16_f32 v{KMQ + 3}, v{VA + 4}, v{VA + 5}"]
    zq = [f"v_mov_b64 {v(M + i, 2)}, 0" for i in range(0, 32, 2)]
    def z(n):
        for _ in range(n):
            if zq: A(zq.pop(0))
    for t in range(4):
        need = [("q", t), ("k", t), ("K", 2 * t), ("K", 2 * t + 1)]
        while any(x not in L.tags for x in need): frag(*rq.pop(0))
        L.wait(min((L.need(x), x) for x in need)[1])
        for i, (d, a_) in enumerate(((S0, M + 8 * t), (S1, M + 8 * t + 4), (Sm, G + 8 * t + 4))):
            A(f"{MF} {v(d, 4)}, {v(a_, 4)}, {v(G + 8 * t, 4)}, {v(d, 4) if t else 0}")
            e = 3 * t + i
            if rq and (rq[0][0] != "V" or e >= 2): frag(*rq.pop(0))
            if 2 <= e <= 4: A(vq[2 * (e - 2)] + "\n" + vq[2 * (e - 2) + 1])
            if e == 4: A(f"s_cmp_ge_u32 s{sSTEP}, {min(cfg['KEARLY'], cfg.get('LAST', NSEG - 1))}")
            if e == 5 and not cfg.get("XL"): A("s_cbranch_scc1 L_ch_km\nL_ch_kmb:")
            if e == 5 and cfg.get("XL"): A(f"L_ch_kmb:")
            vslot(200 + e)
            if e == 7: A(f"v_mov_b64 {v(G + 8, 2)}, s[{sONE}:{sONE + 1}]\nv_mov_b64 {v(G + 10, 2)}, s[{sONE}:{sONE + 1}]")
            if e >= 8: z(2)
    assert not rq
    stamp(4)
    if cfg.get("XL"): A(f"s_cmp_eq_u32 s{sSTEP}, {NSEG - 1}\ns_cbranch_scc1 L_ch_exit")
    m1, m2, m3, tt = G + 28, G + 29, G + 30, G + 31
    z(1)
    A(f"""v_max3_f32 v{m1}, v{S0}, v{S0 + 1}, v{S0 + 2}
    v_max3_f32 v{m2}, v{S0 + 3}, v{S1}, v{S1 + 1}
    v_max3_f32 v{m3}, v{S1 + 2}, v{S1 + 3}, v{m1}
    v_max3_f32 v{m1}, v{Sm}, v{Sm + 1}, v{m2}
    v_max_f32 v{m2}, v{m1}, v{m3}
    v_max_f32 v{tt}, v{m1}, v{m3}""")
    z(2)
    A(f"v_permlane16_swap_b32 v{m2}, v{tt}\nv_max_f32 v{m1}, v{m2}, v{tt}\nv_max_f32 v{m3}, v{m2}, v{tt}")
    z(2)
    A(f"v_permlane32_swap_b32 v{m1}, v{m3}\nv_max_f32 v{m1}, v{m1}, v{m3}\nv_mul_f32 v{m1}, s{sC}, v{m1}")
    sv = [Sm, Sm + 1] + [S0 + i for i in range(8)]
    P = G + 12
    O0, O1, SU = G + 16, G + 20, G + 24
    fm = lambda x: f"v_fma_f32 v{x}, v{x}, s{sC}, -v{m1}"
    if cfg["PK"]:
        for i in range(0, 10, 2): A(f"v_pk_fma_f32 {v(sv[i], 2)}, {v(sv[i], 2)}, s[{sC2}:{sC2 + 1}], {v(m1, 2)} op_sel_hi:[1,1,0] neg_lo:[0,0,1] neg_hi:[0,0,1]")
    else: A(fm(sv[0]))
    for i in range(10):
        if i + 1 < 10 and not cfg["PK"]: A(fm(sv[i + 1]))
        A(f"v_exp_f32 v{sv[i]}, v{sv[i]}")
        if i == 2: A(f"v_cvt_pk_bf16_f32 v{PM}, v{Sm}, v{Sm + 1}\nv_cvt_pk_bf16_f32 v{PM + 3}, v{Sm}, v{Sm + 1}")
        if i in (4, 6, 8): A(f"v_cvt_pk_bf16_f32 v{P + (i - 4) // 2}, v{sv[i - 2]}, v{sv[i - 1]}")
        if i == 3: A(f"{MF16} {v(SU, 4)}, {v(G + 8, 2)}, {v(PM, 2)}, 0")
        if i == 5: A(f"{MF16} {v(O0, 4)}, {v(KMQ + 2, 2)}, {v(PM, 2)}, 0")
        if i == 7: A(f"{MF16} {v(O1, 4)}, {v(KMQ + 2, 2)}, {v(PM + 2, 2)}, 0")
    L.wait(("V", 1))
    A(f"v_cvt_pk_bf16_f32 v{P + 3}, v{sv[8]}, v{sv[9]}")
    stamp(5)
    z(2)
    A(f"{MF} {v(SU, 4)}, {v(G + 8, 4)}, {v(P, 4)}, {v(SU, 4)}"); z(2)
    A(f"{MF} {v(O0, 4)}, {v(G, 4)}, {v(P, 4)}, {v(O0, 4)}")
    A(f"{MF} {v(O1, 4)}, {v(G + 4, 4)}, {v(P, 4)}, {v(O1, 4)}")
    ost = lambda k: (VA, G, QA + 8, G + 24, G + 8, VA)[k]
    def owr(k, hf): L.op(f"ds_read_b128 {v(ost(k) + 4 * hf, 4)}, v{vWl1} offset:{k * 2048 + hf * 1024}", ("ow", k))
    owr(0, 0)
    A(f"v_rcp_f32 v{SU}, v{SU}")
    owr(0, 1)
    for o in (O0, O1):
        for i in range(4): A(f"v_mul_f32 v{o + i}, v{o + i}, v{SU}")
        for i in range(2): A(f"v_cvt_pk_bf16_f32 v{P + (o - O0) // 2 + i}, v{o + 2 * i}, v{o + 2 * i + 1}")
    assert not zq
    L.op(f"ds_write_b128 v{vOw}, {v(P, 4)}", "ow")
    owr(1, 0); owr(1, 1)
    for i in range(8 * cfg["PH"][1]): A("s_nop 0")
    L.wait("ow"); A("s_barrier")
    L.op(f"ds_read_b128 {v(QA, 4)}, v{vOr}", "o0"); L.op(f"ds_read_b128 {v(QA + 4, 4)}, v{vOr} offset:1024", "o1")
    stamp(6)
    L.wait("o0")
    OQ = G + 16
    tile = lambda t: addh(M + 4 * t) + [f"v_cvt_pk_bf16_f32 v{OQ + t}, v{M + 4 * t}, v{M + 4 * t + 1}"]
    def pstore(p): A(f"buffer_store_dwordx2 {v(OQ + 2 * p, 2)}, v{vPartSt}, {S4(rWS)}, s{sPW if p < 2 else sWO} offen offset:{2048 * (p & 1)}")
    rl = "\n".join(f"buffer_load_dwordx4 {v(RD + 4 * i, 4)}, v{vWl0}, {S4(rWS)}, s{sPR} offen offset:{1024 * i} sc1" for i in range(2))
    sq.extend(sc_next)
    for e in range(16):
        t, u = e >> 1, e & 1
        A(f"{SMF} {v(M + 4 * t, 4)}, {v(QA + 4 * u, 4)}, {W8(WO(t, u)) if t < 5 else v(ost(e - 10), 8)}, v{vIdx}")
        if e == 0: L.wait("o1")
        if e < 6: owr(2 + e // 2, e & 1)
        if e == 10: owr(5, 0); owr(5, 1)
        if e == 9: L.wait(("ow", 4))
        if e == 14: L.wait(("ow", 5))
        if e in (7, 11) or (e == 15 and cfg['PREP'] != 'c'): pstore((e - 7) // 4)
        if cfg.get("WS") and e in cfg["WS"]: stamp(cfg["WS"].index(e), True)
        if e >= 1: sal(1)
        if e in (1, 2): A(f"v_xor_b32 v{vKr if e == 1 else vVr}, 0x3c000, v{vKr if e == 1 else vVr}")
        if e >= 3 and (e & 1): A(tile((e - 3) // 2)[0] + "\n" + tile((e - 3) // 2)[1])
        if e >= 4 and not (e & 1): A(tile((e - 4) // 2)[2])
    assert not sq
    A(tile(6)[2])
    for i in range(0, 8, 2): A(f"v_mov_b64 {v(RD + i, 2)}, -1")
    pre = f"s_mov_b64 exec, s[{sPX}:{sPX + 1}]\n{rl}\ns_mov_b64 exec, -1"
    if cfg["PREP"] == "c": A(pre); pstore(2)
    for x in tile(7): A(x)
    if cfg["PREP"] == "a": A(pre)
    pstore(3)
    stamp(7)
    rmf = lambda i: f"{MF} {v(RA, 4)}, {v(SEL, 4)}, {v(RD + 4 * i, 4)}, {v(RA, 4) if i else 0}"
    def steplog():
        if PROF:
            A(f"""s_memrealtime s[100:101]
            s_waitcnt lgkmcnt(0)
            s_bitcmp1_b32 s{sW}, 0
            s_cselect_b32 s3, s100, s{sTS + 14}
            v_mov_b32 v{vT}, s3
            s_lshl_b32 s{st0}, s{sRK}, 6
            s_add_u32 s{st0}, s{st0}, s{sSTEP}
            s_lshl_b32 s{st0}, s{st0}, 2
            s_add_u32 s{st0}, s{st0}, {WS_DBG + 0x8000}
            s_lshl_b32 s3, s{sW}, 13
            s_add_u32 s{st0}, s{st0}, s3
            s_mov_b64 exec, 1
            buffer_store_dword v{vT}, off, {S4(rWS)}, s{st0}
            s_mov_b64 exec, -1""")
    def progchk():
        A("s_waitcnt vmcnt(4)"); prog_spin(); steplog()
    def odd(n):
        l = A.lab()
        A(f"s_bitcmp1_b32 s{sW}, 0\ns_cbranch_scc0 {l}"); delay(n); A(f"{l}:")
    chores = {"s": lambda: [A(f"v_cndmask_b32 v{SEL + i}, 0, v{vSel}, s[{sMSK + 2 * i}:{sMSK + 2 * i + 1}]") for i in range(4)] +
                           [fill_ones(A, ES, 8)],
              "p": preload, "z": zero_acc, "A": lambda: A(rl), "e": lambda: delay(4), "d": lambda: delay(8), "D": lambda: delay(16),
              "k": progchk, "o": lambda: odd(8), "O": lambda: odd(16)}
    A(f"s_cmp_lt_u32 s{sW}, 2\ns_cbranch_scc1 L_early")
    def run(c):
        for ch in c:
            if isinstance(ch, str): chores[ch]()
            elif ch > 0: delay(ch)
            elif ch < 0: odd(-ch)
    run(cfg["RED"][1])
    A("s_branch L_red0\nL_early:")
    run(cfg["RED"][0])
    A("L_red0:")
    spin_init(A)
    def unit():
        for x in mx(RD, 8) + [CMP, rmf(0), rmf(1)]: A(x)
        A("s_cbranch_vccz L_pub")
    A("s_mov_b64 vcc, -1\nL_red:\n" + masked(rl))
    if PROF: A(f"s_add_u32 s{sTS + 23}, s{sTS + 23}, 1")
    spin_step(A)
    A(f"s_waitcnt vmcnt({2 * cfg['RED'][0].count('A')})")
    for x in mx(RD, 8)[:2] + [rmf(0)] + mx(RD, 8)[2:] + [rmf(1), CMP]: A(x)
    A("s_cbranch_vccnz L_red")
    stamp(8)
    for r in (4, 8):
        for i in range(4): A(f"v_add_f32_dpp v{RA + i}, v{RA + i}, v{RA + i} row_ror:{r} row_mask:0xf bank_mask:0xf")
    A(f"""v_cvt_pk_bf16_f32 v{RA}, v{RA}, v{RA + 1}
    s_mov_b64 exec, {PUBX}
    v_cvt_pk_bf16_f32 v{RA + 1}, v{RA + 2}, v{RA + 3}
    buffer_store_dwordx2 {v(RA, 2)}, v{vMemSt}, {S4(rWS)}, s{sMN} offen
    buffer_store_dwordx2 {v(ES, 2)}, v{vMemSt}, {S4(rWS)}, s{sMZ} offen
    s_mov_b64 exec, -1""")
    stamp(9)
    A("s_branch L_fetch")
    A(f"L_ch_km:\n{kmst}\ns_cmp_lt_u32 s{sSTEP}, {cfg.get('LAST', NSEG - 1)}\ns_cbranch_scc1 L_ch_kmb\nL_ch_exit:")
    if cfg.get("XL"): A(kmst)
    timeline(A, cfg, 3, vT)
    if PROF:
        A(f"""s_waitcnt lgkmcnt(0)
        s_lshl_b32 s{st0}, s{sRK}, 2
        s_add_u32 s{st0}, s{st0}, s{sW}
        s_lshl_b32 s{st0}, s{st0}, 7
        s_add_u32 s{st0}, s{st0}, {WS_DBG}
        s_mov_b64 exec, 1""")
        for i, r in enumerate([sTS + 2 * i for i in range(11)] + [sTS + 23, 2, sTS + 22]): A(f"v_mov_b32 v0, s{r}\nbuffer_store_dword v0, v{vZ}, {S4(rWS)}, s{st0} offen offset:{4 * i}")
    A("s_endpgm")
```

```python
from common import *

SMF = "v_smfmac_f32_16x16x64_bf16"

def role_chain(A, cfg):
    NKV, PROF = cfg["NKV"], cfg["PROF"] >= 2
    assert NKV in (1, 2)
    M, G, QA, VA, KMQ, PM = 0, 32, 64, 80, 88, 92
    vIdx, vWl0, vWl1, vKr, vVr, vMr, vPartSt, vMemSt, vQw, vQr, vOw, vOr, vSel, vProg, vT, vMw = range(96, 112)
    vZ = PM + 1
    L_KV, L_Q, L_O, L_M = 112 * 1024, 144 * 1024, 148 * 1024, 150 * 1024
    PUBX = "0x000f000f"
    RS = cfg["RS"]
    WS_MEM = globals()["WS_MEM"] + cfg["MEMOFF"]
    sSTEP, sX0, sX1, sX2, sPW, sPR, sPZ, sMN, sMZ, sKVS, sKVL, sKM, sPG, sNEED, sC, sME, sML, cME, sWO = range(56, 75)
    cPW, cPZ, cMD, cMC, cML = 40, 41, 42, 43, 44
    sONE, sMSK = 76, 78
    sKP, sC2 = 75, 88
    sPX = 86
    st0, st1 = 100, 101
    sTS = 8
    def wreg(i): return ("a", 8 * i) if i < 32 else ("v", 112 + 8 * (i - 32))
    WQ = lambda p, b: wreg(2 * p + b)
    WK = lambda p, b: wreg(16 + p + b)
    WV = lambda p, b: wreg(24 + 2 * p + b)
    WO = lambda t, u: wreg(40 + 2 * t + u) if t < 5 else ("v", 32 + 8 * (2 * (t - 5) + u))
    W8 = lambda w: R(w[0], w[1], 8)
    def stamp(i, force=False):
        if PROF and (force or (not cfg.get("QS") or i < 4) and (not cfg.get("WS") or i >= 5)): A(f"{'s_memrealtime' if cfg.get('RT') else 's_memtime'} s[{sTS + 2 * i}:{sTS + 2 * i + 1}]")
    def delay(n):
        while n > 0:
            A(f"s_nop {min(n, 16) - 1}"); n -= 16

    A("L_chain:")
    timeline(A, cfg, 0, 1)
    srd(A, rA, pWQ, 1 << 22); srd(A, rB, pWK, 1 << 22); srd(A, rC, pWV, 1 << 22); srd(A, rD, pWO, 1 << 22)
    vLane, vOffA, vOffO, vT0, t0, t1, t2, vPF, vDum = range(20, 29)
    lane_fields(A, vLane)
    dma_col(A, vOffA, vLane, t0, t1, st0)
    A(f"""v_bfe_u32 v{t0}, v{vLane}, 4, 1
    v_lshrrev_b32 v{t1}, 5, v{vLane}
    s_and_b32 s{st0}, s{sW}, 1
    s_lshr_b32 s{st1}, s{sW}, 1
    v_lshl_add_u32 v{t2}, v{t1}, 5, v{t0}
    s_lshl_b32 s3, s{st1}, 4
    v_add_u32 v{t2}, s3, v{t2}
    s_lshl_b32 s3, s{st0}, 1
    v_add_u32 v{t2}, s3, v{t2}
    v_lshl_add_u32 v{vOffO}, v{t2}, 10, v{vOffA}
    v_lshlrev_b32 v{t0}, 4, v{t0}
    v_lshl_add_u32 v{t2}, v{t1}, 2, v{t0}
    v_add_u32 v{t2}, s{sW}, v{t2}
    v_lshl_add_u32 v{vOffA}, v{t2}, 13, v{vOffA}
    s_lshl_b32 s{sKVS}, s{sRK}, 8
    s_lshl_b32 s3, s{sRK}, 1
    s_add_u32 s3, s3, s{st1}
    s_lshr_b32 s{st1}, s3, 5
    s_lshl_b32 s{st1}, s{st1}, 7
    s_and_b32 s3, s3, 31
    s_add_u32 s3, s3, s{st1}
    s_lshl_b32 s3, s3, 13
    s_lshl_b32 s{st0}, s{st0}, 12
    s_add_u32 s3, s3, s{st0}
    v_lshl_add_u32 v{vPF}, v{vLane}, 6, s3
    s_lshl_b32 s{st0}, s{sW}, 12
    v_lshl_add_u32 v{vWl0}, v{vLane}, 4, s{st0}
    s_mul_i32 s{st0}, s{sW}, 12288
    s_add_u32 s{st0}, s{st0}, 0x10000
    v_lshl_add_u32 v{vWl1}, v{vLane}, 4, s{st0}""")
    tr_base(A, vT, vLane, t0, t1)
    A(f"s_lshl_b32 s{st0}, s{sW}, 6\nv_xor_b32 v{vT0}, s{st0}, v{vT}")
    for i in range(4):
        A(f"""s_add_u32 s{st0}, s{sRK}, {i}
        s_and_b32 s{sMSK + 4 + i}, s{st0}, 3
        s_lshl_b32 s{st0}, s{sMSK + 4 + i}, 8
        s_lshl_b32 s{st1}, s{sRK}, 17
        s_add_u32 s{sMSK + i}, s{st0}, s{st1}""")

    def startup():
        fill_ones(A, 0, 4)
        A(f"""s_mul_i32 s{sPZ}, s{sRK}, {RS}
        s_add_u32 s{sPZ}, s{sPZ}, {WS_PART}
        s_lshl_b32 s{st0}, s{sW}, 11
        s_sub_u32 s{sPZ}, s{sPZ}, s{st0}
        v_bfe_u32 v{t0}, v{vLane}, 4, 1
        v_and_b32 v{t1}, 3, v{vLane}
        s_and_b32 s3, s{sRK}, 6
        v_add_u32 v{t2}, s3, v{t0}
        v_lshlrev_b32 v{t2}, 10, v{t2}
        v_lshl_add_u32 v{t2}, v{t1}, 2, v{t2}
        s_lshr_b32 s{st0}, s{sRK}, 3
        s_lshl_b32 s{sX0}, s{st0}, 8
        s_lshl_b32 s{sX1}, s{sW}, 6
        s_add_u32 s{sX0}, s{sX0}, s{sX1}
        s_and_b32 s{sX2}, s{sRK}, 1
        s_lshl_b32 s{sX1}, s{sX2}, 4
        s_add_u32 s{sX0}, s{sX0}, s{sX1}
        v_add_u32 v{t2}, s{sX0}, v{t2}""")
        for i, o in enumerate((0, 32, 2, 34)): A(f"global_load_ushort v{8 + i}, v{t2}, s[{pMEM0}:{pMEM0 + 1}] offset:{o}")
    def startup2():
        A(f"s_and_b32 s3, s{sRK}, 6\ns_lshr_b32 s{st0}, s{sRK}, 3\nv_bfe_u32 v{t0}, v{vLane}, 4, 1\nv_and_b32 v{t1}, 3, v{vLane}")
        for sl in range(3):
            A(f"s_add_u32 s{sX1}, s{sPZ}, {sl * 8192 * 40}")
            for i in range(2): A(f"buffer_store_dwordx4 {v(0, 4)}, v{vWl0}, {S4(rWS)}, s{sX1} offen offset:{i * 1024}")
        A(f"""s_lshl_b32 s{sX0}, s{sW}, 1
        s_lshr_b32 s{sX1}, s{st0}, 1
        s_add_u32 s{sX0}, s{sX0}, s{sX1}
        s_lshl_b32 s{sX0}, s{sX0}, 2
        s_and_b32 s{st0}, s{st0}, 1
        s_lshl_b32 s{st0}, s{st0}, 1
        s_add_u32 s{sX0}, s{sX0}, s{st0}
        s_add_u32 s{sX0}, s{sX0}, s{sX2}
        s_lshl_b32 s{sX0}, s{sX0}, 8
        s_lshl_b32 s3, s3, 5
        s_add_u32 s{sX0}, s{sX0}, s3
        v_lshlrev_b32 v{vMemSt}, 4, v{t0}
        v_lshrrev_b32 v{t0}, 1, v{t1}
        v_lshl_or_b32 v{vMemSt}, v{t0}, 5, v{vMemSt}
        v_and_b32 v{t0}, 1, v{t1}
        v_lshl_or_b32 v{vMemSt}, v{t0}, 3, v{vMemSt}
        v_add_u32 v{vMemSt}, s{sX0}, v{vMemSt}
        s_mov_b32 s{st0}, {WS_MEM}
        v_lshl_or_b32 v8, v9, 16, v8
        v_lshl_or_b32 v9, v11, 16, v10
        v_min_u32 v8, -2, v8
        v_min_u32 v9, -2, v9
        s_mov_b64 exec, {PUBX}
        buffer_store_dwordx2 v[8:9], v{vMemSt}, {S4(rWS)}, s{st0} offen
        s_add_u32 s{st0}, s{st0}, 8192
        buffer_store_dwordx2 v[0:1], v{vMemSt}, {S4(rWS)}, s{st0} offen
        s_add_u32 s{st0}, s{st0}, 8192
        buffer_store_dwordx2 v[0:1], v{vMemSt}, {S4(rWS)}, s{st0} offen
        s_mov_b64 exec, -1""")
    startup()
    chunks = []
    def two(d0, d1):
        def ex(A, base):
            A(f"v_add_u32 v{t0}, {base}, v{vT0}\nv_xor_b32 v{t1}, 32, v{t0}")
            tr_tile(A, d0[0], d0[1], t0); tr_tile(A, d1[0], d1[1], t1)
        return ex
    def cha(r, p, ex):
        base = (256 * (p & 1) + 32 * (p >> 1)) * 8192
        chunks.append(dict(srd=r, voff=vOffA, sbase=sKVS, offs=[base + (128 * (i >> 1) + 8 * (i & 1)) * 8192 for i in range(4)], extract=ex, pf=(vPF, base)))
    for u in range(2):
        for k in range(4):
            def ex(A, base, u=u, k=k):
                l = A.lab()
                A(f"s_cmp_lg_u32 s{sW}, s{sMSK + 4 + k}\ns_cbranch_scc1 {l}\nv_add_u32 v{t0}, {base}, v{vT}")
                for t in range(8):
                    A(f"v_xor_b32 v{t1}, {32 * t}, v{t0}")
                    tr_tile(A, WO(t, u)[0], WO(t, u)[1], t1)
                A(f"{l}:")
            chunks.append(dict(srd=rD, voff=vOffO, sbase=sMSK + k, offs=[(64 * u + 4 * i) * 1024 for i in range(4)], extract=ex))
    for p in range(8): cha(rA, p, two(WQ(p, 0), WQ(p, 1)))
    for p in range(0, 8, 2): cha(rB, p, two(WK(p, 0), WK(p, 1)))
    for p in range(8): cha(rC, p, two(WV(p, 0), WV(p, 1)))
    for i, ch in enumerate(chunks):
        if ("o" in cfg["NT"] and i < 8) or ("Q" in cfg["NT"] and 8 <= i < 16): ch["nt"] = "nt"
    if cfg["CH_MIX"] == 3: chunks[:] = chunks[16:] + chunks[:16]
    if cfg["CH_MIX"] == 4: chunks[:] = chunks[16:] + chunks[8:16] + chunks[:8]
    if cfg["CH_MIX"] == 2: chunks[:] = chunks[8:] + chunks[:8]
    if cfg["CH_MIX"] == 1:
        wo, rest = chunks[:8], chunks[8:]
        chunks[:] = sum(([wo[i]] + rest[(5 * i) // 2:(5 * i + 5) // 2] for i in range(8)), [])
        assert len(chunks) == 28
    def inplace(A, base):
        two(("v", 0), ("v", 8))(A, base)
        A(f"v_add_u32 v{t0}, {base}, v{vWl0}\ns_waitcnt lgkmcnt(0)\ns_barrier")
        for i in range(4): A(f"ds_write_b128 v{t0}, {v(4 * i, 4)} offset:{1024 * i}")
    for p in range(1, 8, 2): cha(rB, p, inplace)

    def prog_addr(seg):
        A(f"s_lshl_b32 s{sPG}, s{sRK}, 7\ns_add_u32 s{sPG}, s{sPG}, {WS_PROG + (seg % NKV) * 4096}\ns_mov_b32 s{sNEED}, {seg // NKV + 1}")
    prog_ld = lambda r: f"buffer_load_dword v{r}, v{vZ}, {S4(rWS)}, s{sPG} offen sc1"
    def prog_spin():
        l, l2 = A.lab(), A.lab()
        spin_init(A)
        A(f"{l}:\nv_readfirstlane_b32 s{st0}, v{vProg}\ns_cmp_ge_u32 s{st0}, s{sNEED}\ns_cbranch_scc1 {l2}\n" + prog_ld(vProg))
        spin_step(A)
        A(f"s_waitcnt vmcnt(0)\ns_branch {l}\n{l2}:")
    def done_probe():
        if cfg["TLB"]: A(f"v_lshlrev_b32 v19, 21, v{vLane}\nbuffer_load_dword v19, v19, {S4(rWS)}, 0 offen")
        A(f"v_mov_b32 v{vZ}, 0\nv_mov_b32 v16, {DBG_DONE}\n" + ("v_mov_b32 v17, 256" if cfg.get("NOSIG") else f"global_load_dword v17, v16, s[{pDBG}:{pDBG + 1}] sc1"))
    def first_probe():
        l = A.lab()
        A(f"v_readfirstlane_b32 s{st0}, v17\ns_cmp_ge_u32 s{st0}, 256\ns_cbranch_scc1 {l}")
        wait_done(A, 16, 17, st0)
        A(f"{l}:")
        prog_addr(1); A(prog_ld(18)); prog_addr(0); A(prog_ld(vProg))
    def first_kv():
        prog_spin()
        A(f"""s_lshl_b32 s{sKVS}, s{sRK}, 14
        s_add_u32 s{sKVS}, s{sKVS}, {WS_KV}
        s_lshl_b32 s{sKVL}, s{sW}, 12
        s_add_u32 s{sKVL}, s{sKVL}, {L_KV}
        s_mov_b32 m0, s{sKVL}""")
        A(f"v_mov_b32 v{vProg}, v18")
        for i in range(4): A(f"buffer_load_dwordx4 v{vWl0}, {S4(rWS)}, s{sKVS} offen offset:{1024 * i} sc1 lds")
    slots = None
    if cfg["KFIRST"]:
        chunks[:] = chunks[28:] + chunks[:28]
        ring = [6, 9, 7, 8, 4, 5]
        slots = [0, 1, 2, 3] + [ring[(c - 26) % 6] for c in range(28)]
        assert cfg["CH_DEPTH"] <= 5
    load_chunks(A, chunks, 10, cfg["CH_DEPTH"], 2, st0, st1, nt='nt' if 'c' in cfg['NT'] else '', slots=slots, hooks={0: startup2, max(cfg["CH_DEPTH"], cfg.get("SIG", 0)): lambda: None if cfg.get("NOSIG") else signal_done(A, t0, t1), 31: first_kv,
                       **({cfg['GATE']: lambda: signal_done(A, t0, t1, DBG_CH)} if cfg['GATE'] else {}),
                       },
                pfd=cfg["CH_PF"], vdummy=vDum, pre={30 - cfg['CH_DEPTH']: done_probe, 31: first_probe,
                     **{c: (lambda i=i: timeline(A, cfg, 4 + i, t0)) for i, c in enumerate(cfg.get('TLC', ()))}})
    if cfg["KFIRST"]: A("s_barrier")
    for i in range(12): A(f"ds_write_b128 v{vWl1}, {v(32 + 4 * i, 4)} offset:{1024 * i}")
    timeline(A, cfg, 1, t0)
    if cfg["PROF"] == -1:
        A(f"s_or_b32 s3, s{sRK}, s{sW}\ns_cmp_lg_u32 s3, 0\ns_cbranch_scc1 L_dg1\nv_mov_b32 v{t0}, s98\ns_mov_b64 exec, 1\nglobal_store_dword v{vZ}, v{t0}, s[{pDBG}:{pDBG + 1}] offset:4 sc1\ns_mov_b64 exec, -1\nL_dg1:")
    if "chain" not in cfg["ENABLE"]:
        A("s_endpgm"); return
    for i in range(8): A(f"s_mov_b32 s{sMSK + i}, {0x11111111 << (i >> 1):#x}")
    A(f"""v_and_b32 v{t0}, 15, v{vLane}
    v_lshrrev_b32 v{t1}, 4, v{vLane}
    v_mov_b32 v{vIdx}, 0x4444
    v_mov_b32 v{t2}, 0xeeee
    s_mov_b32 vcc_lo, 0xcccccccc
    s_mov_b32 vcc_hi, 0xcccccccc
    v_cndmask_b32 v{vIdx}, v{vIdx}, v{t2}, vcc
    v_mov_b32 v{vSel}, 0x3f80
    v_mov_b32 v{t2}, 1.0
    s_mov_b32 vcc_lo, 0xf0f0f0f0
    s_mov_b32 vcc_hi, 0xf0f0f0f0
    v_cndmask_b32 v{vSel}, v{vSel}, v{t2}, vcc
    s_mov_b32 s{sONE}, 0x3f803f80
    s_mov_b32 s{sONE + 1}, 0x3f803f80
    s_mov_b32 s{sC}, {C_SCALE:#x}
    s_mov_b32 s{sC2}, {C_SCALE:#x}
    s_mov_b32 s{sC2 + 1}, {C_SCALE:#x}
    v_mov_b32 v{vZ + 1}, 0
    v_lshrrev_b32 v27, 2, v{t0}
    v_and_b32 v28, 1, v{t0}
    v_lshl_or_b32 v27, v27, 1, v28
    v_bfe_u32 v28, v{t0}, 1, 1
    v_lshlrev_b32 v{vMr}, 4, v{vLane}
    v_add_u32 v{vKr}, {L_KV}, v{vMr}
    v_add_u32 v{vVr}, {L_KV}, v{vWl0}
    v_add_u32 v{vMr}, {L_M}, v{vMr}
    s_lshl_b32 s{st0}, s{sW}, 11
    v_add_u32 v{vMw}, s{st0}, v{vMr}
    s_add_u32 s{cMD}, s{st0}, {L_M}
    s_sub_u32 s{cME}, {WS_MEM}, s{st0}
    s_mov_b32 s{sME}, s{cME}
    s_lshl_b32 s{st0}, s{sW}, 10
    s_add_u32 s{cMC}, s{st0}, {L_M + 4096}
    s_mul_i32 s{st0}, s{sW}, 3072
    s_sub_u32 s{cML}, {WS_MEM + 4096}, s{st0}
    s_mov_b32 s{sML}, s{cML}
    s_lshl_b32 s{st0}, s{sW}, 10
    s_add_u32 s{st0}, s{st0}, {L_Q}
    v_lshlrev_b32 v{t2}, 2, v{t0}
    v_lshl_or_b32 v{t2}, v{t1}, 7, v{t2}
    v_add_u32 v{vQw}, s{st0}, v{t2}
    v_lshrrev_b32 v{t2}, 3, v{t0}
    v_lshl_or_b32 v{t2}, v{t1}, 1, v{t2}
    s_lshl_b32 s{st0}, s{sW}, 3
    v_add_u32 v{t2}, s{st0}, v{t2}
    v_and_b32 v29, 7, v{t0}
    v_lshlrev_b32 v29, 3, v29
    v_mul_u32_u24 v{t2}, {RS}, v{t2}
    v_add_u32 v{vPartSt}, v{t2}, v29
    v_lshlrev_b32 v{t2}, 4, v{t1}
    v_lshl_or_b32 v{t2}, v27, 6, v{t2}
    v_add_u32 v{vQr}, {L_Q}, v{t2}
    v_lshlrev_b32 v{t2}, 4, v27
    v_lshl_or_b32 v{t2}, v{t1}, 8, v{t2}
    s_lshr_b32 s{st0}, s{sW}, 1
    s_lshl_b32 s{st0}, s{st0}, 10
    s_and_b32 s{st1}, s{sW}, 1
    s_lshl_b32 s{st1}, s{st1}, 7
    s_add_u32 s{st0}, s{st0}, s{st1}
    s_add_u32 s{st0}, s{st0}, {L_O}
    v_add_u32 v{vOw}, s{st0}, v{t2}
    v_lshl_or_b32 v{t2}, v28, 7, v{t2}
    v_add_u32 v{vOr}, {L_O}, v{t2}
    s_mul_i32 s{st0}, s{sW}, 3072
    s_lshl_b32 s{sKM}, s{sRK}, 12
    s_add_u32 s{sKM}, s{sKM}, {WS_KM}
    s_sub_u32 s{sKM}, s{sKM}, s{st0}
    s_lshl_b32 s{cPW}, s{sRK}, 6
    s_add_u32 s{cPW}, s{cPW}, {WS_PART}
    s_mov_b32 s{cPZ}, s{sPZ}
    s_mov_b32 s{sKP}, {WS_SIZE}
    s_mov_b32 s{sSTEP}, 0
    s_mov_b32 s{sX0}, 0
    s_mov_b32 s{sX1}, 8192
    s_mov_b32 s{sX2}, 16384
    s_cmp_lt_u32 s{sW}, {cfg['PRE']}
    s_cselect_b64 s[{sPX}:{sPX + 1}], -1, 0""")
    prog_addr(1); prog_spin()
    if PROF: A(f"s_mov_b32 s{sTS + 23}, 0\ns_mov_b32 s{sTS + 22}, 0\ns_mov_b32 s2, 0")

    def lw(j, half):
        return f"ds_read_b128 {v(G + 8 * (j % 4) + 4 * half, 4)}, v{vWl0} offset:{(j // 2) * 16384 + (j & 1) * 2048 + half * 1024}"
    def zero_acc():
        for i in range(QA, VA + 8, 2): A(f"v_mov_b64 {v(i, 2)}, 0")
    def preload():
        for j in range(4):
            for hf in range(2): A(lw(j, hf))
    sc_part = [f"s_mul_i32 s{st0}, s{sX0}, 40", f"s_add_u32 s{sPW}, s{st0}, s{cPW}", f"s_add_u32 s{sWO}, s{sPW}, 4096",
               f"s_add_u32 s{sPR}, s{st0}, s{cPZ}", f"s_mul_i32 s{st0}, s{sX2}, 40", f"s_add_u32 s{sPZ}, s{st0}, s{cPZ}",
               f"s_add_u32 s{sMN}, s{sX1}, {WS_MEM}", f"s_add_u32 s{sMZ}, s{sX0}, {WS_MEM}"] + \
              ([f"s_xor_b32 s{sPG}, s{sPG}, 4096", f"s_lshr_b32 s{sNEED}, s{sSTEP}, 1", f"s_add_u32 s{sNEED}, s{sNEED}, 2"] if NKV == 2 else
               [f"s_add_u32 s{sNEED}, s{sSTEP}, 3"]) + \
              [f"s_cmp_gt_u32 s{sSTEP}, {NSEG - 3}\ns_cselect_b32 s{sNEED}, 0, s{sNEED}"]
    sc_next = [f"s_add_u32 s{sME}, s{sX1}, s{cME}", f"s_add_u32 s{sML}, s{sX1}, s{cML}",
               f"s_mov_b32 s{st0}, s{sX0}", f"s_mov_b32 s{sX0}, s{sX1}", f"s_mov_b32 s{sX1}, s{sX2}", f"s_mov_b32 s{sX2}, s{st0}",
               f"s_add_u32 s{sSTEP}, s{sSTEP}, 1"] + \
              [f"s_mov_b32 s{sKP}, s{sKM}", f"s_add_u32 s{sKM}, s{sKM}, {32 * 4096}"]
    sq = []
    def sal(n):
        for _ in range(n):
            if sq: A(sq.pop(0))
    SEL, RA, RD, ES = M, M + 4, M + 16, M + 24
    A("s_waitcnt lgkmcnt(0)")
    zero_acc(); preload()
    fill_ones(A, ES, 8)
    timeline(A, cfg, 2, vT)
    A(f"s_mov_b32 s{sMN}, {WS_SIZE}\ns_mov_b32 s{sMZ}, {WS_SIZE}")
    for w in range(3): A(f"s_cmp_eq_u32 s{sW}, {w}\ns_cbranch_scc1 L_fetch{w}")
    A("s_branch L_fetch3")

    def step(w):
        eld = "\n".join(f"buffer_load_dwordx4 {v(ES + 4 * i, 4)}, v{vWl0}, {S4(rWS)}, s{sME} offen offset:{1024 * i} sc1" for i in range(2))
        lld = eld + "\n" + "\n".join(f"buffer_load_dwordx4 v{vWl0}, {S4(rWS)}, s{sME} offen offset:{1024 * i} sc1 lds" for i in range(2))
        LB = cfg["LATEPUB"]
        CR, CN = (ES + 4, 4) if LB else (ES, 8)
        if LB:
            cld = [f"buffer_load_dwordx4 {v(CR, 4)}, v{vWl0}, {S4(rWS)}, s{sML} offen sc1", f"buffer_load_dwordx4 v{vWl0}, {S4(rWS)}, s{sML} offen sc1 lds"]
            lld = "\n".join(cld)
        pub = f"""s_mov_b64 exec, {PUBX}
        buffer_store_dwordx2 {v(RA, 2)}, v{vMemSt}, {S4(rWS)}, s{sMN} offen
        buffer_store_dwordx2 {v(ES, 2)}, v{vMemSt}, {S4(rWS)}, s{sMZ} offen
        s_mov_b64 exec, -1"""
        ewr = f"ds_write_b128 v{vMw}, {v(ES, 4)}\nds_write_b128 v{vMw}, {v(ES + 4, 4)} offset:1024"
        masked = lambda x: "s_mov_b64 exec, vcc\n" + x + "\ns_mov_b64 exec, -1"
        def mx(b, n): return [f"v_max3_u32 v{vT}, v{vT if i else b}, v{b + i}, v{b + i + 1}" for i in range(0, n, 2)]
        CMP = f"v_cmp_eq_u32 vcc, -1, v{vT}"
        dmakv = lambda i: f"buffer_load_dwordx4 v{vWl0}, {S4(rWS)}, s{sKVS} offen offset:{1024 * i} {cfg['KVLD']} lds" if not cfg.get("NODMA") else "s_nop 0"
        kmst = f"buffer_store_dwordx4 {v(KMQ, 4)}, v{vWl0}, {S4(rWS)}, s{sKM} offen sc1"
        A(f"L_ch_km{w}:\n{kmst}\ns_cmp_lt_u32 s{sSTEP}, {cfg.get('LAST', NSEG - 1)}\ns_cbranch_scc1 L_ch_kmb{w}\ns_branch L_ch_exit")
        if w >= 2 or LB:
            A(f"L_lr{w}:\ns_mov_b32 m0, s{cMC if LB else cMD}")
            if cfg["PROF"] == -1: A(f"v_mov_b32 v{vT}, 1\ns_mov_b64 exec, 1\nglobal_atomic_add v{vZ}, v{vT}, s[{pDBG}:{pDBG + 1}] offset:80 sc1\ns_mov_b64 exec, -1")
            spin_init(A)
            A(f"L_lr1{w}:")
            if PROF: A(f"s_add_u32 s{sTS + 22}, s{sTS + 22}, 1")
            A(lld); spin_step(A)
            A("s_waitcnt vmcnt(0)")
            for x in mx(CR, CN) + [CMP]: A(x)
            A(f"s_cbranch_vccnz L_lr1{w}\ns_mov_b32 m0, s{sKVL}\ns_branch L_lk{w}")
        A(f".p2align {cfg['ALIGN']}\nL_fetch{w}:")
        if w >= 2:
            A(f"s_mov_b32 m0, s{cMD}")
            stamp(10)
            A("s_barrier\n" + (pub if LB else lld))
        else:
            spin_init(A)
            for i, d in enumerate(cfg["FD"]):
                if i: A(eld)
                delay(d)
            A(f"s_mov_b64 vcc, -1\nL_er{w}:\n" + masked(eld))
            if PROF: A("s_add_u32 s2, s2, 1")
            spin_step(A)
            A(f"s_waitcnt vmcnt({2 * (len(cfg['FD']) - 1)})")
            for x in mx(ES, 8) + [CMP]: A(x)
            A(f"s_cbranch_vccnz L_er{w}")
            A(ewr)
            stamp(10)
            if cfg["PROF"] == -1 and w == 0:
                A(f"s_cmp_lg_u32 s{sSTEP}, 1\ns_cbranch_scc1 L_dg2"); timeline(A, cfg, 9, vT); A("L_dg2:")
            A("s_barrier")
        L = Cnt(A, "lgkmcnt")
        def mrd(p): L.op(f"ds_read_b128 {v(M + 4 * p, 4)}, v{vMr} offset:{1024 * p}", ("m", p))
        def lwr(j, hf): L.op(lw(j, hf), ("w", j))
        def kfr(kf): L.op(f"ds_read_b128 {v(M + 4 * kf, 4)}, v{vKr} offset:{(kf >> 1) * 4096 + 2048 + (kf & 1) * 1024}", ("K", kf))
        def frag(k, t):
            if k == "K": kfr(t)
            elif k == "V": L.op(f"ds_read_b128 {v(G + 4 * t, 4)}, v{vVr} offset:{1024 * t}", ("V", t))
            else: L.op(f"ds_read_b128 {v(G + 8 * t + (4 if k == 'k' else 0), 4)}, v{vQr} offset:{t * 1024 + (512 if k == 'k' else 0)}", (k, t))
        A("s_waitcnt lgkmcnt(0)\ns_barrier")
        stamp(0)
        for p in range(4): mrd(p)
        for i in range(cfg["PH"][0]): A("s_nop 0")
        A(f"s_add_u32 s{sKVS}, s{sKVS}, {32 * 16384}\ns_xor_b32 s{sKVL}, s{sKVL}, 0x3c000\ns_mov_b32 m0, s{cMC if LB else sKVL}")
        sq.extend(sc_part); sal(2)
        L.wait(("m", 0))
        stamp(1)
        NV = cfg["NVF"]
        qk = lambda p: [(QA, p, W8(WQ(p, 0))), (QA + 4, p, W8(WQ(p, 1)))] + \
                       [(QA + 8 + 4 * b, p, W8(WK(p, b)) if p % 2 == 0 else v(G + 8 * ((p - 1 + b) % 4), 8)) for b in range(2)]
        vv = lambda p: [(VA + 4 * b, p, W8(WV(p, b))) for b in range(2)]
        seq = sum((qk(p) for p in range(4)), []) + sum((vv(p) for p in range(NV)), []) + sum((qk(p) for p in range(4, 8)), [])
        H = 16 + 2 * NV
        gap = {}; val = {}
        def at(k, fn): gap.setdefault(k, []).append(fn)
        for k, (j, hf) in zip((6, 8, 9, 10), ((4, 0), (4, 1), (5, 0), (5, 1))): at(k, lambda j=j, hf=hf: lwr(j, hf))
        LP = cfg["LP"]
        VS = {n: g[w] for n, g in cfg["VS4"].items() if g[w] is not None}
        NEG = KMQ
        vop = {"km": kmst.replace(f"s{sKM} ", f"s{sKP} "), "pg": prog_ld(vProg)}
        for i in range(4): vop[f"d{i}"] = dmakv(i)
        for i in range(2): vop[f"r{i}"] = f"buffer_store_dwordx4 {v(NEG, 4)}, v{vWl0}, {S4(rWS)}, s{sPZ} offen offset:{1024 * i}"
        def vslot(k): pass
        at(LP, lambda: A(f"s_waitcnt vmcnt({sum(x < LP for x in VS.values())})"))
        for n in VS: at(VS[n], lambda n=n: A(vop[n]))
        assert VS["km"] + 3 <= VS["r0"] < VS["r1"] < len(seq)
        for i in range(2): val.setdefault(VS["km"] + 1 + i, []).append(f"v_mov_b64 {v(NEG + 2 * i, 2)}, -1")
        if LB:
            CS = cfg["CS4"][w]
            assert CS + 1 < min(VS.values())
            at(CS, lambda: A(cld[0])); at(CS + 1, lambda: A(cld[1] + f"\ns_mov_b32 m0, s{sKVL}"))
        if w >= 2 or LB:
            for i, x in enumerate(mx(CR, CN) + [CMP]): val.setdefault(LP + (i if LB else (i + 1) // 2), []).append(x)
            at(LP + 4, lambda: A(f"s_cbranch_vccnz L_lr{w}\nL_lk{w}:\ns_barrier"))
        else: at(LP + 4, lambda: A("s_barrier"))
        for i in range(4): at(LP + 4 + (i if i < 2 else 2 * i), lambda i=i: mrd(4 + i))
        for k, (j, hf) in zip((H + 1, H + 2, H + 5, H + 6), ((6, 0), (6, 1), (7, 0), (7, 1))): at(k, lambda j=j, hf=hf: lwr(j, hf))
        at(H + 5, lambda: L.wait(("w", 5))); at(H + 13, lambda: L.wait(("w", 7)))
        for i in range(NV): at(H + 9 + 2 * i, lambda i=i: kfr(i))
        for k, (acc, p, wop) in enumerate(seq):
            A(f"{SMF} {v(acc, 4)}, {v(M + 4 * p, 4)}, {wop}, v{vIdx}")
            g = gap.get(k, [])
            for fn in g: fn()
            n = len(g)
            if k + 1 < len(seq) and seq[k + 1][0] == QA: L.wait(("m", seq[k + 1][1])); n += 1
            if cfg.get("QS") and k in cfg["QS"]: stamp(4 + cfg["QS"].index(k), True)
            sal((2 if k in val else 3) - n)
            for x in val.get(k, []): A(x)
        assert not sq
        stamp(2)
        qd = G + 16
        def addh(d): return [f"v_add_f32 v{d}, v{d}, v{d + 2}", f"v_add_f32 v{d + 1}, v{d + 1}, v{d + 3}"]
        for x in addh(QA) + addh(QA + 4): A(x)
        A(f"v_cvt_pk_bf16_f32 v{qd}, v{QA}, v{QA + 4}\nv_cvt_pk_bf16_f32 v{qd + 1}, v{QA + 1}, v{QA + 5}")
        L.op(f"ds_write2_b32 v{vQw}, v{qd}, v{qd + 1} offset1:16")
        for x in addh(QA + 8) + addh(QA + 12): A(x)
        A(f"v_cvt_pk_bf16_f32 v{KMQ}, v{QA + 8}, v{QA + 12}\nv_cvt_pk_bf16_f32 v{KMQ + 1}, v{QA + 9}, v{QA + 13}")
        L.op(f"ds_write2_b32 v{vQw}, v{KMQ}, v{KMQ + 1} offset0:128 offset1:144", "wk")
        if cfg.get("QS") and 99 in cfg["QS"]: stamp(4 + cfg["QS"].index(99), True)
        rq = [("q", 0), ("k", 0), ("q", 1), ("k", 1), ("K", 4), ("q", 2), ("K", 5), ("k", 2), ("K", 6), ("q", 3), ("K", 7), ("k", 3), ("V", 0), ("V", 1)]
        rest = sum((vv(p) for p in range(NV, 8)), [])
        EB = cfg["EB"]
        for e, (acc, p, wop) in enumerate(rest):
            A(f"{SMF} {v(acc, 4)}, {v(M + 4 * p, 4)}, {wop}, v{vIdx}")
            if (e & 1) and p < 4: kfr(p)
            if e == EB: L.wait("wk"); A("s_barrier")
            if e > EB and rq and (rq[0][0] != "K" or rq[0][1] < p + (e & 1)): frag(*rq.pop(0))
            vslot(100 + e)
            if cfg.get("QS") and 100 + e in cfg["QS"]: stamp(4 + cfg["QS"].index(100 + e), True)
        stamp(3)
        Sm, S0, S1 = QA, QA + 4, QA + 8
        vq = addh(VA) + addh(VA + 4) + [f"v_cvt_pk_bf16_f32 v{KMQ + 2}, v{VA}, v{VA + 1}", f"v_cvt_pk_bf16_f32 v{KMQ + 3}, v{VA + 4}, v{VA + 5}"]
        zq = [f"v_mov_b64 {v(M + i, 2)}, 0" for i in range(0, 32, 2)]
        def z(n):
            for _ in range(n):
                if zq: A(zq.pop(0))
        for t in range(4):
            need = [("q", t), ("k", t), ("K", 2 * t), ("K", 2 * t + 1)]
            while any(x not in L.tags for x in need): frag(*rq.pop(0))
            L.wait(min((L.need(x), x) for x in need)[1])
            for i, (d, a_) in enumerate(((S0, M + 8 * t), (S1, M + 8 * t + 4), (Sm, G + 8 * t + 4))):
                A(f"{MF} {v(d, 4)}, {v(a_, 4)}, {v(G + 8 * t, 4)}, {v(d, 4) if t else 0}")
                e = 3 * t + i
                if rq and (rq[0][0] != "V" or e >= 2): frag(*rq.pop(0))
                if 2 <= e <= 4: A(vq[2 * (e - 2)] + "\n" + vq[2 * (e - 2) + 1])
                if e == 4: A(f"s_cmp_ge_u32 s{sSTEP}, {min(cfg['KEARLY'], cfg.get('LAST', NSEG - 1))}")
                if e == 5 and not cfg.get("XL"): A(f"s_cbranch_scc1 L_ch_km{w}\nL_ch_kmb{w}:")
                if e == 5 and cfg.get("XL"): A(f"L_ch_kmb{w}:")
                vslot(200 + e)
                if e == 7: A(f"v_mov_b64 {v(G + 8, 2)}, s[{sONE}:{sONE + 1}]\nv_mov_b64 {v(G + 10, 2)}, s[{sONE}:{sONE + 1}]")
                if e >= 8: z(2)
        assert not rq
        stamp(4)
        if cfg.get("XL"): A(f"s_cmp_eq_u32 s{sSTEP}, {NSEG - 1}\ns_cbranch_scc1 L_ch_exit")
        m1, m2, m3, tt = G + 28, G + 29, G + 30, G + 31
        z(1)
        A(f"""v_max3_f32 v{m1}, v{S0}, v{S0 + 1}, v{S0 + 2}
        v_max3_f32 v{m2}, v{S0 + 3}, v{S1}, v{S1 + 1}
        v_max3_f32 v{m3}, v{S1 + 2}, v{S1 + 3}, v{m1}
        v_max3_f32 v{m1}, v{Sm}, v{Sm + 1}, v{m2}
        v_max_f32 v{m2}, v{m1}, v{m3}
        v_max_f32 v{tt}, v{m1}, v{m3}""")
        z(2)
        A(f"v_permlane16_swap_b32 v{m2}, v{tt}\nv_max_f32 v{m1}, v{m2}, v{tt}\nv_max_f32 v{m3}, v{m2}, v{tt}")
        z(2)
        A(f"v_permlane32_swap_b32 v{m1}, v{m3}\nv_max_f32 v{m1}, v{m1}, v{m3}\nv_mul_f32 v{m1}, s{sC}, v{m1}")
        sv = [Sm, Sm + 1] + [S0 + i for i in range(8)]
        P = G + 12
        O0, O1, SU = G + 16, G + 20, G + 24
        fm = lambda x: f"v_fma_f32 v{x}, v{x}, s{sC}, -v{m1}"
        if cfg["PK"]:
            for i in range(0, 10, 2): A(f"v_pk_fma_f32 {v(sv[i], 2)}, {v(sv[i], 2)}, s[{sC2}:{sC2 + 1}], {v(m1, 2)} op_sel_hi:[1,1,0] neg_lo:[0,0,1] neg_hi:[0,0,1]")
        else: A(fm(sv[0]))
        for i in range(10):
            if i + 1 < 10 and not cfg["PK"]: A(fm(sv[i + 1]))
            A(f"v_exp_f32 v{sv[i]}, v{sv[i]}")
            if i == 2: A(f"v_cvt_pk_bf16_f32 v{PM}, v{Sm}, v{Sm + 1}\nv_cvt_pk_bf16_f32 v{PM + 3}, v{Sm}, v{Sm + 1}")
            if i in (4, 6, 8): A(f"v_cvt_pk_bf16_f32 v{P + (i - 4) // 2}, v{sv[i - 2]}, v{sv[i - 1]}")
            if i == 3: A(f"{MF16} {v(SU, 4)}, {v(G + 8, 2)}, {v(PM, 2)}, 0")
            if i == 5: A(f"{MF16} {v(O0, 4)}, {v(KMQ + 2, 2)}, {v(PM, 2)}, 0")
            if i == 7: A(f"{MF16} {v(O1, 4)}, {v(KMQ + 2, 2)}, {v(PM + 2, 2)}, 0")
        L.wait(("V", 1))
        A(f"v_cvt_pk_bf16_f32 v{P + 3}, v{sv[8]}, v{sv[9]}")
        stamp(5)
        z(2)
        A(f"{MF} {v(SU, 4)}, {v(G + 8, 4)}, {v(P, 4)}, {v(SU, 4)}"); z(2)
        A(f"{MF} {v(O0, 4)}, {v(G, 4)}, {v(P, 4)}, {v(O0, 4)}")
        A(f"{MF} {v(O1, 4)}, {v(G + 4, 4)}, {v(P, 4)}, {v(O1, 4)}")
        ost = lambda k: (VA, G, QA + 8, G + 24, G + 8, VA)[k]
        def owr(k, hf): L.op(f"ds_read_b128 {v(ost(k) + 4 * hf, 4)}, v{vWl1} offset:{k * 2048 + hf * 1024}", ("ow", k))
        owr(0, 0)
        A(f"v_rcp_f32 v{SU}, v{SU}")
        owr(0, 1)
        for o in (O0, O1):
            for i in range(4): A(f"v_mul_f32 v{o + i}, v{o + i}, v{SU}")
            for i in range(2): A(f"v_cvt_pk_bf16_f32 v{P + (o - O0) // 2 + i}, v{o + 2 * i}, v{o + 2 * i + 1}")
        assert not zq
        L.op(f"ds_write_b128 v{vOw}, {v(P, 4)}", "ow")
        owr(1, 0); owr(1, 1)
        for i in range(8 * cfg["PH"][1]): A("s_nop 0")
        L.wait("ow"); A("s_barrier")
        L.op(f"ds_read_b128 {v(QA, 4)}, v{vOr}", "o0"); L.op(f"ds_read_b128 {v(QA + 4, 4)}, v{vOr} offset:1024", "o1")
        stamp(6)
        L.wait("o0")
        OQ = G + 16
        tile = lambda t: addh(M + 4 * t) + [f"v_cvt_pk_bf16_f32 v{OQ + t}, v{M + 4 * t}, v{M + 4 * t + 1}"]
        def pstore(p): A(f"buffer_store_dwordx2 {v(OQ + 2 * p, 2)}, v{vPartSt}, {S4(rWS)}, s{sPW if p < 2 else sWO} offen offset:{2048 * (p & 1)}")
        rl = "\n".join(f"buffer_load_dwordx4 {v(RD + 4 * i, 4)}, v{vWl0}, {S4(rWS)}, s{sPR} offen offset:{1024 * i} sc1" for i in range(2))
        sq.extend(sc_next)
        for e in range(16):
            t, u = e >> 1, e & 1
            A(f"{SMF} {v(M + 4 * t, 4)}, {v(QA + 4 * u, 4)}, {W8(WO(t, u)) if t < 5 else v(ost(e - 10), 8)}, v{vIdx}")
            if e == 0: L.wait("o1")
            if e < 6: owr(2 + e // 2, e & 1)
            if e == 10: owr(5, 0); owr(5, 1)
            if e == 9: L.wait(("ow", 4))
            if e == 14: L.wait(("ow", 5))
            if e in (7, 11, 15): pstore((e - 7) // 4)
            if cfg.get("WS") and e in cfg["WS"]: stamp(cfg["WS"].index(e), True)
            if e >= 1: sal(1)
            if e in (1, 2): A(f"v_xor_b32 v{vKr if e == 1 else vVr}, 0x3c000, v{vKr if e == 1 else vVr}")
            if e >= 3 and (e & 1): A(tile((e - 3) // 2)[0] + "\n" + tile((e - 3) // 2)[1])
            if e >= 4 and not (e & 1): A(tile((e - 4) // 2)[2])
        assert not sq
        A(tile(6)[2])
        for x in tile(7): A(x)
        pstore(3)
        stamp(7)
        rmf = lambda i: f"{MF} {v(RA, 4)}, {v(SEL, 4)}, {v(RD + 4 * i, 4)}, {v(RA, 4) if i else 0}"
        def steplog():
            if PROF:
                A(f"""s_memrealtime s[100:101]
                s_waitcnt lgkmcnt(0)
                s_bitcmp1_b32 s{sW}, 0
                s_cselect_b32 s3, s100, s{sTS + 14}
                v_mov_b32 v{vT}, s3
                s_lshl_b32 s{st0}, s{sRK}, 6
                s_add_u32 s{st0}, s{st0}, s{sSTEP}
                s_lshl_b32 s{st0}, s{st0}, 2
                s_add_u32 s{st0}, s{st0}, {WS_DBG + 0x8000}
                s_lshl_b32 s3, s{sW}, 13
                s_add_u32 s{st0}, s{st0}, s3
                s_mov_b64 exec, 1
                buffer_store_dword v{vT}, off, {S4(rWS)}, s{st0}
                s_mov_b64 exec, -1""")
        def progchk():
            A("s_waitcnt vmcnt(4)"); prog_spin(); steplog()
        def odd(n):
            l = A.lab()
            A(f"s_bitcmp1_b32 s{sW}, 0\ns_cbranch_scc0 {l}"); delay(n); A(f"{l}:")
        chores = {"s": lambda: [A(f"v_cndmask_b32 v{SEL + i}, 0, v{vSel}, s[{sMSK + 2 * i}:{sMSK + 2 * i + 1}]") for i in range(4)] +
                               [fill_ones(A, ES, 2)],
                  "p": preload, "z": zero_acc, "A": lambda: A(rl), "e": lambda: delay(4), "d": lambda: delay(8), "D": lambda: delay(16),
                  "k": progchk, "o": lambda: odd(8), "O": lambda: odd(16)}
        for ch in cfg["RED4"][w]:
            if isinstance(ch, str): chores[ch]()
            else: delay(ch)
        if PROF and w == 2: steplog()
        spin_init(A)
        A(f"s_mov_b64 vcc, -1\nL_red{w}:\n" + masked(rl))
        if PROF: A(f"s_add_u32 s{sTS + 23}, s{sTS + 23}, 1")
        spin_step(A)
        A(f"s_waitcnt vmcnt({2 * cfg['RED4'][w].count('A')})")
        for x in mx(RD, 8)[:2] + [rmf(0)] + mx(RD, 8)[2:] + [rmf(1), CMP]: A(x)
        A(f"s_cbranch_vccnz L_red{w}")
        stamp(8)
        for r in (4, 8):
            for i in range(4): A(f"v_add_f32_dpp v{RA + i}, v{RA + i}, v{RA + i} row_ror:{r} row_mask:0xf bank_mask:0xf")
        A(f"v_cvt_pk_bf16_f32 v{RA}, v{RA}, v{RA + 1}\nv_cvt_pk_bf16_f32 v{RA + 1}, v{RA + 2}, v{RA + 3}")
        if not (LB and w >= 2): A(pub)
        stamp(9)
        A(f"s_branch L_fetch{w}")
    for w in range(4): step(w)
    A("L_ch_exit:")
    if cfg.get("XL"): A(f"buffer_store_dwordx4 {v(KMQ, 4)}, v{vWl0}, {S4(rWS)}, s{sKM} offen sc1")
    timeline(A, cfg, 3, vT)
    if PROF:
        A(f"""s_waitcnt lgkmcnt(0)
        s_lshl_b32 s{st0}, s{sRK}, 2
        s_add_u32 s{st0}, s{st0}, s{sW}
        s_lshl_b32 s{st0}, s{st0}, 7
        s_add_u32 s{st0}, s{st0}, {WS_DBG}
        s_mov_b64 exec, 1
        s_memrealtime s[90:91]
        s_waitcnt lgkmcnt(0)
        s_lshr_b32 s92, s90, 10
        s_add_u32 s92, s92, 2
        s_lshl_b32 s92, s92, 10
        L_cal:
        s_memrealtime s[90:91]
        s_memtime s[94:95]
        s_waitcnt lgkmcnt(0)
        s_sub_u32 s93, s90, s92
        s_cmp_lt_i32 s93, 0
        s_cbranch_scc1 L_cal""")
        for i, r in enumerate([sTS + 2 * i for i in range(11)] + [sTS + 23, 2, sTS + 22, 94, 92]): A(f"v_mov_b32 v0, s{r}\nbuffer_store_dword v0, v{vZ}, {S4(rWS)}, s{st0} offen offset:{4 * i}")
    A("s_endpgm")
```

```python
import sys, json
from common import *
import align, role_kv, role_ffn, role_ffn1, role_chain, role_chain_g2, role_chain_g4, role_qo

DEFAULT = dict(ROLES=["chain", "kv", "kv", "qo", "qo", "qo", "ffn", "ffn"], KV_DEPTH=9, QO_DEPTH=1, FFN_DEPTH=1, CH_DEPTH=5, CH_PF=0, CH_MIX=0,
               ENABLE=["chain", "kv", "qo", "ffn"], PROF=0, SLEEP=0, CODEPF=1, WARM='', KFIRST=1, NT='qfoQ', G3=0, G4=1, LATEPUB=0, CS4=[4, 6, 5, 7],
               VS4=dict(d0=[0, 1, 2, 3], d1=[4, 5, 6, 7], d2=[8, 9, 10, 11], d3=[12, 13, 14, 15], pg=[None, None, None, 17],
                        km=[17, 19, 21, 23], r0=[25, 26, 28, 29], r1=[31, 32, 34, 35]),
               RED4=[["s", 4, "A", "z", "p", 8], ["s", 12, "A", "z", "p", 8], ["s", "p", "z", 20, "A", 16], ["k", "s", "p", "z", 12, "A", 16]], ALIGN=8, PAD=0, AL=0, PK=1, KEARLY=60, RS=8192, MEMOFF=0, PH=[0, 0, 32], TLB=0, QO_LATE=1, S_QO=99, S_FFN=98, GATE=0, F2D=1,
               LP=12, NVF=2, EB=4, PRE=0, PREP='n', FD=[32, 16, 16], SPEC=0, VS=dict(km=17, d0=0, d1=4, d2=8, d3=13, pg=14, r0=30, r1=100), KVST='sc1', KVLD='sc1', RED=[["s", -4, "A", "z", "p", 4], ["k", "s", "p", "z", -4, "A", 16]])

G3CFG = dict(LP=16, CS=5, BP=8, EB=3, PREP="c", RED=["szpA", "szpAd", "kspzdoAD"], FD=[24, 16, 16],
             VS=dict(km=29, d0=13, d1=17, d2=21, d3=25, pg=27, r0=34, r1=100))

WS0 = {n: x for n, x in globals().items() if n.startswith('WS_') and n not in ('WS_SIZE', 'WS_DBG')}
HEAD = open("ref.txt").read().split("; Override launch")[0]

def generate(over=None, verbose=False):
    cfg = dict(DEFAULT)
    if (over or {}).get("G3", cfg["G3"]): cfg.update(G3CFG)
    cfg.update(over or {})
    for r in ("kv", "qo", "ffn"): cfg["N" + r.upper()] = cfg["ROLES"].count(r)
    import common, ln
    for n, d in WS0.items():
        for m in (common, ln, role_kv, role_ffn, role_ffn1, role_chain, role_chain_g2, role_chain_g4, role_qo): m.__dict__[n] = d + cfg.get("WSO", {}).get(n[3:], 0)
    common.DONE_N = 224 if cfg.get('NOSIG') else 256
    A = Asm()
    prologue(A, cfg["ROLES"], cfg["PROF"], cfg["CODEPF"], cfg["WARM"])
    cfg["_dbg"] = {("chain", 1): 2, ("chain", 2): 3, ("chain", 3): 4, ("kv", 1): 5, ("kv", 2): 6, ("qo", 1): 7, ("qo", 73): 8, ("qo", 7): 9,
                   ("ffn", 1): 10, ("ffn", 2): 11, ("ffn", 72): 12, ("ffn", 7): 13, ("chain", 9): 14, ("kv", 9): 15}
    for r, m, vz in (("chain", (role_chain if cfg["G3"] else role_chain_g4 if cfg["G4"] else role_chain_g2).role_chain, 93), ("kv", role_kv.role_kv, 108), ("qo", role_qo.role_qo, 217), ("ffn", (role_ffn if cfg["F2D"] else role_ffn1).role_ffn, 109 if cfg["F2D"] else 213)):
        cfg["_role"] = r; cfg["_vz"] = vz
        m(A, cfg)
    A("L_end:")
    body = A.finish(verbose)
    if cfg["AL"]:
        out = align.run(A.out, "L_fetch", "L_ch_exit", 4 * cfg["PAD"], {"L_early": cfg["PH"][2]}, verbose)
        body = "\n".join(x if isinstance(x, str) else " " + x.text for x in out) + "\n"
    if cfg.get("NOMF"):
        import re
        f = {1: lambda m: " s_nop 3", 2: lambda m: " v_mfma_f32_16x16x32_bf16 %s, %s, %s[%d:%d], %s" % (m.group(1), m.group(2), m.group(3), int(m.group(4)), int(m.group(4)) + 3, m.group(1))}[cfg["NOMF"]]
        body = re.sub(r" v_smfmac_f32_16x16x64_bf16 (\S+), (\S+), ([av])\[(\d+):\d+\], v\d+", f, body)
    K = NAME + "_kernel"
    doc = open("header.txt").read()
    return (HEAD + f"; @launch grid=(256,1,1) block=(256,1,1) lds={LDS_BYTES}\n" + doc +
            f'.amdgcn_target "amdgcn-amd-amdhsa--gfx950"\n.text\n.globl {K}\n.p2align 8\n.type {K},@function\n{K}:\n' + body +
            f""".section .rodata,"a"
.p2align 6
.amdhsa_kernel {K}
  .amdhsa_next_free_vgpr 512
  .amdhsa_next_free_sgpr 102
  .amdhsa_accum_offset 256
  .amdhsa_group_segment_fixed_size 0
  .amdhsa_kernarg_size 112
  .amdhsa_user_sgpr_count 2
  .amdhsa_user_sgpr_kernarg_segment_ptr 1
  .amdhsa_system_sgpr_workgroup_id_x 1
  .amdhsa_float_denorm_mode_32 3
.end_amdhsa_kernel
""")

if __name__ == "__main__":
    out = sys.argv[1] if len(sys.argv) > 1 else "cdna_kernels/%s.s" % NAME
    over = json.loads(sys.argv[2]) if len(sys.argv) > 2 else None
    t = generate(over, verbose="-v" in sys.argv)
    open(out, "w").write(t)
    print(out, len(t), "bytes")
```

```python
from asmlib import *

NAME = "sequential_preLN__memory_aug_recurrent_mem_tr__glu_gated_swiglu__prompt"
NSEG = 64
WS_XN    = 0x0000000
WS_XN2   = 0x0200000
WS_HB    = 0x0400000
WS_KM    = 0x0600000
WS_PART  = 0x0E00000
WS_MEM   = 0x0F00000
WS_PROG  = 0x0F10000
WS_PART1 = 0x1000000
WS_PART2 = 0x1800000
WS_KV    = 0x2000000
WS_DBG   = 0x4000000
WS_SIZE  = 0x10000000
DBG_DONE = 192
DBG_CH = 196
DBG_LN = 64
SPIN = 1 << 19
LDS_BYTES = 163840

sW, sRK, sX, sSPIN = 4, 5, 6, 7
pX, pMEM0, pWQ, pWK, pWV, pWO = 8, 10, 12, 14, 16, 18
pW1, pW3, pW2, pOUT, pDBG, pWS = 24, 26, 28, 30, 32, 34
rWS, rA, rB, rC, rD = 36, 40, 44, 48, 52

def srd(A, r, p, size):
    A(f"s_mov_b32 s{r}, s{p}\ns_mov_b32 s{r+1}, s{p+1}\ns_mov_b32 s{r+2}, {size:#x}\ns_mov_b32 s{r+3}, 0x20000")

def S4(r): return s(r, 4)

def spin_init(A): A(f"s_mov_b32 s{sSPIN}, {SPIN}")
def spin_step(A): A(f"s_sub_u32 s{sSPIN}, s{sSPIN}, 1\ns_cbranch_scc1 L_abort")

def signal_done(A, vt0, vt1, word=DBG_DONE):
    l = A.lab()
    A(f"""s_cmp_lg_u32 s{sW}, 0
    s_cbranch_scc1 {l}
    v_mov_b32 v{vt0}, {word}
    v_mov_b32 v{vt1}, 1
    s_mov_b64 exec, 1
    global_atomic_add v{vt0}, v{vt1}, s[{pDBG}:{pDBG+1}] sc1
    s_mov_b64 exec, -1
    {l}:""")

DONE_N = 256
def wait_done(A, vt0, vt1, st, word=DBG_DONE, count=256):
    if count == 256: count = DONE_N
    l, l2 = A.lab(), A.lab()
    spin_init(A)
    A(f"v_mov_b32 v{vt0}, {word}\ns_branch {l2}\n{l}:\ns_sleep 4\n{l2}:\nglobal_load_dword v{vt1}, v{vt0}, s[{pDBG}:{pDBG+1}] sc1")
    spin_step(A)
    A(f"s_waitcnt vmcnt(0)\nv_readfirstlane_b32 s{st}, v{vt1}\ns_cmp_lt_u32 s{st}, {count}\ns_cbranch_scc1 {l}")

def wait_done1(A, vt0, vt1, st, word=DBG_DONE, count=256):
    l = A.lab()
    A(f"s_cmp_lg_u32 s{sW}, 0\ns_cbranch_scc1 {l}")
    wait_done(A, vt0, vt1, st, word, count)
    A(f"{l}:\ns_barrier")

def lane_fields(A, vlane):
    A(f"v_and_b32 v{vlane}, 63, v0")

def dma_col(A, dst, vlane, t0, t1, st):
    A(f"""v_lshrrev_b32 v{t0}, 4, v{vlane}
    s_lshr_b32 s{st}, s{sW}, 1
    s_lshl_b32 s{st}, s{st}, 2
    v_or_b32 v{t0}, s{st}, v{t0}
    v_bfe_u32 v{t1}, v{vlane}, 1, 3
    v_xor_b32 v{t0}, v{t0}, v{t1}
    v_lshlrev_b32 v{t0}, 5, v{t0}
    v_and_b32 v{t1}, 1, v{vlane}
    v_lshl_or_b32 v{dst}, v{t1}, 4, v{t0}""")

def tr_base(A, dst, vlane, t0, t1):
    A(f"""v_lshrrev_b32 v{t0}, 4, v{vlane}
    v_bfe_u32 v{t1}, v{vlane}, 2, 2
    v_lshl_add_u32 v{dst}, v{t0}, 3, v{t1}
    v_lshlrev_b32 v{dst}, 8, v{dst}
    v_and_b32 v{t0}, 1, v{t0}
    v_lshl_or_b32 v{t0}, v{t0}, 2, v{t1}
    v_lshl_or_b32 v{dst}, v{t0}, 5, v{dst}
    v_and_b32 v{t0}, 3, v{vlane}
    v_lshl_or_b32 v{dst}, v{t0}, 3, v{dst}""")

def tr_tile(A, pfx, d, vaddr):
    for i, off in enumerate((0, 1024, 8192, 9216)):
        A(f"ds_read_b64_tr_b16 {R(pfx, d + 2*i, 2)}, v{vaddr} offset:{off}")

def load_chunks(A, chunks, nslots, depth, slot0, st0, st1, hooks=None, lds0=0, pfd=0, vdummy=None, pre=None, slots=None, nt=''):
    n = len(chunks)
    slot = lambda c: lds0 + (slots[c] if slots else (c + slot0) % nslots) * 16384
    V = Cnt(A, "vmcnt")
    A(f"s_lshl_b32 s{st1}, s{sW}, 10")
    def pref(c):
        if pfd and c < n and chunks[c].get("pf"):
            vo, off = chunks[c]["pf"]
            A(f"s_mov_b32 s{st0}, {off}")
            V.op(f"buffer_load_dword v{vdummy}, v{vo}, {S4(chunks[c]['srd'])}, s{st0} offen")
    def issue(c):
        ch = chunks[c]
        A(f"s_lshl_b32 s{st1}, s{sW}, 10")
        for i in range(4):
            A(f"s_add_u32 m0, s{st1}, {slot(c) + i * 4096}")
            if ch.get("sbase") is not None: A(f"s_add_u32 s{st0}, s{ch['sbase']}, {ch['offs'][i]}")
            else: A(f"s_mov_b32 s{st0}, {ch['offs'][i]}")
            V.op(f"buffer_load_dwordx4 v{ch['voff']}, {S4(ch['srd'])}, s{st0} offen {ch.get('nt', nt)} lds", c)
    first = min(2, depth) if pfd else depth
    for c in range(first): issue(c)
    if pfd:
        for c in range(first, depth + pfd): pref(c)
        for c in range(first, depth): issue(c)
    for c in range(n):
        if pre and c in pre: pre[c]()
        V.wait(c); A("s_barrier")
        if hooks and c in hooks: hooks[c]()
        if c + depth < n:
            pref(c + depth + pfd); issue(c + depth)
        chunks[c]["extract"](A, slot(c))
        A("s_waitcnt lgkmcnt(0)")

def fill_ones(A, r, n):
    for i in range(0, n, 2): A(f"v_mov_b64 {v(r + i, 2)}, -1")

def clear_region(A, vaddr, vones, soff, nkb, sc, stmp):
    A(f"s_mov_b32 s{stmp}, s{soff}")
    for i in range(nkb):
        if i and i % 4 == 0: A(f"s_add_u32 s{stmp}, s{stmp}, 4096")
        A(f"buffer_store_dwordx4 {v(vones, 4)}, v{vaddr}, {S4(rWS)}, s{stmp} offen offset:{(i % 4) * 1024} {sc}")

def prologue(A, roles, prof=0, pf=1, warm=None, early=0):
    if prof == -1: A("s_memrealtime s[98:99]")
    A(f"""s_cmp_ge_u32 s2, 256
    s_cbranch_scc1 L_abort
    s_load_dwordx4 s[32:35], s[0:1], 96
    s_load_dwordx16 s[8:23], s[0:1], 0
    s_load_dwordx8 s[24:31], s[0:1], 64
    s_getreg_b32 s{sX}, hwreg(HW_REG_XCC_ID, 0, 4)
    v_lshrrev_b32 v1, 6, v0
    s_lshl_b32 s3, s{sX}, 2
    s_add_u32 s3, s3, 128
    s_cmp_eq_u32 s{sX}, 0
    s_cselect_b32 s3, 0, s3
    v_readfirstlane_b32 s{sW}, v1
    v_mov_b32 v1, s3
    v_mov_b32 v2, 1
    v_mov_b32 v4, 0
    s_waitcnt lgkmcnt(0)""")
    srd(A, rWS, pWS, WS_SIZE)
    A(f"""s_cmp_lg_u32 s{sW}, 0
    s_cbranch_scc1 L_p1
    s_mov_b64 exec, 1
    global_atomic_add v3, v1, v2, s[{pDBG}:{pDBG+1}] sc0 sc1
    s_mov_b64 exec, -1
    L_p1:""")
    if pf:
        order = ["chain", "kv", "qo", "ffn", "end"]
        A("s_getpc_b64 s[40:41]\nL_pc:\ns_mov_b32 s42, 0\ns_mov_b32 s43, 0")
        for x, r in enumerate(roles):
            A(f"s_cmp_eq_u32 s{sX}, {x}\ns_cselect_b32 s42, L_{r}-L_pc, s42\ns_cselect_b32 s43, L_{order[order.index(r) + 1]}-L_{r}, s43")
        A(f"""s_add_u32 s40, s40, s42
        s_addc_u32 s41, s41, 0
        v_lshlrev_b32 v5, 7, v0
        v_cmp_gt_u32 vcc, s43, v5
        s_and_saveexec_b64 s[44:45], vcc
        s_cbranch_execz L_p2
        global_load_dword v6, v5, s[40:41]
        L_p2:
        s_mov_b64 exec, -1""")
    if early:
        A(f"s_barrier\ns_cmp_lg_u32 s{sX}, 0\ns_cbranch_scc1 L_p5")
        srd(A, 40, pWK, 1 << 22)
        A(f"""s_bfe_u32 s3, s2, 0x50003
        s_lshr_b32 s44, s{sW}, 1
        s_lshl_b32 s44, s44, 7
        s_add_u32 s3, s3, s44
        s_add_u32 s3, s3, 256
        s_lshl_b32 s3, s3, 1
        s_and_b32 s44, s{sW}, 1
        s_add_u32 s3, s3, s44
        s_lshl_b32 s3, s3, 12
        v_and_b32 v5, 63, v0
        v_lshlrev_b32 v5, 4, v5""")
        for k in range(early):
            for i in range(4): A(f"buffer_load_dwordx4 v[8:11], v5, s[40:43], s3 offen offset:{1024 * i}")
            A(f"s_add_u32 s3, s3, {32 * 8192}")
        A(f"s_waitcnt vmcnt({4 * early + (1 if pf else 0)})\nL_p5:")
    A(f"""s_cmp_lg_u32 s{sW}, 0
    s_cbranch_scc1 L_p3""")
    if early: A(f"s_cmp_eq_u32 s{sX}, 0\ns_cbranch_scc1 L_p6")
    A(f"""s_waitcnt vmcnt({1 if pf else 0})
    L_p6:
    s_mov_b64 exec, 1
    ds_write_b32 v4, v3
    s_waitcnt lgkmcnt(0)
    s_mov_b64 exec, -1
    L_p3:""")
    if warm:
        xs = [x for x, r in enumerate(roles) if r == "qo"][:3]
        A("s_mov_b32 s44, -1")
        for i, x in enumerate(xs): A(f"s_cmp_eq_u32 s{sX}, {x}\ns_cselect_b32 s44, {i}, s44")
        A(f"""s_cmp_eq_u32 s44, -1
        s_cbranch_scc1 L_p4
        s_lshl_b32 s44, s44, 5
        s_bfe_u32 s3, s2, 0x50003
        s_add_u32 s44, s44, s3
        s_lshl_b32 s44, s44, 12
        v_lshlrev_b32 v5, 4, v0""")
        for p in warm:
            srd(A, 40, {"q": pWQ, "k": pWK, "v": pWV, "o": pWO}[p], 1 << 22)
            A("s_mov_b32 s3, s44")
            for i in range(11): A(f"buffer_load_dwordx4 v[8:11], v5, s[40:43], s3 offen\ns_add_u32 s3, s3, {96 * 4096}")
        A("L_p4:")
    A(f"""
    s_barrier
    ds_read_b32 v3, v4
    s_waitcnt lgkmcnt(0)
    v_readfirstlane_b32 s{sRK}, v3
    s_barrier
    s_cmp_ge_u32 s{sRK}, 32
    s_cbranch_scc1 L_abort""")
    cnt = {}
    for x, r in enumerate(roles):
        A(f"s_mov_b32 s3, {cnt.get(r, 0)}\ns_cmp_eq_u32 s{sX}, {x}\ns_cbranch_scc1 L_go_{r}")
        cnt[r] = cnt.get(r, 0) + 1
    A("L_abort:\ns_endpgm")
    for r in cnt: A(f"L_go_{r}:\ns_branch L_{r}")

def timeline(A, cfg, idx, vt, sidx=None):
    if cfg["PROF"] == -1:
        slot = cfg["_dbg"].get((cfg["_role"], idx))
        if slot is None: return
        l = A.lab()
        A(f"""s_memrealtime s[100:101]
        s_or_b32 s3, s{sRK}, s{sW}
        s_cmp_lg_u32 s3, 0
        s_cbranch_scc1 {l}
        s_waitcnt lgkmcnt(0)
        v_mov_b32 v{vt}, s100
        s_mov_b64 exec, 1
        global_store_dword v{cfg['_vz']}, v{vt}, s[{pDBG}:{pDBG + 1}] offset:{4 * slot} sc1
        s_mov_b64 exec, -1
        {l}:""")
        return
    if not cfg["PROF"]: return
    A(f"""s_memrealtime s[100:101]
    s_lshl_b32 s3, s{sX}, 5
    s_add_u32 s3, s3, s{sRK}
    s_lshl_b32 s3, s3, 2
    s_add_u32 s3, s3, s{sW}
    s_lshl_b32 s3, s3, 9
    s_add_u32 s3, s3, {WS_DBG + 0x10000 + 4 * idx}""")
    if sidx is not None: A(f"s_lshl_b32 s2, s{sidx}, 2\ns_add_u32 s3, s3, s2")
    A(f"""s_waitcnt lgkmcnt(0)
    v_mov_b32 v{vt}, s100
    s_mov_b64 exec, 1
    buffer_store_dword v{vt}, off, {S4(rWS)}, s3
    s_mov_b64 exec, -1""")

MF = "v_mfma_f32_16x16x32_bf16"
MF16 = "v_mfma_f32_16x16x16_bf16"
C_SCALE = 0x3e0293ee
WS_FLG1 = 0x0F20000
WS_FLG2 = 0x0F21000

class Cnt:
    def __init__(self, A, name): self.A, self.name, self.n, self.tags = A, name, 0, {}
    def op(self, text, tag=None):
        self.A(text); self.n += 1
        if tag is not None: self.tags[tag] = self.n
    def need(self, tag): return self.n - self.tags[tag]
    def wait(self, tag): self.A(f"s_waitcnt {self.name}({min(self.need(tag), 15 if self.name == 'lgkmcnt' else 63)})")

def seg_count(A, sreg, sT, n):
    c = [(NSEG - t + n - 1) // n for t in range(n)]
    A(f"s_mov_b32 s{sreg}, {c[0]}")
    for t in range(1, n):
        if c[t] != c[0]: A(f"s_cmp_eq_u32 s{sT}, {t}\ns_cselect_b32 s{sreg}, {c[t]}, s{sreg}")

def rows_out(A, dst, vcol, vlane, t0, st0, st1):
    A(f"""s_and_b32 s{st0}, s{sW}, 1
    s_lshl_b32 s{st0}, s{st0}, 4
    s_lshr_b32 s{st1}, s{sW}, 1
    s_lshl_b32 s{st1}, s{st1}, 2
    s_add_u32 s{st0}, s{st0}, s{st1}
    v_lshrrev_b32 v{t0}, 4, v{vlane}
    v_add_u32 v{t0}, s{st0}, v{t0}
    v_lshl_add_u32 v{dst}, v{t0}, 10, v{vcol}""")
ROWS_OUT = [32 * (i >> 1) + 8 * (i & 1) for i in range(4)]

def extract8(A, base, w, vT, t0, t1, dst, pfx="a"):
    l = A.lab()
    A(f"s_cmp_lg_u32 s{sW}, {w}\ns_cbranch_scc1 {l}\nv_add_u32 v{t0}, {base}, v{vT}")
    for t in range(8):
        A(f"v_xor_b32 v{t1}, {32 * t}, v{t0}")
        tr_tile(A, pfx, dst(t), t1)
    A(f"{l}:")

def proj_out(A, nk, wreg, F, ACC, OUT, vSt, sBase):
    ep = []
    for p in range(4):
        for a_ in range(2):
            for b in range(2):
                c = ACC + ((p * 2 + a_) * 2 + b) * 4
                for ks in range(nk):
                    A(f"{MF} {v(c, 4)}, {a(wreg(2 * p + b, ks), 4)}, {v(F + 4 * (a_ * nk + ks), 4)}, {v(c, 4) if ks else 0}")
                    if (b or ks >= 2 or nk == 2 and False) and ep: A(ep.pop(0))
                    if b and ep: A(ep.pop(0))
            while ep: A(ep.pop(0))
            c = ACC + (p * 2 + a_) * 8; o = OUT + 4 * a_
            ep = [f"v_cvt_pk_bf16_f32 v{o + i}, v{c + 2 * i}, v{c + 2 * i + 1}" for i in range(4)]
            ep.append(f"buffer_store_dwordx4 {v(o, 4)}, v{vSt}, {S4(rWS)}, s{sBase + a_} offen offset:{64 * p}")
    while ep: A(ep.pop(0))

def row_consts(A, vlane, vRl, vRow, SEL, sHX, t0, t1, st):
    A(f"""v_lshrrev_b32 v{t0}, 4, v{vlane}
    v_and_b32 v{t1}, 15, v{vlane}
    v_lshlrev_b32 v{vRl}, 4, v{t1}
    v_lshl_or_b32 v{vRl}, v{t0}, 10, v{vRl}
    s_lshl_b32 s{st}, s{sW}, 8
    v_add_u32 v{vRl}, s{st}, v{vRl}
    v_and_b32 v{vRow}, 3, v{vlane}
    v_lshlrev_b32 v{vRow}, 3, v{vRow}
    v_bfe_u32 v{t0}, v{vlane}, 4, 1
    v_lshl_or_b32 v{vRow}, v{t0}, 5, v{vRow}
    v_bfe_u32 v{t0}, v{vlane}, 2, 2
    v_lshl_or_b32 v{vRow}, v{t0}, 6, v{vRow}
    v_lshrrev_b32 v{t0}, 5, v{vlane}
    v_lshl_or_b32 v{vRow}, v{t0}, 8, v{vRow}
    v_and_b32 v{t0}, 1, v{vlane}
    v_lshlrev_b32 v{t0}, 4, v{t0}
    v_mov_b32 v{SEL}, 0x3f80
    v_lshlrev_b32 v{t0}, v{t0}, v{SEL}
    v_lshrrev_b32 v{t1}, 1, v{t1}
    s_and_b32 s{st}, s{sW}, 1
    s_lshl_b32 s{st}, s{st}, 2
    v_subrev_u32 v{t1}, s{st}, v{t1}
    s_bitcmp1_b32 s{sW}, 0
    s_cselect_b32 s{sHX}, 0, -1
    s_cselect_b32 s{sHX + 1}, -1, 0""")
    for i in range(4): A(f"v_cmp_eq_u32 vcc, {i}, v{t1}\nv_cndmask_b32 v{SEL + i}, 0, v{t0}, vcc")

def inbox_ops(n4, D, vRl, sIn, st, store):
    ops = []
    for i in range(n4):
        x = f"buffer_store_dwordx4 {v(D, 4)}" if store else f"buffer_load_dwordx4 {v(D + 4 * i, 4)}"
        ops.append((f"s_add_u32 s{st}, s{sIn}, {4096 * i}\n" if i else "") + x + f", v{vRl}, {S4(rWS)}, s{st if i else sIn} offen" + ("" if store else " sc1"))
    return ops

def row_sum(A, n4, D, ACC, SEL, vRl, sIn, st, t):
    l = A.lab()
    spin_init(A)
    A(f"s_mov_b64 vcc, -1\n{l}:\ns_mov_b64 exec, vcc")
    for x in inbox_ops(n4, D, vRl, sIn, st, False): A(x)
    A("s_mov_b64 exec, -1")
    spin_step(A)
    for i in range(n4):
        A(f"s_waitcnt vmcnt({n4 - 1 - i})\n{MF} {v(ACC, 4)}, {v(SEL, 4)}, {v(D + 4 * i, 4)}, {v(ACC, 4) if i else 0}")
        for k in range(2): A(f"v_max3_u32 v{t}, v{t if i or k else D}, v{D + 4 * i + 2 * k}, v{D + 4 * i + 2 * k + 1}")
    A(f"v_cmp_eq_u32 vcc, -1, v{t}\ns_cbranch_vccnz {l}")

def inbox_reset(A, n4, NEG, vRl, sIn, st):
    for x in inbox_ops(n4, NEG, vRl, sIn, st, True): A(x)

def wait_flags(A, vF, vL4, sFlg, sNeed):
    l = A.lab()
    spin_init(A)
    A(f"{l}:\nbuffer_load_dword v{vF}, v{vL4}, {S4(rWS)}, s{sFlg} offen sc1")
    spin_step(A)
    A(f"s_waitcnt vmcnt(0)\nv_cmp_gt_u32 vcc, s{sNeed}, v{vF}\ns_cbranch_vccnz {l}")

def wave_sum(A, r, t):
    for k in (8, 4, 2, 1): A(f"v_add_f32_dpp v{r}, v{r}, v{r} row_ror:{k} row_mask:0xf bank_mask:0xf")
    for sw in ("v_permlane16_swap_b32", "v_permlane32_swap_b32"):
        A(f"v_mov_b32 v{t}, v{r}\n{sw} v{r}, v{t}\nv_add_f32 v{r}, v{r}, v{t}")

def unpack(A, dst, src, n):
    for i in range(n): A(f"v_and_b32 v{dst + 2 * i + 1}, 0xffff0000, v{src + i}\nv_lshlrev_b32 v{dst + 2 * i}, 16, v{src + i}")
def pack(A, dst, src, n):
    for i in range(n): A(f"v_cvt_pk_bf16_f32 v{dst + i}, v{src + 2 * i}, v{src + 2 * i + 1}")

def max_chk(A, t, b, n):
    for i in range(0, n, 2): A(f"v_max3_u32 v{t}, v{t if i else b}, v{b + i}, v{b + i + 1}")
    A(f"v_cmp_eq_u32 vcc, -1, v{t}")
```

```python
from common import *

SMF = "v_smfmac_f32_16x16x64_bf16"

def role_chain(A, cfg):
    NKV, PROF = cfg["NKV"], cfg["PROF"] >= 2
    assert NKV in (1, 2)
    M, G, QA, VA, KMQ, PM = 0, 32, 64, 80, 88, 92
    vIdx, vWl0, vWl1, vKr, vVr, vMr, vPartSt, vMemSt, vQw, vQr, vOw, vOr, vSel, vProg, vT, vMw = range(96, 112)
    vZ = PM + 1
    L_KV, L_Q, L_O, L_M = 112 * 1024, 144 * 1024, 148 * 1024, 150 * 1024
    PUBX = "0x000f000f"
    RS = cfg["RS"]
    WS_MEM = globals()["WS_MEM"] + cfg["MEMOFF"]
    sSTEP, sX0, sX1, sX2, sPW, sPR, sPZ, sMN, sMZ, sKVS, sKVL, sKM, sPG, sNEED, sC, sME, sML, cME, sWO = range(56, 75)
    cPW, cPZ, cMD, cMC, cML = 40, 41, 42, 43, 44
    sONE, sMSK = 76, 78
    sKP, sC2, sLIM = 75, 88, 90
    sPX = 86
    st0, st1 = 100, 101
    sTS = 8
    def wreg(i): return ("a", 8 * i) if i < 32 else ("v", 112 + 8 * (i - 32))
    WQ = lambda p, b: wreg(2 * p + b)
    WK = lambda p, b: wreg(16 + p + b)
    WV = lambda p, b: wreg(24 + 2 * p + b)
    WO = lambda t, u: wreg(40 + 2 * t + u) if t < 5 else ("v", 32 + 8 * (2 * (t - 5) + u))
    W8 = lambda w: R(w[0], w[1], 8)
    def stamp(i, force=False):
        if PROF and (force or (not cfg.get("QS") or i < 4) and (not cfg.get("WS") or i >= 5)): A(f"{'s_memrealtime' if cfg.get('RT') else 's_memtime'} s[{sTS + 2 * i}:{sTS + 2 * i + 1}]")
    def delay(n):
        while n > 0:
            A(f"s_nop {min(n, 16) - 1}"); n -= 16

    A("L_chain:")
    timeline(A, cfg, 0, 1)
    srd(A, rA, pWQ, 1 << 22); srd(A, rB, pWK, 1 << 22); srd(A, rC, pWV, 1 << 22); srd(A, rD, pWO, 1 << 22)
    vLane, vOffA, vOffO, vT0, t0, t1, t2, vPF, vDum = range(20, 29)
    lane_fields(A, vLane)
    dma_col(A, vOffA, vLane, t0, t1, st0)
    A(f"""v_bfe_u32 v{t0}, v{vLane}, 4, 1
    v_lshrrev_b32 v{t1}, 5, v{vLane}
    s_and_b32 s{st0}, s{sW}, 1
    s_lshr_b32 s{st1}, s{sW}, 1
    v_lshl_add_u32 v{t2}, v{t1}, 5, v{t0}
    s_lshl_b32 s3, s{st1}, 4
    v_add_u32 v{t2}, s3, v{t2}
    s_lshl_b32 s3, s{st0}, 1
    v_add_u32 v{t2}, s3, v{t2}
    v_lshl_add_u32 v{vOffO}, v{t2}, 10, v{vOffA}
    v_lshlrev_b32 v{t0}, 4, v{t0}
    v_lshl_add_u32 v{t2}, v{t1}, 2, v{t0}
    v_add_u32 v{t2}, s{sW}, v{t2}
    v_lshl_add_u32 v{vOffA}, v{t2}, 13, v{vOffA}
    s_lshl_b32 s{sKVS}, s{sRK}, 8
    s_lshl_b32 s3, s{sRK}, 1
    s_add_u32 s3, s3, s{st1}
    s_lshr_b32 s{st1}, s3, 5
    s_lshl_b32 s{st1}, s{st1}, 7
    s_and_b32 s3, s3, 31
    s_add_u32 s3, s3, s{st1}
    s_lshl_b32 s3, s3, 13
    s_lshl_b32 s{st0}, s{st0}, 12
    s_add_u32 s3, s3, s{st0}
    v_lshl_add_u32 v{vPF}, v{vLane}, 6, s3
    s_lshl_b32 s{st0}, s{sW}, 12
    v_lshl_add_u32 v{vWl0}, v{vLane}, 4, s{st0}
    s_mul_i32 s{st0}, s{sW}, 12288
    s_add_u32 s{st0}, s{st0}, 0x10000
    v_lshl_add_u32 v{vWl1}, v{vLane}, 4, s{st0}""")
    tr_base(A, vT, vLane, t0, t1)
    A(f"s_lshl_b32 s{st0}, s{sW}, 6\nv_xor_b32 v{vT0}, s{st0}, v{vT}")
    for i in range(4):
        A(f"""s_add_u32 s{st0}, s{sRK}, {i}
        s_and_b32 s{sMSK + 4 + i}, s{st0}, 3
        s_lshl_b32 s{st0}, s{sMSK + 4 + i}, 8
        s_lshl_b32 s{st1}, s{sRK}, 17
        s_add_u32 s{sMSK + i}, s{st0}, s{st1}""")

    def startup():
        fill_ones(A, 0, 4)
        A(f"""s_mul_i32 s{sPZ}, s{sRK}, {RS}
        s_add_u32 s{sPZ}, s{sPZ}, {WS_PART}
        s_lshl_b32 s{st0}, s{sW}, 11
        s_sub_u32 s{sPZ}, s{sPZ}, s{st0}
        v_bfe_u32 v{t0}, v{vLane}, 4, 1
        v_and_b32 v{t1}, 3, v{vLane}
        s_and_b32 s3, s{sRK}, 6
        v_add_u32 v{t2}, s3, v{t0}
        v_lshlrev_b32 v{t2}, 10, v{t2}
        v_lshl_add_u32 v{t2}, v{t1}, 2, v{t2}
        s_lshr_b32 s{st0}, s{sRK}, 3
        s_lshl_b32 s{sX0}, s{st0}, 8
        s_lshl_b32 s{sX1}, s{sW}, 6
        s_add_u32 s{sX0}, s{sX0}, s{sX1}
        s_and_b32 s{sX2}, s{sRK}, 1
        s_lshl_b32 s{sX1}, s{sX2}, 4
        s_add_u32 s{sX0}, s{sX0}, s{sX1}
        v_add_u32 v{t2}, s{sX0}, v{t2}""")
        for i, o in enumerate((0, 32, 2, 34)): A(f"global_load_ushort v{8 + i}, v{t2}, s[{pMEM0}:{pMEM0 + 1}] offset:{o}")
    def startup2():
        A(f"s_and_b32 s3, s{sRK}, 6\ns_lshr_b32 s{st0}, s{sRK}, 3\nv_bfe_u32 v{t0}, v{vLane}, 4, 1\nv_and_b32 v{t1}, 3, v{vLane}")
        for sl in range(3):
            A(f"s_add_u32 s{sX1}, s{sPZ}, {sl * 8192 * 40}")
            for i in range(2): A(f"buffer_store_dwordx4 {v(0, 4)}, v{vWl0}, {S4(rWS)}, s{sX1} offen offset:{i * 1024}")
        A(f"""s_lshl_b32 s{sX0}, s{sW}, 1
        s_lshr_b32 s{sX1}, s{st0}, 1
        s_add_u32 s{sX0}, s{sX0}, s{sX1}
        s_lshl_b32 s{sX0}, s{sX0}, 2
        s_and_b32 s{st0}, s{st0}, 1
        s_lshl_b32 s{st0}, s{st0}, 1
        s_add_u32 s{sX0}, s{sX0}, s{st0}
        s_add_u32 s{sX0}, s{sX0}, s{sX2}
        s_lshl_b32 s{sX0}, s{sX0}, 8
        s_lshl_b32 s3, s3, 5
        s_add_u32 s{sX0}, s{sX0}, s3
        v_lshlrev_b32 v{vMemSt}, 4, v{t0}
        v_lshrrev_b32 v{t0}, 1, v{t1}
        v_lshl_or_b32 v{vMemSt}, v{t0}, 5, v{vMemSt}
        v_and_b32 v{t0}, 1, v{t1}
        v_lshl_or_b32 v{vMemSt}, v{t0}, 3, v{vMemSt}
        v_add_u32 v{vMemSt}, s{sX0}, v{vMemSt}
        s_mov_b32 s{st0}, {WS_MEM}
        v_lshl_or_b32 v8, v9, 16, v8
        v_lshl_or_b32 v9, v11, 16, v10
        v_min_u32 v8, -2, v8
        v_min_u32 v9, -2, v9
        s_mov_b64 exec, {PUBX}
        buffer_store_dwordx2 v[8:9], v{vMemSt}, {S4(rWS)}, s{st0} offen
        s_add_u32 s{st0}, s{st0}, 8192
        buffer_store_dwordx2 v[0:1], v{vMemSt}, {S4(rWS)}, s{st0} offen
        s_add_u32 s{st0}, s{st0}, 8192
        buffer_store_dwordx2 v[0:1], v{vMemSt}, {S4(rWS)}, s{st0} offen
        s_mov_b64 exec, -1""")
    startup()
    chunks = []
    def two(d0, d1):
        def ex(A, base):
            A(f"v_add_u32 v{t0}, {base}, v{vT0}\nv_xor_b32 v{t1}, 32, v{t0}")
            tr_tile(A, d0[0], d0[1], t0); tr_tile(A, d1[0], d1[1], t1)
        return ex
    def cha(r, p, ex):
        base = (256 * (p & 1) + 32 * (p >> 1)) * 8192
        chunks.append(dict(srd=r, voff=vOffA, sbase=sKVS, offs=[base + (128 * (i >> 1) + 8 * (i & 1)) * 8192 for i in range(4)], extract=ex, pf=(vPF, base)))
    for u in range(2):
        for k in range(4):
            def ex(A, base, u=u, k=k):
                l = A.lab()
                A(f"s_cmp_lg_u32 s{sW}, s{sMSK + 4 + k}\ns_cbranch_scc1 {l}\nv_add_u32 v{t0}, {base}, v{vT}")
                for t in range(8):
                    A(f"v_xor_b32 v{t1}, {32 * t}, v{t0}")
                    tr_tile(A, WO(t, u)[0], WO(t, u)[1], t1)
                A(f"{l}:")
            chunks.append(dict(srd=rD, voff=vOffO, sbase=sMSK + k, offs=[(64 * u + 4 * i) * 1024 for i in range(4)], extract=ex))
    for p in range(8): cha(rA, p, two(WQ(p, 0), WQ(p, 1)))
    for p in range(0, 8, 2): cha(rB, p, two(WK(p, 0), WK(p, 1)))
    for p in range(8): cha(rC, p, two(WV(p, 0), WV(p, 1)))
    for i, ch in enumerate(chunks):
        if ("o" in cfg["NT"] and i < 8) or ("Q" in cfg["NT"] and 8 <= i < 16): ch["nt"] = "nt"
    if cfg["CH_MIX"] == 3: chunks[:] = chunks[16:] + chunks[:16]
    if cfg["CH_MIX"] == 4: chunks[:] = chunks[16:] + chunks[8:16] + chunks[:8]
    if cfg["CH_MIX"] == 2: chunks[:] = chunks[8:] + chunks[:8]
    if cfg["CH_MIX"] == 1:
        wo, rest = chunks[:8], chunks[8:]
        chunks[:] = sum(([wo[i]] + rest[(5 * i) // 2:(5 * i + 5) // 2] for i in range(8)), [])
        assert len(chunks) == 28
    def inplace(A, base):
        two(("v", 0), ("v", 8))(A, base)
        A(f"v_add_u32 v{t0}, {base}, v{vWl0}\ns_waitcnt lgkmcnt(0)\ns_barrier")
        for i in range(4): A(f"ds_write_b128 v{t0}, {v(4 * i, 4)} offset:{1024 * i}")
    for p in range(1, 8, 2): cha(rB, p, inplace)

    def prog_addr(seg):
        A(f"s_lshl_b32 s{sPG}, s{sRK}, 7\ns_add_u32 s{sPG}, s{sPG}, {WS_PROG + (seg % NKV) * 4096}\ns_mov_b32 s{sNEED}, {seg // NKV + 1}")
    prog_ld = lambda r: f"buffer_load_dword v{r}, v{vZ}, {S4(rWS)}, s{sPG} offen sc1"
    def prog_spin():
        l, l2 = A.lab(), A.lab()
        spin_init(A)
        A(f"{l}:\nv_readfirstlane_b32 s{st0}, v{vProg}\ns_cmp_ge_u32 s{st0}, s{sNEED}\ns_cbranch_scc1 {l2}\n" + prog_ld(vProg))
        spin_step(A)
        A(f"s_waitcnt vmcnt(0)\ns_branch {l}\n{l2}:")
    def done_probe():
        if cfg["TLB"]: A(f"v_lshlrev_b32 v19, 21, v{vLane}\nbuffer_load_dword v19, v19, {S4(rWS)}, 0 offen")
        A(f"v_mov_b32 v{vZ}, 0\nv_mov_b32 v16, {DBG_DONE}\n" + ("v_mov_b32 v17, 256" if cfg.get("NOSIG") else f"global_load_dword v17, v16, s[{pDBG}:{pDBG + 1}] sc1"))
    def first_probe():
        l = A.lab()
        A(f"v_readfirstlane_b32 s{st0}, v17\ns_cmp_ge_u32 s{st0}, 256\ns_cbranch_scc1 {l}")
        wait_done(A, 16, 17, st0)
        A(f"{l}:")
        prog_addr(1); A(prog_ld(18)); prog_addr(0); A(prog_ld(vProg))
    def first_kv():
        prog_spin()
        A(f"""s_lshl_b32 s{sKVS}, s{sRK}, 14
        s_add_u32 s{sKVS}, s{sKVS}, {WS_KV}
        s_lshl_b32 s{sKVL}, s{sW}, 12
        s_add_u32 s{sKVL}, s{sKVL}, {L_KV}
        s_mov_b32 m0, s{sKVL}""")
        A(f"v_mov_b32 v{vProg}, v18")
        for i in range(4): A(f"buffer_load_dwordx4 v{vWl0}, {S4(rWS)}, s{sKVS} offen offset:{1024 * i} sc1 lds")
    slots = None
    if cfg["KFIRST"]:
        chunks[:] = chunks[28:] + chunks[:28]
        ring = [6, 9, 7, 8, 4, 5]
        slots = [0, 1, 2, 3] + [ring[(c - 26) % 6] for c in range(28)]
        assert cfg["CH_DEPTH"] <= 5
    load_chunks(A, chunks, 10, cfg["CH_DEPTH"], 2, st0, st1, nt='nt' if 'c' in cfg['NT'] else '', slots=slots, hooks={0: startup2, max(cfg["CH_DEPTH"], cfg.get("SIG", 0)): lambda: None if cfg.get("NOSIG") else signal_done(A, t0, t1), 31: first_kv,
                       **({cfg['GATE']: lambda: signal_done(A, t0, t1, DBG_CH)} if cfg['GATE'] else {}),
                       },
                pfd=cfg["CH_PF"], vdummy=vDum, pre={30 - cfg['CH_DEPTH']: done_probe, 31: first_probe,
                     **{c: (lambda i=i: timeline(A, cfg, 4 + i, t0)) for i, c in enumerate(cfg.get('TLC', ()))}})
    if cfg["KFIRST"]: A("s_barrier")
    for i in range(12): A(f"ds_write_b128 v{vWl1}, {v(32 + 4 * i, 4)} offset:{1024 * i}")
    timeline(A, cfg, 1, t0)
    if cfg["PROF"] == -1:
        A(f"s_or_b32 s3, s{sRK}, s{sW}\ns_cmp_lg_u32 s3, 0\ns_cbranch_scc1 L_dg1\nv_mov_b32 v{t0}, s98\ns_mov_b64 exec, 1\nglobal_store_dword v{vZ}, v{t0}, s[{pDBG}:{pDBG + 1}] offset:4 sc1\ns_mov_b64 exec, -1\nL_dg1:")
    if "chain" not in cfg["ENABLE"]:
        A("s_endpgm"); return
    for i in range(8): A(f"s_mov_b32 s{sMSK + i}, {0x11111111 << (i >> 1):#x}")
    A(f"""v_and_b32 v{t0}, 15, v{vLane}
    v_lshrrev_b32 v{t1}, 4, v{vLane}
    v_mov_b32 v{vIdx}, 0x4444
    v_mov_b32 v{t2}, 0xeeee
    s_mov_b32 vcc_lo, 0xcccccccc
    s_mov_b32 vcc_hi, 0xcccccccc
    v_cndmask_b32 v{vIdx}, v{vIdx}, v{t2}, vcc
    v_mov_b32 v{vSel}, 0x3f80
    v_mov_b32 v{t2}, 1.0
    s_mov_b32 vcc_lo, 0xf0f0f0f0
    s_mov_b32 vcc_hi, 0xf0f0f0f0
    v_cndmask_b32 v{vSel}, v{vSel}, v{t2}, vcc
    s_mov_b32 s{sONE}, 0x3f803f80
    s_mov_b32 s{sONE + 1}, 0x3f803f80
    s_mov_b32 s{sC}, {C_SCALE:#x}
    s_mov_b32 s{sC2}, {C_SCALE:#x}
    s_mov_b32 s{sLIM}, 0x427af233
    s_mov_b32 s{sC2 + 1}, {C_SCALE:#x}
    v_mov_b32 v{vZ + 1}, 0
    v_lshrrev_b32 v27, 2, v{t0}
    v_and_b32 v28, 1, v{t0}
    v_lshl_or_b32 v27, v27, 1, v28
    v_bfe_u32 v28, v{t0}, 1, 1
    v_lshlrev_b32 v{vMr}, 4, v{vLane}
    v_add_u32 v{vKr}, {L_KV}, v{vMr}
    v_add_u32 v{vVr}, {L_KV}, v{vWl0}
    v_add_u32 v{vMr}, {L_M}, v{vMr}
    s_lshl_b32 s{st0}, s{sW}, 11
    v_add_u32 v{vMw}, s{st0}, v{vMr}
    s_add_u32 s{cMD}, s{st0}, {L_M}
    s_sub_u32 s{cME}, {WS_MEM}, s{st0}
    s_mov_b32 s{sME}, s{cME}
    s_lshl_b32 s{st0}, s{sW}, 10
    s_add_u32 s{cMC}, s{st0}, {L_M + 4096}
    s_mul_i32 s{st0}, s{sW}, 3072
    s_sub_u32 s{cML}, {WS_MEM + 4096}, s{st0}
    s_mov_b32 s{sML}, s{cML}
    s_lshl_b32 s{st0}, s{sW}, 10
    s_add_u32 s{st0}, s{st0}, {L_Q}
    v_lshlrev_b32 v{t2}, 2, v{t0}
    v_lshl_or_b32 v{t2}, v{t1}, 7, v{t2}
    v_add_u32 v{vQw}, s{st0}, v{t2}
    v_lshrrev_b32 v{t2}, 3, v{t0}
    v_lshl_or_b32 v{t2}, v{t1}, 1, v{t2}
    s_lshl_b32 s{st0}, s{sW}, 3
    v_add_u32 v{t2}, s{st0}, v{t2}
    v_and_b32 v29, 7, v{t0}
    v_lshlrev_b32 v29, 3, v29
    v_mul_u32_u24 v{t2}, {RS}, v{t2}
    v_add_u32 v{vPartSt}, v{t2}, v29
    v_lshlrev_b32 v{t2}, 4, v{t1}
    v_lshl_or_b32 v{t2}, v27, 6, v{t2}
    v_add_u32 v{vQr}, {L_Q}, v{t2}
    v_lshlrev_b32 v{t2}, 4, v27
    v_lshl_or_b32 v{t2}, v{t1}, 8, v{t2}
    s_lshr_b32 s{st0}, s{sW}, 1
    s_lshl_b32 s{st0}, s{st0}, 10
    s_and_b32 s{st1}, s{sW}, 1
    s_lshl_b32 s{st1}, s{st1}, 7
    s_add_u32 s{st0}, s{st0}, s{st1}
    s_add_u32 s{st0}, s{st0}, {L_O}
    v_add_u32 v{vOw}, s{st0}, v{t2}
    v_lshl_or_b32 v{t2}, v28, 7, v{t2}
    v_add_u32 v{vOr}, {L_O}, v{t2}
    s_mul_i32 s{st0}, s{sW}, 3072
    s_lshl_b32 s{sKM}, s{sRK}, 12
    s_add_u32 s{sKM}, s{sKM}, {WS_KM}
    s_sub_u32 s{sKM}, s{sKM}, s{st0}
    s_lshl_b32 s{cPW}, s{sRK}, 6
    s_add_u32 s{cPW}, s{cPW}, {WS_PART}
    s_mov_b32 s{cPZ}, s{sPZ}
    s_mov_b32 s{sKP}, {WS_SIZE}
    s_mov_b32 s{sSTEP}, 0
    s_mov_b32 s{sX0}, 0
    s_mov_b32 s{sX1}, 8192
    s_mov_b32 s{sX2}, 16384
    s_cmp_lt_u32 s{sW}, {cfg['PRE']}
    s_cselect_b64 s[{sPX}:{sPX + 1}], -1, 0""")
    prog_addr(1); prog_spin()
    if PROF: A(f"s_mov_b32 s{sTS + 23}, 0\ns_mov_b32 s{sTS + 22}, 0\ns_mov_b32 s2, 0")

    def lw(j, half):
        return f"ds_read_b128 {v(G + 8 * (j % 4) + 4 * half, 4)}, v{vWl0} offset:{(j // 2) * 16384 + (j & 1) * 2048 + half * 1024}"
    def zero_acc():
        for i in range(QA, VA + 8, 2): A(f"v_mov_b64 {v(i, 2)}, 0")
    def preload():
        for j in range(4):
            for hf in range(2): A(lw(j, hf))
    sc_part = [f"s_mul_i32 s{st0}, s{sX0}, 40", f"s_add_u32 s{sPW}, s{st0}, s{cPW}", f"s_add_u32 s{sWO}, s{sPW}, 4096",
               f"s_add_u32 s{sPR}, s{st0}, s{cPZ}", f"s_mul_i32 s{st0}, s{sX2}, 40", f"s_add_u32 s{sPZ}, s{st0}, s{cPZ}",
               f"s_add_u32 s{sMN}, s{sX1}, {WS_MEM}", f"s_add_u32 s{sMZ}, s{sX0}, {WS_MEM}"] + \
              ([f"s_xor_b32 s{sPG}, s{sPG}, 4096", f"s_lshr_b32 s{sNEED}, s{sSTEP}, 1", f"s_add_u32 s{sNEED}, s{sNEED}, 2"] if NKV == 2 else
               [f"s_add_u32 s{sNEED}, s{sSTEP}, 3"]) + \
              [f"s_cmp_gt_u32 s{sSTEP}, {NSEG - 3}\ns_cselect_b32 s{sNEED}, 0, s{sNEED}"]
    sc_next = [f"s_add_u32 s{sME}, s{sX1}, s{cME}", f"s_add_u32 s{sML}, s{sX1}, s{cML}",
               f"s_mov_b32 s{st0}, s{sX0}", f"s_mov_b32 s{sX0}, s{sX1}", f"s_mov_b32 s{sX1}, s{sX2}", f"s_mov_b32 s{sX2}, s{st0}",
               f"s_add_u32 s{sSTEP}, s{sSTEP}, 1"] + \
              [f"s_mov_b32 s{sKP}, s{sKM}", f"s_add_u32 s{sKM}, s{sKM}, {32 * 4096}"]
    sq = []
    def sal(n):
        for _ in range(n):
            if sq: A(sq.pop(0))
    SEL, RA, RD, ES = M, M + 4, M + 16, M + 24
    A("s_waitcnt lgkmcnt(0)")
    zero_acc(); preload()
    fill_ones(A, ES, 8)
    timeline(A, cfg, 2, vT)
    A(f"s_mov_b32 s{sMN}, {WS_SIZE}\ns_mov_b32 s{sMZ}, {WS_SIZE}")
    for w in range(3): A(f"s_cmp_eq_u32 s{sW}, {w}\ns_cbranch_scc1 L_fetch{w}")
    A("s_branch L_fetch3")

    stubs = []
    def step(w):
        eld = "\n".join(f"buffer_load_dwordx4 {v(ES + 4 * i, 4)}, v{vWl0}, {S4(rWS)}, s{sME} offen offset:{1024 * i} sc1" for i in range(2))
        lld = eld + "\n" + "\n".join(f"buffer_load_dwordx4 v{vWl0}, {S4(rWS)}, s{sME} offen offset:{1024 * i} sc1 lds" for i in range(2))
        LB = cfg["LATEPUB"]
        CR, CN = (ES + 4, 4) if LB else (ES, 8)
        if LB:
            cld = [f"buffer_load_dwordx4 {v(CR, 4)}, v{vWl0}, {S4(rWS)}, s{sML} offen sc1", f"buffer_load_dwordx4 v{vWl0}, {S4(rWS)}, s{sML} offen sc1 lds"]
            lld = "\n".join(cld)
        pub = f"""s_mov_b64 exec, {PUBX}
        buffer_store_dwordx2 {v(RA, 2)}, v{vMemSt}, {S4(rWS)}, s{sMN} offen
        buffer_store_dwordx2 {v(ES, 2)}, v{vMemSt}, {S4(rWS)}, s{sMZ} offen
        s_mov_b64 exec, -1"""
        ewr = f"ds_write_b128 v{vMw}, {v(ES, 4)}\nds_write_b128 v{vMw}, {v(ES + 4, 4)} offset:1024"
        masked = lambda x: "s_mov_b64 exec, vcc\n" + x + "\ns_mov_b64 exec, -1"
        def mx(b, n): return [f"v_max3_u32 v{vT}, v{vT if i else b}, v{b + i}, v{b + i + 1}" for i in range(0, n, 2)]
        CMP = f"v_cmp_eq_u32 vcc, -1, v{vT}"
        dmakv = lambda i: f"buffer_load_dwordx4 v{vWl0}, {S4(rWS)}, s{sKVS} offen offset:{1024 * i} {cfg['KVLD']} lds" if not cfg.get("NODMA") else "s_nop 0"
        kmst = f"buffer_store_dwordx4 {v(KMQ, 4)}, v{vWl0}, {S4(rWS)}, s{sKM} offen sc1"
        A(f"L_ch_km{w}:\n{kmst}\ns_cmp_lt_u32 s{sSTEP}, {cfg.get('LAST', NSEG - 1)}\ns_cbranch_scc1 L_ch_kmb{w}\ns_branch L_ch_exit")
        if w >= 2 or LB:
            A(f"L_lr{w}:\ns_mov_b32 m0, s{cMC if LB else cMD}")
            if cfg["PROF"] == -1: A(f"v_mov_b32 v{vT}, 1\ns_mov_b64 exec, 1\nglobal_atomic_add v{vZ}, v{vT}, s[{pDBG}:{pDBG + 1}] offset:80 sc1\ns_mov_b64 exec, -1")
            spin_init(A)
            A(f"L_lr1{w}:")
            if PROF: A(f"s_add_u32 s{sTS + 22}, s{sTS + 22}, 1")
            A(lld); spin_step(A)
            A("s_waitcnt vmcnt(0)")
            for x in mx(CR, CN) + [CMP]: A(x)
            A(f"s_cbranch_vccnz L_lr1{w}\ns_mov_b32 m0, s{sKVL}\ns_branch L_lk{w}")
        A(f".p2align {cfg['ALIGN']}\nL_fetch{w}:")
        if w >= 2:
            A(f"s_mov_b32 m0, s{cMD}")
            stamp(10)
            A("s_barrier\n" + (pub if LB else lld))
        else:
            spin_init(A)
            for i, d in enumerate(cfg["FD"]):
                if i: A(eld)
                delay(d)
            A(f"s_mov_b64 vcc, -1\nL_er{w}:\n" + masked(eld))
            if PROF: A("s_add_u32 s2, s2, 1")
            spin_step(A)
            A(f"s_waitcnt vmcnt({2 * (len(cfg['FD']) - 1)})")
            for x in mx(ES, 8) + [CMP]: A(x)
            A(f"s_cbranch_vccnz L_er{w}")
            A(ewr)
            stamp(10)
            if cfg["PROF"] == -1 and w == 0:
                A(f"s_cmp_lg_u32 s{sSTEP}, 1\ns_cbranch_scc1 L_dg2"); timeline(A, cfg, 9, vT); A("L_dg2:")
            A("s_barrier")
        L = Cnt(A, "lgkmcnt")
        def mrd(p): L.op(f"ds_read_b128 {v(M + 4 * p, 4)}, v{vMr} offset:{1024 * p}", ("m", p))
        def lwr(j, hf): L.op(lw(j, hf), ("w", j))
        def kfr(kf): L.op(f"ds_read_b128 {v(M + 4 * kf, 4)}, v{vKr} offset:{(kf >> 1) * 4096 + 2048 + (kf & 1) * 1024}", ("K", kf))
        def frag(k, t):
            if k == "K": kfr(t)
            elif k == "V": L.op(f"ds_read_b128 {v(G + 4 * t, 4)}, v{vVr} offset:{1024 * t}", ("V", t))
            else: L.op(f"ds_read_b128 {v(G + 8 * t + (4 if k == 'k' else 0), 4)}, v{vQr} offset:{t * 1024 + (512 if k == 'k' else 0)}", (k, t))
        A("s_waitcnt lgkmcnt(0)\ns_barrier")
        stamp(0)
        for p in range(4): mrd(p)
        for i in range(cfg["PH"][0]): A("s_nop 0")
        A(f"s_add_u32 s{sKVS}, s{sKVS}, {32 * 16384}\ns_xor_b32 s{sKVL}, s{sKVL}, 0x3c000\ns_mov_b32 m0, s{cMC if LB else sKVL}")
        sq.extend(sc_part); sal(2)
        L.wait(("m", 0))
        stamp(1)
        NV = cfg["NVF"]
        qk = lambda p: [(QA, p, W8(WQ(p, 0))), (QA + 4, p, W8(WQ(p, 1)))] + \
                       [(QA + 8 + 4 * b, p, W8(WK(p, b)) if p % 2 == 0 else v(G + 8 * ((p - 1 + b) % 4), 8)) for b in range(2)]
        vv = lambda p: [(VA + 4 * b, p, W8(WV(p, b))) for b in range(2)]
        seq = sum((qk(p) for p in range(4)), []) + sum((vv(p) for p in range(NV)), []) + sum((qk(p) for p in range(4, 8)), [])
        H = 16 + 2 * NV
        gap = {}; val = {}
        def at(k, fn): gap.setdefault(k, []).append(fn)
        for k, (j, hf) in zip((6, 8, 9, 10), ((4, 0), (4, 1), (5, 0), (5, 1))): at(k, lambda j=j, hf=hf: lwr(j, hf))
        LP = cfg["LP"]
        VS = {n: g[w] for n, g in cfg["VS4"].items() if g[w] is not None}
        NEG = KMQ
        vop = {"km": kmst.replace(f"s{sKM} ", f"s{sKP} "), "pg": prog_ld(vProg)}
        for i in range(4): vop[f"d{i}"] = dmakv(i)
        for i in range(2): vop[f"r{i}"] = f"buffer_store_dwordx4 {v(NEG, 4)}, v{vWl0}, {S4(rWS)}, s{sPZ} offen offset:{1024 * i}"
        def vslot(k): pass
        at(LP, lambda: A(f"s_waitcnt vmcnt({sum(x < LP for x in VS.values())})"))
        for n in VS: at(VS[n], lambda n=n: A(vop[n]))
        assert VS["km"] + 3 <= VS["r0"] < VS["r1"] < len(seq)
        for i in range(2): val.setdefault(VS["km"] + 1 + i, []).append(f"v_mov_b64 {v(NEG + 2 * i, 2)}, -1")
        if LB:
            CS = cfg["CS4"][w]
            assert CS + 1 < min(VS.values())
            at(CS, lambda: A(cld[0])); at(CS + 1, lambda: A(cld[1] + f"\ns_mov_b32 m0, s{sKVL}"))
        if w >= 2 or LB:
            for i, x in enumerate(mx(CR, CN) + [CMP]): val.setdefault(LP + (i if LB else (i + 1) // 2), []).append(x)
            at(LP + 4, lambda: A(f"s_cbranch_vccnz L_lr{w}\nL_lk{w}:\ns_barrier"))
        else: at(LP + 4, lambda: A("s_barrier"))
        for i in range(4): at(LP + 4 + (i if i < 2 else 2 * i), lambda i=i: mrd(4 + i))
        for k, (j, hf) in zip((H + 1, H + 2, H + 5, H + 6), ((6, 0), (6, 1), (7, 0), (7, 1))): at(k, lambda j=j, hf=hf: lwr(j, hf))
        at(H + 5, lambda: L.wait(("w", 5))); at(H + 13, lambda: L.wait(("w", 7)))
        for i in range(NV): at(H + 9 + 2 * i, lambda i=i: kfr(i))
        for k, (acc, p, wop) in enumerate(seq):
            A(f"{SMF} {v(acc, 4)}, {v(M + 4 * p, 4)}, {wop}, v{vIdx}")
            g = gap.get(k, [])
            for fn in g: fn()
            n = len(g)
            if k + 1 < len(seq) and seq[k + 1][0] == QA: L.wait(("m", seq[k + 1][1])); n += 1
            if cfg.get("QS") and k in cfg["QS"]: stamp(4 + cfg["QS"].index(k), True)
            sal((2 if k in val else 3) - n)
            for x in val.get(k, []): A(x)
        assert not sq
        stamp(2)
        qd = G + 16
        def addh(d): return [f"v_add_f32 v{d}, v{d}, v{d + 2}", f"v_add_f32 v{d + 1}, v{d + 1}, v{d + 3}"]
        for x in addh(QA) + addh(QA + 4): A(x)
        A(f"v_cvt_pk_bf16_f32 v{qd}, v{QA}, v{QA + 4}\nv_cvt_pk_bf16_f32 v{qd + 1}, v{QA + 1}, v{QA + 5}")
        L.op(f"ds_write2_b32 v{vQw}, v{qd}, v{qd + 1} offset1:16")
        for x in addh(QA + 8) + addh(QA + 12): A(x)
        A(f"v_cvt_pk_bf16_f32 v{KMQ}, v{QA + 8}, v{QA + 12}\nv_cvt_pk_bf16_f32 v{KMQ + 1}, v{QA + 9}, v{QA + 13}")
        L.op(f"ds_write2_b32 v{vQw}, v{KMQ}, v{KMQ + 1} offset0:128 offset1:144", "wk")
        if cfg.get("QS") and 99 in cfg["QS"]: stamp(4 + cfg["QS"].index(99), True)
        rq = [("q", 0), ("k", 0), ("q", 1), ("k", 1), ("K", 4), ("q", 2), ("K", 5), ("k", 2), ("K", 6), ("q", 3), ("K", 7), ("k", 3), ("V", 0), ("V", 1)]
        rest = sum((vv(p) for p in range(NV, 8)), [])
        EB = cfg["EB"]
        for e, (acc, p, wop) in enumerate(rest):
            A(f"{SMF} {v(acc, 4)}, {v(M + 4 * p, 4)}, {wop}, v{vIdx}")
            if (e & 1) and p < 4: kfr(p)
            if e == EB: L.wait("wk"); A("s_barrier")
            if e > EB and rq and (rq[0][0] != "K" or rq[0][1] < p + (e & 1)): frag(*rq.pop(0))
            vslot(100 + e)
            if cfg.get("QS") and 100 + e in cfg["QS"]: stamp(4 + cfg["QS"].index(100 + e), True)
        stamp(3)
        Sm, S0, S1 = QA, QA + 4, QA + 8
        vq = addh(VA) + addh(VA + 4) + [f"v_cvt_pk_bf16_f32 v{KMQ + 2}, v{VA}, v{VA + 1}", f"v_cvt_pk_bf16_f32 v{KMQ + 3}, v{VA + 4}, v{VA + 5}"]
        zq = [f"v_mov_b64 {v(M + i, 2)}, 0" for i in range(0, 32, 2)]
        def z(n):
            for _ in range(n):
                if zq: A(zq.pop(0))
        for t in range(4):
            need = [("q", t), ("k", t), ("K", 2 * t), ("K", 2 * t + 1)]
            while any(x not in L.tags for x in need): frag(*rq.pop(0))
            L.wait(min((L.need(x), x) for x in need)[1])
            for i, (d, a_) in enumerate(((S0, M + 8 * t), (S1, M + 8 * t + 4), (Sm, G + 8 * t + 4))):
                A(f"{MF} {v(d, 4)}, {v(a_, 4)}, {v(G + 8 * t, 4)}, {v(d, 4) if t else 0}")
                e = 3 * t + i
                if rq and (rq[0][0] != "V" or e >= 2): frag(*rq.pop(0))
                if 2 <= e <= 4: A(vq[2 * (e - 2)] + "\n" + vq[2 * (e - 2) + 1])
                if e == 4: A(f"s_cmp_ge_u32 s{sSTEP}, {min(cfg['KEARLY'], cfg.get('LAST', NSEG - 1))}")
                if e == 5 and not cfg.get("XL"): A(f"s_cbranch_scc1 L_ch_km{w}\nL_ch_kmb{w}:")
                if e == 5 and cfg.get("XL"): A(f"L_ch_kmb{w}:")
                vslot(200 + e)
                if e == 7: A(f"v_mov_b64 {v(G + 8, 2)}, s[{sONE}:{sONE + 1}]\nv_mov_b64 {v(G + 10, 2)}, s[{sONE}:{sONE + 1}]")
                if e >= 8: z(2)
        assert not rq
        stamp(4)
        if cfg.get("XL"): A(f"s_cmp_eq_u32 s{sSTEP}, {NSEG - 1}\ns_cbranch_scc1 L_ch_exit")
        m1, m2, m3, tt = G + 28, G + 29, G + 30, G + 31
        src = [Sm, Sm + 1] + [S0 + i for i in range(8)]
        sv = src
        P = G + 12
        O0, O1, SU = G + 16, G + 20, G + 24
        scale = [f"v_pk_mul_f32 {v(sv[i], 2)}, {v(src[i], 2)}, s[{sC2}:{sC2 + 1}]" for i in (2, 4, 6, 8, 0)]
        def true_max(fill):
            A(f"""v_max3_f32 v{m1}, v{sv[2]}, v{sv[3]}, v{sv[4]}
            v_max3_f32 v{m2}, v{sv[5]}, v{sv[6]}, v{sv[7]}
            v_max3_f32 v{m3}, v{sv[8]}, v{sv[9]}, v{m1}
            v_max3_f32 v{m1}, v{sv[0]}, v{sv[1]}, v{m2}
            v_max_f32 v{m2}, v{m1}, v{m3}
            v_max_f32 v{tt}, v{m1}, v{m3}""")
            z(fill)
            A(f"v_permlane16_swap_b32 v{m2}, v{tt}\nv_max_f32 v{m1}, v{m2}, v{tt}\nv_max_f32 v{m3}, v{m2}, v{tt}")
            z(fill)
            A(f"v_permlane32_swap_b32 v{m1}, v{m3}\nv_max_f32 v{m1}, v{m1}, v{m3}")
            for i in range(0, 10, 2): A(f"v_pk_add_f32 {v(sv[i], 2)}, {v(sv[i], 2)}, {v(m1, 2)} op_sel_hi:[1,0] neg_lo:[0,1] neg_hi:[0,1]")
        z(1)
        if cfg["NOMAX"]:
            A(f"""v_max3_f32 v{m1}, |v{S0}|, |v{S0 + 1}|, |v{S0 + 2}|
            v_max3_f32 v{m2}, |v{S0 + 3}|, |v{S1}|, |v{S1 + 1}|
            v_max3_f32 v{m3}, |v{S1 + 2}|, |v{S1 + 3}|, v{m1}
            v_max3_f32 v{m1}, |v{Sm}|, |v{Sm + 1}|, v{m2}
            v_max_f32 v{m1}, v{m1}, v{m3}
            v_cmp_nge_f32 vcc, s{sLIM}, v{m1}""")
            for x in scale: A(x)
            A(f"s_cbranch_vccnz L_mx{w}\nL_mxb{w}:")
            def stub():
                A(f"L_mx{w}:"); true_max(0); A(f"s_branch L_mxb{w}")
            stubs.append(stub)
        else:
            for x in scale: A(x)
            true_max(2)
        for i in range(10):
            A(f"v_exp_f32 v{sv[i]}, v{sv[i]}")
            if i == 2: A(f"v_cvt_pk_bf16_f32 v{PM}, v{sv[0]}, v{sv[1]}\nv_cvt_pk_bf16_f32 v{PM + 3}, v{sv[0]}, v{sv[1]}")
            if i in (4, 6, 8): A(f"v_cvt_pk_bf16_f32 v{P + (i - 4) // 2}, v{sv[i - 2]}, v{sv[i - 1]}")
            if i == 3: A(f"{MF16} {v(SU, 4)}, {v(G + 8, 2)}, {v(PM, 2)}, 0")
            if i == 5: A(f"{MF16} {v(O0, 4)}, {v(KMQ + 2, 2)}, {v(PM, 2)}, 0")
            if i == 7: A(f"{MF16} {v(O1, 4)}, {v(KMQ + 2, 2)}, {v(PM + 2, 2)}, 0")
        L.wait(("V", 1))
        A(f"v_cvt_pk_bf16_f32 v{P + 3}, v{sv[8]}, v{sv[9]}")
        stamp(5)
        z(2)
        A(f"{MF} {v(SU, 4)}, {v(G + 8, 4)}, {v(P, 4)}, {v(SU, 4)}"); z(2)
        A(f"{MF} {v(O0, 4)}, {v(G, 4)}, {v(P, 4)}, {v(O0, 4)}"); z(2)
        A(f"{MF} {v(O1, 4)}, {v(G + 4, 4)}, {v(P, 4)}, {v(O1, 4)}"); z(2)
        ost = lambda k: (VA, G, QA + 8, G + 24, G + 8, VA)[k]
        def owr(k, hf): L.op(f"ds_read_b128 {v(ost(k) + 4 * hf, 4)}, v{vWl1} offset:{k * 2048 + hf * 1024}", ("ow", k))
        owr(0, 0)
        A(f"v_rcp_f32 v{SU}, v{SU}")
        owr(0, 1)
        for o in (O0, O1):
            for i in range(4): A(f"v_mul_f32 v{o + i}, v{o + i}, v{SU}")
            for i in range(2): A(f"v_cvt_pk_bf16_f32 v{P + (o - O0) // 2 + i}, v{o + 2 * i}, v{o + 2 * i + 1}")
        assert not zq
        L.op(f"ds_write_b128 v{vOw}, {v(P, 4)}", "ow")
        owr(1, 0); owr(1, 1)
        for i in range(8 * cfg["PH"][1]): A("s_nop 0")
        L.wait("ow"); A("s_barrier")
        L.op(f"ds_read_b128 {v(QA, 4)}, v{vOr}", "o0"); L.op(f"ds_read_b128 {v(QA + 4, 4)}, v{vOr} offset:1024", "o1")
        stamp(6)
        L.wait("o0")
        OQ = G + 16
        tile = lambda t: addh(M + 4 * t) + [f"v_cvt_pk_bf16_f32 v{OQ + t}, v{M + 4 * t}, v{M + 4 * t + 1}"]
        def pstore(p): A(f"buffer_store_dwordx2 {v(OQ + 2 * p, 2)}, v{vPartSt}, {S4(rWS)}, s{sPW if p < 2 else sWO} offen offset:{2048 * (p & 1)}")
        rl = "\n".join(f"buffer_load_dwordx4 {v(RD + 4 * i, 4)}, v{vWl0}, {S4(rWS)}, s{sPR} offen offset:{1024 * i} sc1" for i in range(2))
        sq.extend(sc_next)
        for e in range(16):
            t, u = e >> 1, e & 1
            A(f"{SMF} {v(M + 4 * t, 4)}, {v(QA + 4 * u, 4)}, {W8(WO(t, u)) if t < 5 else v(ost(e - 10), 8)}, v{vIdx}")
            if e == 0: L.wait("o1")
            if e < 6: owr(2 + e // 2, e & 1)
            if e == 10: owr(5, 0); owr(5, 1)
            if e == 9: L.wait(("ow", 4))
            if e == 14: L.wait(("ow", 5))
            if e in (7, 11, 15): pstore((e - 7) // 4)
            if cfg.get("WS") and e in cfg["WS"]: stamp(cfg["WS"].index(e), True)
            if e >= 1: sal(1)
            if e in (1, 2): A(f"v_xor_b32 v{vKr if e == 1 else vVr}, 0x3c000, v{vKr if e == 1 else vVr}")
            if e >= 3 and (e & 1): A(tile((e - 3) // 2)[0] + "\n" + tile((e - 3) // 2)[1])
            if e >= 4 and not (e & 1): A(tile((e - 4) // 2)[2])
        assert not sq
        A(tile(6)[2])
        for x in tile(7): A(x)
        pstore(3)
        stamp(7)
        rmf = lambda i: f"{MF} {v(RA, 4)}, {v(SEL, 4)}, {v(RD + 4 * i, 4)}, {v(RA, 4) if i else 0}"
        def steplog():
            if PROF:
                A(f"""s_memrealtime s[100:101]
                s_waitcnt lgkmcnt(0)
                s_bitcmp1_b32 s{sW}, 0
                s_cselect_b32 s3, s100, s{sTS + 14}
                v_mov_b32 v{vT}, s3
                s_lshl_b32 s{st0}, s{sRK}, 6
                s_add_u32 s{st0}, s{st0}, s{sSTEP}
                s_lshl_b32 s{st0}, s{st0}, 2
                s_add_u32 s{st0}, s{st0}, {WS_DBG + 0x8000}
                s_lshl_b32 s3, s{sW}, 13
                s_add_u32 s{st0}, s{st0}, s3
                s_mov_b64 exec, 1
                buffer_store_dword v{vT}, off, {S4(rWS)}, s{st0}
                s_mov_b64 exec, -1""")
        def progchk():
            A("s_waitcnt vmcnt(4)"); prog_spin(); steplog()
        def odd(n):
            l = A.lab()
            A(f"s_bitcmp1_b32 s{sW}, 0\ns_cbranch_scc0 {l}"); delay(n); A(f"{l}:")
        chores = {"s": lambda: [A(f"v_cndmask_b32 v{SEL + i}, 0, v{vSel}, s[{sMSK + 2 * i}:{sMSK + 2 * i + 1}]") for i in range(4)] +
                               [fill_ones(A, ES, 2)],
                  "p": preload, "z": zero_acc, "A": lambda: A(rl), "e": lambda: delay(4), "d": lambda: delay(8), "D": lambda: delay(16),
                  "k": progchk, "o": lambda: odd(8), "O": lambda: odd(16)}
        for ch in cfg["RED4"][w]:
            if isinstance(ch, str): chores[ch]()
            else: delay(ch)
        if PROF and w == 2: steplog()
        spin_init(A)
        A(f"s_mov_b64 vcc, -1\nL_red{w}:\n" + masked(rl))
        if PROF: A(f"s_add_u32 s{sTS + 23}, s{sTS + 23}, 1")
        spin_step(A)
        A(f"s_waitcnt vmcnt({2 * cfg['RED4'][w].count('A')})")
        for x in mx(RD, 8)[:2] + [rmf(0)] + mx(RD, 8)[2:] + [rmf(1), CMP]: A(x)
        A(f"s_cbranch_vccnz L_red{w}")
        stamp(8)
        for r in (4, 8):
            for i in range(4): A(f"v_add_f32_dpp v{RA + i}, v{RA + i}, v{RA + i} row_ror:{r} row_mask:0xf bank_mask:0xf")
        A(f"v_cvt_pk_bf16_f32 v{RA}, v{RA}, v{RA + 1}\nv_cvt_pk_bf16_f32 v{RA + 1}, v{RA + 2}, v{RA + 3}")
        if not (LB and w >= 2): A(pub)
        stamp(9)
        A(f"s_branch L_fetch{w}")
    for w in range(4):
        step(w)
        while stubs: stubs.pop()()
    A("L_ch_exit:")
    if cfg.get("XL"): A(f"buffer_store_dwordx4 {v(KMQ, 4)}, v{vWl0}, {S4(rWS)}, s{sKM} offen sc1")
    timeline(A, cfg, 3, vT)
    if PROF:
        A(f"""s_waitcnt lgkmcnt(0)
        s_lshl_b32 s{st0}, s{sRK}, 2
        s_add_u32 s{st0}, s{st0}, s{sW}
        s_lshl_b32 s{st0}, s{st0}, 7
        s_add_u32 s{st0}, s{st0}, {WS_DBG}
        s_mov_b64 exec, 1
        s_memrealtime s[90:91]
        s_waitcnt lgkmcnt(0)
        s_lshr_b32 s92, s90, 10
        s_add_u32 s92, s92, 2
        s_lshl_b32 s92, s92, 10
        L_cal:
        s_memrealtime s[90:91]
        s_memtime s[94:95]
        s_waitcnt lgkmcnt(0)
        s_sub_u32 s93, s90, s92
        s_cmp_lt_i32 s93, 0
        s_cbranch_scc1 L_cal""")
        for i, r in enumerate([sTS + 2 * i for i in range(11)] + [sTS + 23, 2, sTS + 22, 94, 92]): A(f"v_mov_b32 v0, s{r}\nbuffer_store_dword v0, v{vZ}, {S4(rWS)}, s{st0} offen offset:{4 * i}")
    A("s_endpgm")
```

```python
from common import *
from ln import round_bf, ln_scale

def role_qo(A, cfg):
    NQO, NKV = cfg["NQO"], cfg["NKV"]
    sT, sCNT, sI, sSEG, sHB, sFLG, sIN, sPW, sPW1, sKM, sNEED, sPG, sC, sROW, st0, st1, st2 = range(56, 73)
    sMSK, sHX = 74, 90
    NEG, L_R = 228, 110592
    sBUF, sNX, sRS = 92, 93, 94
    vB, vBo, vVb, vQw, vRr, vPV = 248, 249, 250, 251, 252, 253
    L_X, L_KV, L_O, BUF = 0, 32768, 0, 49152
    L_Q, L_KMK, L_KMV = 98304, 106496, 108544
    vLane, vOffQ, vOffO, vT, vT0, vL16, vWl0, vWk, vWv, vRk, vRv, vSt, vRl, vRow, vL4, vQr, vVr, vZ, t0, t1, t2 = range(200, 221)
    SELA, ONES, PM, KMD = 224, 232, 236, 240
    SW = cfg["S_QO"]
    A(f"L_qo:\ns_mov_b32 s{sCNT}, s3\nL_qo2:\ns_mov_b32 s{sT}, s3")
    timeline(A, cfg, 0, 1)
    srd(A, rA, pWQ, 1 << 22); srd(A, rB, pWO, 1 << 22); srd(A, rD, pX, 1 << 21)
    lane_fields(A, vLane)
    A(f"""v_lshlrev_b32 v{vL16}, 4, v{vLane}
    s_lshl_b32 s{st0}, s{sW}, 12
    v_add_u32 v{vWl0}, s{st0}, v{vL16}
    v_mov_b32 v{vZ}, 0""")
    A(f"""
    s_lshl_b32 s{sFLG}, s{sT}, 21
    s_lshl_b32 s{st0}, s{sRK}, 15
    s_add_u32 s{sFLG}, s{sFLG}, s{st0}
    s_add_u32 s{sFLG}, s{sFLG}, {WS_PART1}""")
    row_consts(A, vLane, vRl, vRow, SELA, sHX, t0, t1, st0)
    fill_ones(A, NEG, 4)
    A(f"s_cmp_eq_u32 s{sT}, {NQO}\ns_cbranch_scc1 L_qo_w")
    for sl in range(0 if cfg.get("NOCLR") else 2):
        A(f"s_add_u32 s{sIN}, s{sFLG}, {sl << 20}")
        inbox_reset(A, 8, NEG, vRl, sIN, st0)
    A("s_waitcnt vmcnt(0)\ns_barrier")
    signal_done(A, t0, t1)
    if "qo" not in cfg["ENABLE"]:
        A("L_qo_w:\ns_endpgm"); return
    if cfg["QO_LATE"] == 2: wait_done1(A, t0, t1, st0, DBG_CH, 32)
    elif cfg["QO_LATE"]: wait_done1(A, t0, t1, st0, DBG_LN, 64)
    A("L_qo_w:")
    dma_col(A, t2, vLane, t0, t1, st0)
    A(f"""v_lshrrev_b32 v{t0}, 4, v{vLane}
    s_lshl_b32 s{st0}, s{sW}, 2
    v_add_u32 v{t0}, s{st0}, v{t0}
    v_lshl_add_u32 v{vOffQ}, v{t0}, 13, v{t2}
    s_lshl_b32 s{sHB}, s{sRK}, 8
    s_lshl_b32 s{sIN}, s{sRK}, 17""")
    rows_out(A, vOffO, t2, vLane, t0, st0, st1)
    tr_base(A, vT, vLane, t0, t1)
    A(f"s_lshl_b32 s{st0}, s{sW}, 6\nv_xor_b32 v{vT0}, s{st0}, v{vT}")
    chunks = []
    for C in range(8):
        def ex(A, base, C=C):
            A(f"v_add_u32 v{t0}, {base}, v{vT0}\nv_xor_b32 v{t1}, 32, v{t0}")
            tr_tile(A, "a", C * 8, t0); tr_tile(A, "a", 64 + C * 8, t1)
        chunks.append(dict(srd=rA, voff=vOffQ, sbase=sHB, offs=[(64 * C + 16 * i) * 8192 for i in range(4)], extract=ex))
    for u in range(2):
        for w in range(4):
            chunks.append(dict(srd=rB, voff=vOffO, sbase=sIN, offs=[(64 * u + r) * 1024 + w * 256 for r in ROWS_OUT],
                               extract=lambda A, base, u=u, w=w: extract8(A, base, w, vT, t0, t1, lambda t: 128 + 16 * t + 8 * u)))
    load_chunks(A, chunks, 10, cfg["QO_DEPTH"], 0, st0, st1, nt='nt' if 'q' in cfg['NT'] else '')
    timeline(A, cfg, 1, t0)
    A(f"""v_and_b32 v{t0}, 15, v{vLane}
    v_lshrrev_b32 v{t1}, 4, v{vLane}
    v_and_b32 v{vL4}, 31, v{vLane}
    v_lshlrev_b32 v{vL4}, 2, v{vL4}
    s_lshl_b32 s{st0}, s{sW}, 9
    v_lshlrev_b32 v{t2}, 2, v{t0}
    v_lshl_or_b32 v{t2}, v{t1}, 7, v{t2}
    v_add_u32 v{t2}, s{st0}, v{t2}
    v_add_u32 v{vWk}, {L_KMK}, v{t2}
    v_lshl_add_u32 v{vWv}, v{vLane}, 3, s{st0}
    v_add_u32 v{vWv}, {L_KMV}, v{vWv}
    v_lshrrev_b32 v{t2}, 2, v{t0}
    v_lshlrev_b32 v{t2}, 7, v{t2}
    v_and_b32 v{vRk}, 1, v{t0}
    v_lshl_or_b32 v{t2}, v{vRk}, 6, v{t2}
    v_lshl_or_b32 v{t2}, v{t1}, 4, v{t2}
    v_add_u32 v{vRk}, {L_KMK}, v{t2}
    s_lshr_b32 s{st1}, s{sW}, 1
    s_lshl_b32 s{st0}, s{st1}, 10
    s_add_u32 s{st0}, s{st0}, {L_KMV}
    v_lshl_add_u32 v{vRv}, v{vLane}, 3, s{st0}
    s_lshl_b32 s{st0}, s{st1}, 13
    s_add_u32 s{st0}, s{st0}, {L_KV}
    v_add_u32 v{vVr}, s{st0}, v{vL16}
    s_and_b32 s{st1}, s{sW}, 1
    s_lshl_b32 s{st0}, s{st1}, 12
    v_add_u32 v{vBo}, s{st0}, v{vL16}
    v_add_u32 v{vQr}, {L_Q}, v{vBo}
    s_lshr_b32 s{st0}, s{sW}, 1
    s_lshl_b32 s{st0}, s{st0}, 11
    v_add_u32 v{vBo}, s{st0}, v{vBo}
    s_lshl_b32 s{st0}, s{sW}, 10
    s_add_u32 s{st0}, s{st0}, {L_Q}
    v_add_u32 v{vQw}, s{st0}, v{vL16}
    v_add_u32 v{vRr}, {L_R}, v{vL16}
    s_lshl_b32 s{st0}, s{sW}, 8
    v_lshlrev_b32 v{t2}, 4, v{t1}
    v_lshl_or_b32 v{t2}, v{t0}, 15, v{t2}
    v_add_u32 v{vSt}, s{st0}, v{t2}
    s_lshl_b32 s{st1}, s{st1}, 4
    v_add_u32 v{t0}, s{st1}, v{t0}
    v_lshlrev_b32 v{t1}, 2, v{t1}
    v_sub_u32 v{t0}, v{t0}, v{t1}
    s_mov_b32 s{sC}, {C_SCALE:#x}
    v_mov_b32 v{PM + 1}, 0
    v_mov_b32 v{PM + 2}, 0""")
    for i in range(8): A(f"v_cmp_le_i32 s[{sMSK + 2 * i}:{sMSK + 2 * i + 1}], {16 * (i >> 2) + (i & 3)}, v{t0}")
    for i in range(4): A(f"v_mov_b32 v{ONES + i}, 0x3f803f80")
    wait_done1(A, t0, t1, st0)
    A(f"s_mov_b32 s{sI}, 0\ns_mov_b32 s{sSEG}, s{sCNT}")

    def prog_addr(seg):
        if NKV == 2: A(f"s_and_b32 s{sPG}, s{seg}, 1\ns_lshl_b32 s{sPG}, s{sPG}, 5\ns_add_u32 s{sPG}, s{sPG}, s{sRK}\ns_lshr_b32 s{sNEED}, s{seg}, 1")
        else: A(f"s_mov_b32 s{sPG}, s{sRK}\ns_mov_b32 s{sNEED}, s{seg}")
        A(f"s_lshl_b32 s{sPG}, s{sPG}, 7\ns_add_u32 s{sPG}, s{sPG}, {WS_PROG}")
    pld = f"buffer_load_dword v{vPV}, v{vZ}, {S4(rWS)}, s{sPG} offen sc1"
    def fetch(seg):
        l, l2 = A.lab(), A.lab()
        spin_init(A)
        A(f"{l}:\nv_readfirstlane_b32 s{st0}, v{vPV}\ns_cmp_gt_u32 s{st0}, s{sNEED}\ns_cbranch_scc1 {l2}\n{pld}")
        spin_step(A)
        A(f"""s_waitcnt vmcnt(0)
        s_branch {l}
        {l2}:
        s_lshl_b32 s{st0}, s{seg}, 15
        s_lshl_b32 s{st1}, s{sW}, 13
        s_add_u32 s{st0}, s{st0}, s{st1}
        s_add_u32 m0, s{st1}, s{sBUF}
        s_add_u32 s{st0}, s{st0}, {WS_XN}""")
        for i in range(8):
            if i == 4: A(f"s_add_u32 s{st0}, s{st0}, 4096\ns_add_u32 m0, m0, 4096\ns_nop 0")
            A(f"buffer_load_dwordx4 v{vL16}, {S4(rWS)}, s{st0} offen offset:{(i % 4) * 1024} sc1 lds")
        A(f"""s_lshl_b32 s{st0}, s{seg}, 5
        s_add_u32 s{st0}, s{st0}, s{sRK}
        s_lshl_b32 s{st0}, s{st0}, 14
        s_add_u32 s{st0}, s{st0}, {WS_KV}
        s_lshl_b32 s{st1}, s{sW}, 12
        s_add_u32 s{st1}, s{st1}, s{sBUF}
        s_add_u32 m0, s{st1}, {L_KV}
        s_nop 0""")
        for i in range(4): A(f"buffer_load_dwordx4 v{vWl0}, {S4(rWS)}, s{st0} offen offset:{1024 * i} sc1 lds")
    A(f"s_mov_b32 s{sBUF}, 0\ns_mov_b32 s{sRS}, {WS_SIZE}\nv_mov_b32 v{vPV}, 0")
    prog_addr(sSEG); fetch(sSEG)
    A("s_waitcnt vmcnt(0)\ns_barrier")

    A(f"""L_qo_loop:
    v_add_u32 v{vB}, s{sBUF}, v{vL16}
    v_add_u32 v{vVb}, s{sBUF}, v{vVr}
    s_cmp_ge_u32 s{sSEG}, {SW}
    s_addc_u32 s{sNX}, s{sSEG}, {NQO}""")
    prog_addr(sNX)
    A(f"""s_lshl_b32 s{sKM}, s{sSEG}, 5
    s_add_u32 s{sKM}, s{sKM}, s{sRK}
    s_lshl_b32 s{sKM}, s{sKM}, 2
    s_add_u32 s{sKM}, s{sKM}, s{sW}
    s_lshl_b32 s{sKM}, s{sKM}, 10
    s_add_u32 s{sKM}, s{sKM}, {WS_KM}""")
    timeline(A, cfg, 75, t0)
    vq = [pld] + inbox_ops(8, NEG, vRl, sRS, st0, True)
    NB = 3
    xf = lambda ks, a_: 16 + ((ks % NB) * 2 + a_) * 4
    def rd(ks):
        for a_ in range(2): A(f"ds_read_b128 {v(xf(ks, a_), 4)}, v{vB} offset:{L_X + (a_ * 16 + ks) * 1024}")
    rd(0); rd(1)
    for ks in range(16):
        A(f"s_waitcnt lgkmcnt({2 if ks < 15 else 0})")
        for k, (a_, b) in enumerate(((0, 0), (0, 1), (1, 0), (1, 1))):
            c = (2 * b + a_) * 4
            A(f"{MF} {v(c, 4)}, {a(b * 64 + 4 * ks, 4)}, {v(xf(ks, a_), 4)}, {v(c, 4) if ks else 0}")
            if k == 0 and ks + 2 < 16: rd(ks + 2)
            if k == 2 and vq and ks % 3 != 2: A(vq.pop(0))
    assert not vq
    for a_ in range(2):
        for j in range(4): A(f"v_cvt_pk_bf16_f32 v{16 + 4 * a_ + j}, v{a_ * 4 + j}, v{(2 + a_) * 4 + j}")
        A(f"ds_write_b128 v{vQw}, {v(16 + 4 * a_, 4)} offset:{a_ * 4096}")
    A("s_waitcnt vmcnt(8) lgkmcnt(0)\ns_barrier")
    timeline(A, cfg, 76, t0)
    QF, KF, VF, MFR, VM = 32, 48, 80, 96, 112
    S0, Sm, P, O, SU = 0, 8, 12, 116, 132
    for t in range(4):
        A(f"ds_read_b128 {v(QF + 4 * t, 4)}, v{vQr} offset:{1024 * t}")
        for c in range(2): A(f"ds_read_b128 {v(KF + 4 * (2 * t + c), 4)}, v{vB} offset:{L_KV + 4096 * t + 2048 + 1024 * c}")
    for t in range(4):
        A(f"s_waitcnt lgkmcnt({9 - 3 * t})")
        for c in range(2): A(f"{MF} {v(S0 + 4 * c, 4)}, {v(KF + 4 * (2 * t + c), 4)}, {v(QF + 4 * t, 4)}, {v(S0 + 4 * c, 4) if t else 0}")
    for be in range(4): A(f"ds_read_b128 {v(VF + 4 * be, 4)}, v{vVb} offset:{4096 * (be >> 1) + 1024 * (be & 1)}")
    A(f"""s_and_b32 s{st0}, s{sI}, 1
    s_lshl_b32 s{st0}, s{st0}, 20
    s_lshl_b32 s{st1}, s{sT}, 21
    s_add_u32 s{st0}, s{st0}, s{st1}
    s_add_u32 s{st0}, s{st0}, {WS_PART1}
    s_lshl_b32 s{st1}, s{sRK}, 10
    s_add_u32 s{sPW}, s{st0}, s{st1}
    s_add_u32 s{sPW1}, s{sPW}, {16 * 32768}
    s_lshl_b32 s{st1}, s{sRK}, 15
    s_add_u32 s{sIN}, s{st0}, s{st1}
    s_lshl_b32 s{sROW}, s{sSEG}, 5
    s_add_u32 s{sROW}, s{sROW}, s{sRK}
    s_lshl_b32 s{sROW}, s{sROW}, 10
    v_mov_b32 v{t2}, 0xceabfb8f""")
    for i in range(8): A(f"v_mul_f32 v{S0 + i}, s{sC}, v{S0 + i}")
    for i in range(8): A(f"v_cndmask_b32 v{S0 + i}, v{t2}, v{S0 + i}, s[{sMSK + 2 * i}:{sMSK + 2 * i + 1}]")
    m1, m2, m3, tt = 136, 137, 138, 139
    A(f"""v_max3_f32 v{m1}, v{S0}, v{S0 + 1}, v{S0 + 2}
    v_max3_f32 v{m2}, v{S0 + 3}, v{S0 + 4}, v{S0 + 5}
    v_max3_f32 v{m3}, v{S0 + 6}, v{S0 + 7}, v{m1}""")
    for i in range(2): A(f"buffer_load_dwordx2 {v(KMD + 4 + 2 * i, 2)}, v{vRow}, {S4(rD)}, s{sROW} offen offset:{512 * i}")
    A(f"v_add_u32 v{t2}, s{sBUF}, v{vBo}\ns_xor_b32 s{sBUF}, s{sBUF}, {BUF}\ns_cmp_ge_u32 s{sNX}, {NSEG}\ns_cbranch_scc1 L_qo_nf")
    fetch(sNX)
    A("L_qo_nf:")
    timeline(A, cfg, 72, t0)
    spin_init(A)
    A("s_branch L_qo_km1\nL_qo_km:")
    if cfg["SLEEP"]: A(f"s_sleep {cfg['SLEEP']}")
    A(f"L_qo_km1:\nbuffer_load_dwordx4 {v(KMD, 4)}, v{vL16}, {S4(rWS)}, s{sKM} offen sc1")
    spin_step(A)
    A("s_waitcnt vmcnt(0)")
    max_chk(A, t0, KMD, 4)
    A(f"""ds_write2_b32 v{vWk}, v{KMD}, v{KMD + 1} offset1:16
    ds_write_b64 v{vWv}, {v(KMD + 2, 2)}
    s_cbranch_vccnz L_qo_km
    s_waitcnt lgkmcnt(0)
    s_barrier""")
    timeline(A, cfg, 73, t0)
    for t in range(4): A(f"ds_read_b128 {v(MFR + 4 * t, 4)}, v{vRk} offset:{512 * t}")
    for i in range(2): A(f"ds_read_b64 {v(VM + 2 * i, 2)}, v{vRv} offset:{512 * i}")
    for t in range(4): A(f"s_waitcnt lgkmcnt({5 - t})\n{MF} {v(Sm, 4)}, {v(MFR + 4 * t, 4)}, {v(QF + 4 * t, 4)}, {v(Sm, 4) if t else 0}")
    A(f"""
    v_mul_f32 v{Sm}, s{sC}, v{Sm}
    v_mul_f32 v{Sm + 1}, s{sC}, v{Sm + 1}
    v_max3_f32 v{m1}, v{Sm}, v{Sm + 1}, v{m2}
    v_max_f32 v{m2}, v{m1}, v{m3}
    v_max_f32 v{tt}, v{m1}, v{m3}
    v_permlane16_swap_b32 v{m2}, v{tt}
    v_max_f32 v{m1}, v{m2}, v{tt}
    v_max_f32 v{m3}, v{m2}, v{tt}
    v_permlane32_swap_b32 v{m1}, v{m3}
    v_max_f32 v{m1}, v{m1}, v{m3}""")
    for i in range(10): A(f"v_sub_f32 v{S0 + i}, v{S0 + i}, v{m1}\nv_exp_f32 v{S0 + i}, v{S0 + i}")
    pack(A, P, S0, 4)
    A(f"v_cvt_pk_bf16_f32 v{PM}, v{Sm}, v{Sm + 1}\nv_cvt_pk_bf16_f32 v{PM + 3}, v{Sm}, v{Sm + 1}\ns_waitcnt lgkmcnt(0)")
    A(f"{MF} {v(SU, 4)}, {v(ONES, 4)}, {v(P, 4)}, 0")
    for be in range(4): A(f"{MF} {v(O + 4 * be, 4)}, {v(VF + 4 * be, 4)}, {v(P, 4)}, 0")
    A(f"{MF16} {v(SU, 4)}, {v(ONES, 2)}, {v(PM, 2)}, {v(SU, 4)}")
    for be in range(4): A(f"{MF16} {v(O + 4 * be, 4)}, {v(VM + 2 * (be >> 1), 2)}, {v(PM + 2 * (be & 1), 2)}, {v(O + 4 * be, 4)}")
    A(f"v_rcp_f32 v{SU}, v{SU}")
    for x in range(2):
        for i in range(8): A(f"v_mul_f32 v{O + 8 * x + i}, v{O + 8 * x + i}, v{SU}")
        pack(A, 16 + 4 * x, O + 8 * x, 4)
        A(f"ds_write_b128 v{t2}, {v(16 + 4 * x, 4)} offset:{L_O + 1024 * x}")
    A("s_waitcnt lgkmcnt(0)\ns_barrier")
    timeline(A, cfg, 77, t0)
    OF, ACC, OUT = 32, 64, 16
    for i in range(8): A(f"ds_read_b128 {v(OF + 4 * i, 4)}, v{vB} offset:{L_O + 1024 * i}")
    A("s_waitcnt lgkmcnt(0)")
    proj_out(A, 4, lambda t, ks: 128 + 16 * t + 4 * ks, OF, ACC, OUT, vSt, sPW)
    timeline(A, cfg, 78, t0)
    D, R, X, H = 0, 128, 136, 144
    row_sum(A, 8, D, R, SELA, vRl, sIN, st0, t0)
    timeline(A, cfg, 79, t0)
    A(f"""s_lshr_b32 s{st0}, s{sW}, 1
    s_lshl_b32 s{st0}, s{st0}, 10
    v_add_u32 v{t2}, s{st0}, v{vRr}
    s_add_u32 s{sI}, s{sI}, 1
    s_mov_b64 exec, s[{sHX}:{sHX + 1}]
    ds_write_b128 v{t2}, {v(R, 4)}
    s_mov_b64 exec, -1
    s_waitcnt lgkmcnt(0)
    s_barrier
    s_cmp_lg_u32 s{sW}, 0
    s_cbranch_scc1 L_qo_next
    ds_read_b128 {v(R, 4)}, v{vRr}
    ds_read_b128 {v(R + 4, 4)}, v{vRr} offset:1024""")
    timeline(A, cfg, 80, t0)
    unpack(A, X, KMD + 4, 4)
    A("s_waitcnt lgkmcnt(0)")
    pack(A, H, R, 4); unpack(A, R, H, 4)
    for i in range(8): A(f"v_add_f32 v{R + i}, v{R + i}, v{X + i}")
    pack(A, H, R, 4); unpack(A, R, H, 4)
    vm, vs = 150, 151
    A(f"v_add_f32 v{vm}, v{R}, v{R + 1}")
    for i in range(2, 8): A(f"v_add_f32 v{vm}, v{vm}, v{R + i}")
    for i in range(4): A(f"v_min_u32 v{H + i}, -2, v{H + i}")
    A(f"s_add_u32 s{st0}, s{sROW}, {WS_HB}\nbuffer_store_dwordx4 {v(H, 4)}, v{vL16}, {S4(rWS)}, s{st0} offen sc1")
    wave_sum(A, vm, t0)
    A(f"v_mul_f32 v{vm}, 0x3b000000, v{vm}")
    for i in range(8): A(f"v_sub_f32 v{X + i}, v{R + i}, v{vm}")
    A(f"v_mul_f32 v{vs}, v{X}, v{X}")
    for i in range(1, 8): A(f"v_fmac_f32 v{vs}, v{X + i}, v{X + i}")
    round_bf(A, vm)
    wave_sum(A, vs, t0)
    A(f"v_mul_f32 v{vs}, 0x3b000000, v{vs}")
    ln_scale(A, vs, t0)
    for i in range(8): A(f"v_sub_f32 v{R + i}, v{R + i}, v{vm}")
    pack(A, X, R, 4); unpack(A, R, X, 4)
    for i in range(8): A(f"v_mul_f32 v{R + i}, v{R + i}, v{vs}")
    pack(A, X, R, 4)
    for i in range(4): A(f"v_min_u32 v{X + i}, -2, v{X + i}")
    A(f"s_add_u32 s{st0}, s{sROW}, {WS_XN2}\nbuffer_store_dwordx4 {v(X, 4)}, v{vL16}, {S4(rWS)}, s{st0} offen sc1")
    timeline(A, cfg, 7, t0, sI)
    A(f"""L_qo_next:
    s_mov_b32 s{sRS}, s{sIN}
    s_mov_b32 s{sSEG}, s{sNX}
    s_cmp_lt_u32 s{sSEG}, {NSEG}
    s_cbranch_scc1 L_qo_loop
    s_endpgm""")
```

```python
import sys, json
from common import *
import align, role_kv, role_ffn, role_ffn1, role_chain, role_chain_g2, role_chain_g4, role_qo

DEFAULT = dict(ROLES=["chain", "ffn", "qo", "kv", "qo", "kv", "qo", "ffn"], KVFL=2, KV_DEPTH=9, QO_DEPTH=1, FFN_DEPTH=1, CH_DEPTH=5, CH_PF=0, CH_MIX=0,
               ENABLE=["chain", "kv", "qo", "ffn"], PROF=0, SLEEP=0, CODEPF=1, WARM='', KFIRST=1, NT='', EARLY=0, G3=0, G4=1, PKA=1, OW=1, SCHED=1, BQ=43, BK=51, KG=[46, 47, 48, 49], ZG=52, VG=49, PS=[0, 0, 0, 0], LATEPUB=0, CS4=[4, 6, 5, 7],
               VS4=dict(d0=[0, 1, 2, 3], d1=[4, 5, 6, 7], d2=[8, 9, 10, 11], d3=[12, 13, 14, 15], pg=[None, None, None, 17],
                        km=[17, 19, 21, 23], r0=[25, 26, 28, 29], r1=[31, 32, 34, 35]),
               RED4=[["s", 8, "A", "z", "p", 8], ["s", 20, "A", "z", "p", 8], ["s", "p", "z", 28, "A", 16], ["k", "s", "p", "z", 20, "A", 16]], ALIGN=8, PAD=0, AL=0, PK=1, NOMAX=1, KEARLY=60, RS=8192, MEMOFF=0, PH=[0, 0, 32], TLB=0, QO_LATE=1, S_QO=99, S_FFN=98, GATE=0, F2D=1,
               LP=12, NVF=2, EB=4, PRE=0, PREP='n', FD=[28, 16, 16], SPEC=0, VS=dict(km=17, d0=0, d1=4, d2=8, d3=13, pg=14, r0=30, r1=100), KVST='sc1', KVLD='sc1', RED=[["s", -4, "A", "z", "p", 4], ["k", "s", "p", "z", -4, "A", 16]])

G3CFG = dict(LP=16, CS=5, BP=8, EB=3, PREP="c", RED=["szpA", "szpAd", "kspzdoAD"], FD=[24, 16, 16],
             VS=dict(km=29, d0=13, d1=17, d2=21, d3=25, pg=27, r0=34, r1=100))

WS0 = {n: x for n, x in globals().items() if n.startswith('WS_') and n not in ('WS_SIZE', 'WS_DBG')}
HEAD = open("ref.txt").read().split("; Override launch")[0]

def generate(over=None, verbose=False):
    cfg = dict(DEFAULT)
    if (over or {}).get("G3", cfg["G3"]): cfg.update(G3CFG)
    cfg.update(over or {})
    for r in ("kv", "qo", "ffn"): cfg["N" + r.upper()] = cfg["ROLES"].count(r)
    import common, ln
    for n, d in WS0.items():
        for m in (common, ln, role_kv, role_ffn, role_ffn1, role_chain, role_chain_g2, role_chain_g4, role_qo): m.__dict__[n] = d + cfg.get("WSO", {}).get(n[3:], 0)
    common.DONE_N = 224 if cfg.get('NOSIG') else 256
    A = Asm()
    prologue(A, cfg["ROLES"], cfg["PROF"], cfg["CODEPF"], cfg["WARM"], cfg["EARLY"])
    cfg["_dbg"] = {("chain", 1): 2, ("chain", 2): 3, ("chain", 3): 4, ("kv", 1): 5, ("kv", 2): 6, ("qo", 1): 7, ("qo", 73): 8, ("qo", 7): 9,
                   ("ffn", 1): 10, ("ffn", 2): 11, ("ffn", 72): 12, ("ffn", 7): 13, ("chain", 9): 14, ("kv", 9): 15}
    for r, m, vz in (("chain", (role_chain if cfg["G3"] else role_chain_g4 if cfg["G4"] else role_chain_g2).role_chain, 93), ("kv", role_kv.role_kv, 108), ("qo", role_qo.role_qo, 217), ("ffn", (role_ffn if cfg["F2D"] else role_ffn1).role_ffn, 109 if cfg["F2D"] else 213)):
        cfg["_role"] = r; cfg["_vz"] = vz
        m(A, cfg)
    A("L_end:")
    body = A.finish(verbose)
    if cfg["AL"]:
        out = align.run(A.out, "L_fetch", "L_ch_exit", 4 * cfg["PAD"], {"L_early": cfg["PH"][2]}, verbose)
        body = "\n".join(x if isinstance(x, str) else " " + x.text for x in out) + "\n"
    if cfg.get("NOMF"):
        import re
        f = {1: lambda m: " s_nop 3", 2: lambda m: " v_mfma_f32_16x16x32_bf16 %s, %s, %s[%d:%d], %s" % (m.group(1), m.group(2), m.group(3), int(m.group(4)), int(m.group(4)) + 3, m.group(1))}[cfg["NOMF"]]
        body = re.sub(r" v_smfmac_f32_16x16x64_bf16 (\S+), (\S+), ([av])\[(\d+):\d+\], v\d+", f, body)
    K = NAME + "_kernel"
    doc = open("header.txt").read()
    return (HEAD + f"; @launch grid=(256,1,1) block=(256,1,1) lds={LDS_BYTES}\n" + doc +
            f'.amdgcn_target "amdgcn-amd-amdhsa--gfx950"\n.text\n.globl {K}\n.p2align 8\n.type {K},@function\n{K}:\n' + body +
            f""".section .rodata,"a"
.p2align 6
.amdhsa_kernel {K}
  .amdhsa_next_free_vgpr 512
  .amdhsa_next_free_sgpr 102
  .amdhsa_accum_offset 256
  .amdhsa_group_segment_fixed_size 0
  .amdhsa_kernarg_size 112
  .amdhsa_user_sgpr_count 2
  .amdhsa_user_sgpr_kernarg_segment_ptr 1
  .amdhsa_system_sgpr_workgroup_id_x 1
  .amdhsa_float_denorm_mode_32 3
.end_amdhsa_kernel
""")

if __name__ == "__main__":
    out = sys.argv[1] if len(sys.argv) > 1 else "cdna_kernels/%s.s" % NAME
    over = json.loads(sys.argv[2]) if len(sys.argv) > 2 else None
    t = generate(over, verbose="-v" in sys.argv)
    open(out, "w").write(t)
    print(out, len(t), "bytes")
```

```python
from common import *

SMF = "v_smfmac_f32_16x16x64_bf16"

def role_chain(A, cfg):
    NKV, PROF = cfg["NKV"], cfg["PROF"] >= 2
    assert NKV in (1, 2)
    M, G, QA, VA, KMQ, PM = 0, 32, 64, 80, 88, 92
    vIdx, vWl0, vWl1, vKr, vVr, vMr, vPartSt, vMemSt, vQw, vQr, vOw, vOr, vSel, vProg, vT, vMw = range(96, 112)
    vZ = PM + 1
    L_KV, L_Q, L_O, L_M = 112 * 1024, 144 * 1024, 148 * 1024, 150 * 1024
    PUBX = "0x000f000f"
    RS = cfg["RS"]
    WS_MEM = globals()["WS_MEM"] + cfg["MEMOFF"]
    sSTEP, sX0, sX1, sX2, sPW, sPR, sPZ, sMN, sMZ, sKVS, sKVL, sKM, sPG, sNEED, sC, sME, sML, cME, sWO = range(56, 75)
    cPW, cPZ, cMD, cMC, cML = 40, 41, 42, 43, 44
    sONE, sMSK = 76, 78
    sKP, sC2, sLIM = 75, 88, 90
    sPX = 86
    st0, st1 = 100, 101
    sTS = 8
    def wreg(i): return ("a", 8 * i) if i < 32 else ("v", 112 + 8 * (i - 32))
    WQ = lambda p, b: wreg(2 * p + b)
    WK = lambda p, b: wreg(16 + p + b)
    WV = lambda p, b: wreg(24 + 2 * p + b)
    WO = lambda t, u: wreg(40 + 2 * t + u) if t < 5 else ("v", 32 + 8 * (2 * (t - 5) + u))
    W8 = lambda w: R(w[0], w[1], 8)
    def stamp(i, force=False):
        if PROF and (force or (not cfg.get("QS") or i < 4) and (not cfg.get("WS") or i >= 5)): A(f"{'s_memrealtime' if cfg.get('RT') else 's_memtime'} s[{sTS + 2 * i}:{sTS + 2 * i + 1}]")
    def delay(n):
        while n > 0:
            A(f"s_nop {min(n, 16) - 1}"); n -= 16

    A("L_chain:")
    timeline(A, cfg, 0, 1)
    srd(A, rA, pWQ, 1 << 22); srd(A, rB, pWK, 1 << 22); srd(A, rC, pWV, 1 << 22); srd(A, rD, pWO, 1 << 22)
    vLane, vOffA, vOffO, vT0, t0, t1, t2, vPF, vDum = range(20, 29)
    lane_fields(A, vLane)
    dma_col(A, vOffA, vLane, t0, t1, st0)
    A(f"""v_bfe_u32 v{t0}, v{vLane}, 4, 1
    v_lshrrev_b32 v{t1}, 5, v{vLane}
    s_and_b32 s{st0}, s{sW}, 1
    s_lshr_b32 s{st1}, s{sW}, 1
    v_lshl_add_u32 v{t2}, v{t1}, 5, v{t0}
    s_lshl_b32 s3, s{st1}, 4
    v_add_u32 v{t2}, s3, v{t2}
    s_lshl_b32 s3, s{st0}, 1
    v_add_u32 v{t2}, s3, v{t2}
    v_lshl_add_u32 v{vOffO}, v{t2}, 10, v{vOffA}
    v_lshlrev_b32 v{t0}, 4, v{t0}
    v_lshl_add_u32 v{t2}, v{t1}, 2, v{t0}
    v_add_u32 v{t2}, s{sW}, v{t2}
    v_lshl_add_u32 v{vOffA}, v{t2}, 13, v{vOffA}
    s_lshl_b32 s{sKVS}, s{sRK}, 8
    s_lshl_b32 s3, s{sRK}, 1
    s_add_u32 s3, s3, s{st1}
    s_lshr_b32 s{st1}, s3, 5
    s_lshl_b32 s{st1}, s{st1}, 7
    s_and_b32 s3, s3, 31
    s_add_u32 s3, s3, s{st1}
    s_lshl_b32 s3, s3, 13
    s_lshl_b32 s{st0}, s{st0}, 12
    s_add_u32 s3, s3, s{st0}
    v_lshl_add_u32 v{vPF}, v{vLane}, 6, s3
    s_lshl_b32 s{st0}, s{sW}, 12
    v_lshl_add_u32 v{vWl0}, v{vLane}, 4, s{st0}
    s_mul_i32 s{st0}, s{sW}, 12288
    s_add_u32 s{st0}, s{st0}, 0x10000
    v_lshl_add_u32 v{vWl1}, v{vLane}, 4, s{st0}""")
    tr_base(A, vT, vLane, t0, t1)
    A(f"s_lshl_b32 s{st0}, s{sW}, 6\nv_xor_b32 v{vT0}, s{st0}, v{vT}")
    for i in range(4):
        A(f"""s_add_u32 s{st0}, s{sRK}, {i}
        s_and_b32 s{sMSK + 4 + i}, s{st0}, 3
        s_lshl_b32 s{st0}, s{sMSK + 4 + i}, 8
        s_lshl_b32 s{st1}, s{sRK}, 17
        s_add_u32 s{sMSK + i}, s{st0}, s{st1}""")

    def startup():
        fill_ones(A, 0, 4)
        A(f"""s_mul_i32 s{sPZ}, s{sRK}, {RS}
        s_add_u32 s{sPZ}, s{sPZ}, {WS_PART}
        s_lshl_b32 s{st0}, s{sW}, 11
        s_sub_u32 s{sPZ}, s{sPZ}, s{st0}
        v_bfe_u32 v{t0}, v{vLane}, 4, 1
        v_and_b32 v{t1}, 3, v{vLane}
        s_and_b32 s3, s{sRK}, 6
        v_add_u32 v{t2}, s3, v{t0}
        v_lshlrev_b32 v{t2}, 10, v{t2}
        v_lshl_add_u32 v{t2}, v{t1}, 2, v{t2}
        s_lshr_b32 s{st0}, s{sRK}, 3
        s_lshl_b32 s{sX0}, s{st0}, 8
        s_lshl_b32 s{sX1}, s{sW}, 6
        s_add_u32 s{sX0}, s{sX0}, s{sX1}
        s_and_b32 s{sX2}, s{sRK}, 1
        s_lshl_b32 s{sX1}, s{sX2}, 4
        s_add_u32 s{sX0}, s{sX0}, s{sX1}
        v_add_u32 v{t2}, s{sX0}, v{t2}""")
        for i, o in enumerate((0, 32, 2, 34)): A(f"global_load_ushort v{8 + i}, v{t2}, s[{pMEM0}:{pMEM0 + 1}] offset:{o}")
    def startup2():
        A(f"s_and_b32 s3, s{sRK}, 6\ns_lshr_b32 s{st0}, s{sRK}, 3\nv_bfe_u32 v{t0}, v{vLane}, 4, 1\nv_and_b32 v{t1}, 3, v{vLane}")
        for sl in range(3):
            A(f"s_add_u32 s{sX1}, s{sPZ}, {sl * 8192 * 40}")
            for i in range(2): A(f"buffer_store_dwordx4 {v(0, 4)}, v{vWl0}, {S4(rWS)}, s{sX1} offen offset:{i * 1024}")
        A(f"""s_lshl_b32 s{sX0}, s{sW}, 1
        s_lshr_b32 s{sX1}, s{st0}, 1
        s_add_u32 s{sX0}, s{sX0}, s{sX1}
        s_lshl_b32 s{sX0}, s{sX0}, 2
        s_and_b32 s{st0}, s{st0}, 1
        s_lshl_b32 s{st0}, s{st0}, 1
        s_add_u32 s{sX0}, s{sX0}, s{st0}
        s_add_u32 s{sX0}, s{sX0}, s{sX2}
        s_lshl_b32 s{sX0}, s{sX0}, 8
        s_lshl_b32 s3, s3, 5
        s_add_u32 s{sX0}, s{sX0}, s3
        v_lshlrev_b32 v{vMemSt}, 4, v{t0}
        v_lshrrev_b32 v{t0}, 1, v{t1}
        v_lshl_or_b32 v{vMemSt}, v{t0}, 5, v{vMemSt}
        v_and_b32 v{t0}, 1, v{t1}
        v_lshl_or_b32 v{vMemSt}, v{t0}, 3, v{vMemSt}
        v_add_u32 v{vMemSt}, s{sX0}, v{vMemSt}
        s_mov_b32 s{st0}, {WS_MEM}
        v_lshl_or_b32 v8, v9, 16, v8
        v_lshl_or_b32 v9, v11, 16, v10
        v_min_u32 v8, -2, v8
        v_min_u32 v9, -2, v9
        s_mov_b64 exec, {PUBX}
        buffer_store_dwordx2 v[8:9], v{vMemSt}, {S4(rWS)}, s{st0} offen
        s_add_u32 s{st0}, s{st0}, 8192
        buffer_store_dwordx2 v[0:1], v{vMemSt}, {S4(rWS)}, s{st0} offen
        s_add_u32 s{st0}, s{st0}, 8192
        buffer_store_dwordx2 v[0:1], v{vMemSt}, {S4(rWS)}, s{st0} offen
        s_mov_b64 exec, -1""")
    startup()
    chunks = []
    def two(d0, d1):
        def ex(A, base):
            A(f"v_add_u32 v{t0}, {base}, v{vT0}\nv_xor_b32 v{t1}, 32, v{t0}")
            tr_tile(A, d0[0], d0[1], t0); tr_tile(A, d1[0], d1[1], t1)
        return ex
    def cha(r, p, ex):
        base = (256 * (p & 1) + 32 * (p >> 1)) * 8192
        chunks.append(dict(srd=r, voff=vOffA, sbase=sKVS, offs=[base + (128 * (i >> 1) + 8 * (i & 1)) * 8192 for i in range(4)], extract=ex, pf=(vPF, base)))
    for u in range(2):
        for k in range(4):
            def ex(A, base, u=u, k=k):
                l = A.lab()
                A(f"s_cmp_lg_u32 s{sW}, s{sMSK + 4 + k}\ns_cbranch_scc1 {l}\nv_add_u32 v{t0}, {base}, v{vT}")
                for t in range(8):
                    A(f"v_xor_b32 v{t1}, {32 * t}, v{t0}")
                    tr_tile(A, WO(t, u)[0], WO(t, u)[1], t1)
                A(f"{l}:")
            chunks.append(dict(srd=rD, voff=vOffO, sbase=sMSK + k, offs=[(64 * u + 4 * i) * 1024 for i in range(4)], extract=ex))
    for p in range(8): cha(rA, p, two(WQ(p, 0), WQ(p, 1)))
    for p in range(0, 8, 2): cha(rB, p, two(WK(p, 0), WK(p, 1)))
    for p in range(8): cha(rC, p, two(WV(p, 0), WV(p, 1)))
    for i, ch in enumerate(chunks):
        if ("o" in cfg["NT"] and i < 8) or ("Q" in cfg["NT"] and 8 <= i < 16): ch["nt"] = "nt"
    if cfg["CH_MIX"] == 3: chunks[:] = chunks[16:] + chunks[:16]
    if cfg["CH_MIX"] == 4: chunks[:] = chunks[16:] + chunks[8:16] + chunks[:8]
    if cfg["CH_MIX"] == 2: chunks[:] = chunks[8:] + chunks[:8]
    if cfg["CH_MIX"] == 1:
        wo, rest = chunks[:8], chunks[8:]
        chunks[:] = sum(([wo[i]] + rest[(5 * i) // 2:(5 * i + 5) // 2] for i in range(8)), [])
        assert len(chunks) == 28
    def inplace(A, base):
        two(("v", 0), ("v", 8))(A, base)
        A(f"v_add_u32 v{t0}, {base}, v{vWl0}\ns_waitcnt lgkmcnt(0)\ns_barrier")
        for i in range(4): A(f"ds_write_b128 v{t0}, {v(4 * i, 4)} offset:{1024 * i}")
    for p in range(1, 8, 2): cha(rB, p, inplace)

    def prog_addr(seg):
        A(f"s_lshl_b32 s{sPG}, s{sRK}, 7\ns_add_u32 s{sPG}, s{sPG}, {WS_PROG + (seg % NKV) * 4096}\ns_mov_b32 s{sNEED}, {seg // NKV + 1}")
    prog_ld = lambda r: f"buffer_load_dword v{r}, v{vZ}, {S4(rWS)}, s{sPG} offen sc1"
    def prog_spin():
        l, l2 = A.lab(), A.lab()
        spin_init(A)
        A(f"{l}:\nv_readfirstlane_b32 s{st0}, v{vProg}\ns_cmp_ge_u32 s{st0}, s{sNEED}\ns_cbranch_scc1 {l2}\n" + prog_ld(vProg))
        spin_step(A)
        A(f"s_waitcnt vmcnt(0)\ns_branch {l}\n{l2}:")
    def done_probe():
        if cfg["TLB"]: A(f"v_lshlrev_b32 v19, 21, v{vLane}\nbuffer_load_dword v19, v19, {S4(rWS)}, 0 offen")
        A(f"v_mov_b32 v{vZ}, 0\nv_mov_b32 v16, {DBG_DONE}\n" + ("v_mov_b32 v17, 256" if cfg.get("NOSIG") else f"global_load_dword v17, v16, s[{pDBG}:{pDBG + 1}] sc1"))
    def first_probe():
        l = A.lab()
        A(f"v_readfirstlane_b32 s{st0}, v17\ns_cmp_ge_u32 s{st0}, 256\ns_cbranch_scc1 {l}")
        wait_done(A, 16, 17, st0)
        A(f"{l}:")
        prog_addr(1); A(prog_ld(18)); prog_addr(0); A(prog_ld(vProg))
    def first_kv():
        prog_spin()
        A(f"""s_lshl_b32 s{sKVS}, s{sRK}, 14
        s_add_u32 s{sKVS}, s{sKVS}, {WS_KV}
        s_lshl_b32 s{sKVL}, s{sW}, 12
        s_add_u32 s{sKVL}, s{sKVL}, {L_KV}
        s_mov_b32 m0, s{sKVL}""")
        A(f"v_mov_b32 v{vProg}, v18")
        for i in range(4): A(f"buffer_load_dwordx4 v{vWl0}, {S4(rWS)}, s{sKVS} offen offset:{1024 * i} sc1 lds")
    slots = None
    if cfg["KFIRST"]:
        chunks[:] = chunks[28:] + chunks[:28]
        ring = [6, 9, 7, 8, 4, 5]
        slots = [0, 1, 2, 3] + [ring[(c - 26) % 6] for c in range(28)]
        assert cfg["CH_DEPTH"] <= 5
    load_chunks(A, chunks, 10, cfg["CH_DEPTH"], 2, st0, st1, nt='nt' if 'c' in cfg['NT'] else '', slots=slots, hooks={0: startup2, max(cfg["CH_DEPTH"], cfg.get("SIG", 0)): lambda: None if cfg.get("NOSIG") else signal_done(A, t0, t1), 31: first_kv,
                       **({cfg['GATE']: lambda: signal_done(A, t0, t1, DBG_CH)} if cfg['GATE'] else {}),
                       },
                pfd=cfg["CH_PF"], vdummy=vDum, pre={30 - cfg['CH_DEPTH']: done_probe, 31: first_probe,
                     **{c: (lambda i=i: timeline(A, cfg, 4 + i, t0)) for i, c in enumerate(cfg.get('TLC', ()))}})
    if cfg["KFIRST"]: A("s_barrier")
    for i in range(12): A(f"ds_write_b128 v{vWl1}, {v(32 + 4 * i, 4)} offset:{1024 * i}")
    timeline(A, cfg, 1, t0)
    if cfg["PROF"] == -1:
        A(f"s_or_b32 s3, s{sRK}, s{sW}\ns_cmp_lg_u32 s3, 0\ns_cbranch_scc1 L_dg1\nv_mov_b32 v{t0}, s98\ns_mov_b64 exec, 1\nglobal_store_dword v{vZ}, v{t0}, s[{pDBG}:{pDBG + 1}] offset:4 sc1\ns_mov_b64 exec, -1\nL_dg1:")
    if "chain" not in cfg["ENABLE"]:
        A("s_endpgm"); return
    for i in range(8): A(f"s_mov_b32 s{sMSK + i}, {0x11111111 << (i >> 1):#x}")
    A(f"""v_and_b32 v{t0}, 15, v{vLane}
    v_lshrrev_b32 v{t1}, 4, v{vLane}
    v_mov_b32 v{vIdx}, 0x4444
    v_mov_b32 v{t2}, 0xeeee
    s_mov_b32 vcc_lo, 0xcccccccc
    s_mov_b32 vcc_hi, 0xcccccccc
    v_cndmask_b32 v{vIdx}, v{vIdx}, v{t2}, vcc
    v_mov_b32 v{vSel}, 0x3f80
    v_mov_b32 v{t2}, 1.0
    s_mov_b32 vcc_lo, 0xf0f0f0f0
    s_mov_b32 vcc_hi, 0xf0f0f0f0
    v_cndmask_b32 v{vSel}, v{vSel}, v{t2}, vcc
    s_mov_b32 s{sONE}, 0x3f803f80
    s_mov_b32 s{sONE + 1}, 0x3f803f80
    s_mov_b32 s{sC}, {C_SCALE:#x}
    s_mov_b32 s{sC2}, {C_SCALE:#x}
    s_mov_b32 s{sLIM}, 0x427af233
    s_mov_b32 s{sC2 + 1}, {C_SCALE:#x}
    v_mov_b32 v{vZ + 1}, 0
    v_lshrrev_b32 v27, 2, v{t0}
    v_and_b32 v28, 1, v{t0}
    v_lshl_or_b32 v27, v27, 1, v28
    v_bfe_u32 v28, v{t0}, 1, 1
    v_lshlrev_b32 v{vMr}, 4, v{vLane}
    v_add_u32 v{vKr}, {L_KV}, v{vMr}
    v_add_u32 v{vVr}, {L_KV}, v{vWl0}
    v_add_u32 v{vMr}, {L_M}, v{vMr}
    s_lshl_b32 s{st0}, s{sW}, 11
    v_add_u32 v{vMw}, s{st0}, v{vMr}
    s_add_u32 s{cMD}, s{st0}, {L_M}
    s_sub_u32 s{cME}, {WS_MEM}, s{st0}
    s_mov_b32 s{sME}, s{cME}
    s_lshl_b32 s{st0}, s{sW}, 10
    s_add_u32 s{cMC}, s{st0}, {L_M + 4096}
    s_mul_i32 s{st0}, s{sW}, 3072
    s_sub_u32 s{cML}, {WS_MEM + 4096}, s{st0}
    s_mov_b32 s{sML}, s{cML}
    s_lshl_b32 s{st0}, s{sW}, 10
    s_add_u32 s{st0}, s{st0}, {L_Q}
    v_lshlrev_b32 v{t2}, 2, v{t0}
    v_lshl_or_b32 v{t2}, v{t1}, 7, v{t2}
    v_add_u32 v{vQw}, s{st0}, v{t2}
    v_lshrrev_b32 v{t2}, 3, v{t0}
    v_lshl_or_b32 v{t2}, v{t1}, 1, v{t2}
    s_lshl_b32 s{st0}, s{sW}, 3
    v_add_u32 v{t2}, s{st0}, v{t2}
    v_and_b32 v29, 7, v{t0}
    v_lshlrev_b32 v29, 3, v29
    v_mul_u32_u24 v{t2}, {RS}, v{t2}
    v_add_u32 v{vPartSt}, v{t2}, v29
    v_lshlrev_b32 v{t2}, 4, v{t1}
    v_lshl_or_b32 v{t2}, v27, 6, v{t2}
    v_add_u32 v{vQr}, {L_Q}, v{t2}
    v_lshlrev_b32 v{t2}, 4, v27
    v_lshl_or_b32 v{t2}, v{t1}, 8, v{t2}
    s_lshr_b32 s{st0}, s{sW}, 1
    s_lshl_b32 s{st0}, s{st0}, 10
    s_and_b32 s{st1}, s{sW}, 1
    s_lshl_b32 s{st1}, s{st1}, 7
    s_add_u32 s{st0}, s{st0}, s{st1}
    s_add_u32 s{st0}, s{st0}, {L_O}
    v_add_u32 v{vOw}, s{st0}, v{t2}
    v_lshl_or_b32 v{t2}, v28, 7, v{t2}
    v_add_u32 v{vOr}, {L_O}, v{t2}
    s_mul_i32 s{st0}, s{sW}, 3072
    s_lshl_b32 s{sKM}, s{sRK}, 12
    s_add_u32 s{sKM}, s{sKM}, {WS_KM}
    s_sub_u32 s{sKM}, s{sKM}, s{st0}
    s_lshl_b32 s{cPW}, s{sRK}, 6
    s_add_u32 s{cPW}, s{cPW}, {WS_PART}
    s_mov_b32 s{cPZ}, s{sPZ}
    s_mov_b32 s{sKP}, {WS_SIZE}
    s_mov_b32 s{sSTEP}, 0
    s_mov_b32 s{sX0}, 0
    s_mov_b32 s{sX1}, 8192
    s_mov_b32 s{sX2}, 16384
    s_cmp_lt_u32 s{sW}, {cfg['PRE']}
    s_cselect_b64 s[{sPX}:{sPX + 1}], -1, 0""")
    prog_addr(1); prog_spin()
    if PROF: A(f"s_mov_b32 s{sTS + 23}, 0\ns_mov_b32 s{sTS + 22}, 0\ns_mov_b32 s2, 0")

    def lw(j, half):
        return f"ds_read_b128 {v(G + 8 * (j % 4) + 4 * half, 4)}, v{vWl0} offset:{(j // 2) * 16384 + (j & 1) * 2048 + half * 1024}"
    def zero_acc():
        for i in range(QA, VA + 8, 2): A(f"v_mov_b64 {v(i, 2)}, 0")
    def preload():
        for j in range(4):
            for hf in range(2): A(lw(j, hf))
    sc_part = [f"s_mul_i32 s{st0}, s{sX0}, 40", f"s_add_u32 s{sPW}, s{st0}, s{cPW}", f"s_add_u32 s{sWO}, s{sPW}, 4096",
               f"s_add_u32 s{sPR}, s{st0}, s{cPZ}", f"s_mul_i32 s{st0}, s{sX2}, 40", f"s_add_u32 s{sPZ}, s{st0}, s{cPZ}",
               f"s_add_u32 s{sMN}, s{sX1}, {WS_MEM}", f"s_add_u32 s{sMZ}, s{sX0}, {WS_MEM}"] + \
              ([f"s_xor_b32 s{sPG}, s{sPG}, 4096", f"s_lshr_b32 s{sNEED}, s{sSTEP}, 1", f"s_add_u32 s{sNEED}, s{sNEED}, 2"] if NKV == 2 else
               [f"s_add_u32 s{sNEED}, s{sSTEP}, 3"]) + \
              [f"s_cmp_gt_u32 s{sSTEP}, {NSEG - 3}\ns_cselect_b32 s{sNEED}, 0, s{sNEED}"]
    sc_next = [f"s_add_u32 s{sME}, s{sX1}, s{cME}", f"s_add_u32 s{sML}, s{sX1}, s{cML}",
               f"s_mov_b32 s{st0}, s{sX0}", f"s_mov_b32 s{sX0}, s{sX1}", f"s_mov_b32 s{sX1}, s{sX2}", f"s_mov_b32 s{sX2}, s{st0}",
               f"s_add_u32 s{sSTEP}, s{sSTEP}, 1"] + \
              [f"s_mov_b32 s{sKP}, s{sKM}", f"s_add_u32 s{sKM}, s{sKM}, {32 * 4096}"]
    sq = []
    def sal(n):
        for _ in range(n):
            if sq: A(sq.pop(0))
    SEL, RA, RD, ES = M, M + 4, M + 16, M + 24
    A("s_waitcnt lgkmcnt(0)")
    zero_acc(); preload()
    fill_ones(A, ES, 8)
    timeline(A, cfg, 2, vT)
    A(f"s_mov_b32 s{sMN}, {WS_SIZE}\ns_mov_b32 s{sMZ}, {WS_SIZE}")
    for w in range(3): A(f"s_cmp_eq_u32 s{sW}, {w}\ns_cbranch_scc1 L_fetch{w}")
    A("s_branch L_fetch3")

    stubs = []
    def step(w):
        eld = "\n".join(f"buffer_load_dwordx4 {v(ES + 4 * i, 4)}, v{vWl0}, {S4(rWS)}, s{sME} offen offset:{1024 * i} sc1" for i in range(2))
        lld = eld + "\n" + "\n".join(f"buffer_load_dwordx4 v{vWl0}, {S4(rWS)}, s{sME} offen offset:{1024 * i} sc1 lds" for i in range(2))
        LB = cfg["LATEPUB"]
        CR, CN = (ES + 4, 4) if LB else (ES, 8)
        if LB:
            cld = [f"buffer_load_dwordx4 {v(CR, 4)}, v{vWl0}, {S4(rWS)}, s{sML} offen sc1", f"buffer_load_dwordx4 v{vWl0}, {S4(rWS)}, s{sML} offen sc1 lds"]
            lld = "\n".join(cld)
        pub = f"""s_mov_b64 exec, {PUBX}
        buffer_store_dwordx2 {v(RA, 2)}, v{vMemSt}, {S4(rWS)}, s{sMN} offen
        buffer_store_dwordx2 {v(ES, 2)}, v{vMemSt}, {S4(rWS)}, s{sMZ} offen
        s_mov_b64 exec, -1"""
        ewr = f"ds_write_b128 v{vMw}, {v(ES, 4)}\nds_write_b128 v{vMw}, {v(ES + 4, 4)} offset:1024"
        masked = lambda x: "s_mov_b64 exec, vcc\n" + x + "\ns_mov_b64 exec, -1"
        def mx(b, n): return [f"v_max3_u32 v{vT}, v{vT if i else b}, v{b + i}, v{b + i + 1}" for i in range(0, n, 2)]
        CMP = f"v_cmp_eq_u32 vcc, -1, v{vT}"
        dmakv = lambda i: f"buffer_load_dwordx4 v{vWl0}, {S4(rWS)}, s{sKVS} offen offset:{1024 * i} {cfg['KVLD']} lds" if not cfg.get("NODMA") else "s_nop 0"
        kmst = f"buffer_store_dwordx4 {v(KMQ, 4)}, v{vWl0}, {S4(rWS)}, s{sKM} offen sc1"
        A(f"L_ch_km{w}:\n{kmst}\ns_cmp_lt_u32 s{sSTEP}, {cfg.get('LAST', NSEG - 1)}\ns_cbranch_scc1 L_ch_kmb{w}\ns_branch L_ch_exit")
        if w >= 2 or LB:
            A(f"L_lr{w}:\ns_mov_b32 m0, s{cMC if LB else cMD}")
            if cfg["PROF"] == -1: A(f"v_mov_b32 v{vT}, 1\ns_mov_b64 exec, 1\nglobal_atomic_add v{vZ}, v{vT}, s[{pDBG}:{pDBG + 1}] offset:80 sc1\ns_mov_b64 exec, -1")
            spin_init(A)
            A(f"L_lr1{w}:")
            if PROF: A(f"s_add_u32 s{sTS + 22}, s{sTS + 22}, 1")
            A(lld); spin_step(A)
            A("s_waitcnt vmcnt(0)")
            for x in mx(CR, CN) + [CMP]: A(x)
            A(f"s_cbranch_vccnz L_lr1{w}\ns_mov_b32 m0, s{sKVL}\ns_branch L_lk{w}")
        A(f".p2align {cfg['ALIGN']}\nL_fetch{w}:")
        if w >= 2:
            A(f"s_mov_b32 m0, s{cMD}")
            stamp(10)
            A("s_barrier\n" + (pub if LB else lld))
        else:
            spin_init(A)
            for i, d in enumerate(cfg["FD"]):
                if i: A(eld)
                delay(d)
            A(f"s_mov_b64 vcc, -1\nL_er{w}:\n" + masked(eld))
            if PROF: A("s_add_u32 s2, s2, 1")
            spin_step(A)
            A(f"s_waitcnt vmcnt({2 * (len(cfg['FD']) - 1)})")
            for x in mx(ES, 8) + [CMP]: A(x)
            A(f"s_cbranch_vccnz L_er{w}")
            A(ewr)
            stamp(10)
            if cfg["PROF"] == -1 and w == 0:
                A(f"s_cmp_lg_u32 s{sSTEP}, 1\ns_cbranch_scc1 L_dg2"); timeline(A, cfg, 9, vT); A("L_dg2:")
            A("s_barrier")
        L = Cnt(A, "lgkmcnt")
        def mrd(p): L.op(f"ds_read_b128 {v(M + 4 * p, 4)}, v{vMr} offset:{1024 * p}", ("m", p))
        def lwr(j, hf): L.op(lw(j, hf), ("w", j))
        def kfr(kf): L.op(f"ds_read_b128 {v(M + 4 * kf, 4)}, v{vKr} offset:{(kf >> 1) * 4096 + 2048 + (kf & 1) * 1024}", ("K", kf))
        def frag(k, t):
            if k == "K": kfr(t)
            elif k == "V": L.op(f"ds_read_b128 {v(G + 4 * t, 4)}, v{vVr} offset:{1024 * t}", ("V", t))
            else: L.op(f"ds_read_b128 {v(G + 8 * t + (4 if k == 'k' else 0), 4)}, v{vQr} offset:{t * 1024 + (512 if k == 'k' else 0)}", (k, t))
        A("s_waitcnt lgkmcnt(0)\ns_barrier")
        stamp(0)
        for p in range(4): mrd(p)
        for i in range(cfg["PH"][0]): A("s_nop 0")
        A(f"s_add_u32 s{sKVS}, s{sKVS}, {32 * 16384}\ns_xor_b32 s{sKVL}, s{sKVL}, 0x3c000\ns_mov_b32 m0, s{cMC if LB else sKVL}")
        sq.extend(sc_part); sal(2)
        L.wait(("m", 0))
        stamp(1)
        Sm, S0, S1 = QA, QA + 4, QA + 8
        def addh(d): return [f"v_add_f32 v{d}, v{d}, v{d + 2}", f"v_add_f32 v{d + 1}, v{d + 1}, v{d + 3}"]
        pka = (lambda d: [f"v_pk_add_f32 {v(d, 2)}, {v(d, 2)}, {v(d + 2, 2)}"]) if cfg["PKA"] else addh
        zq = [f"v_mov_b64 {v(M + i, 2)}, 0" for i in range(0, 32, 2)]
        def z(n):
            for _ in range(n):
                if zq: A(zq.pop(0))
        if cfg["SCHED"] == 2:
            wq = lambda p: [(SMF, QA + 4 * b, M + 4 * p, W8(WQ(p, b))) for b in range(2)]
            wk = lambda p: [(SMF, QA + 8 + 4 * b, M + 4 * p, W8(WK(p, b)) if p % 2 == 0 else v(G + 8 * ((p - 1 + b) % 4), 8)) for b in range(2)]
            wv = lambda p: [(SMF, VA + 4 * b, M + 4 * p, W8(WV(p, b))) for b in range(2)]
            cat = lambda f, r: sum((f(p) for p in r), [])
            seq = cat(lambda p: wq(p) + wk(p), range(4)) + cat(wv, range(4)) + cat(wq, range(4, 8)) + cat(wk, range(4, 8)) + cat(wv, range(4, 8))
            seq += [(MF, (S0, S1)[c], M + 8 * t + 4 * c, t) for t in range(4) for c in range(2)] + [(MF, Sm, G + 16 + 4 * t, t) for t in range(4)]
            gap = {}; val = {}; pre = {}
            def at(k, fn): gap.setdefault(k, []).append(fn)
            def va(k, x): val.setdefault(k, []).append(x)
            def qfr(t): L.op(f"ds_read_b128 {v(G + 4 * t, 4)}, v{vQr} offset:{t * 1024}", ("q", t))
            def kmf(t): L.op(f"ds_read_b128 {v(G + 16 + 4 * t, 4)}, v{vQr} offset:{t * 1024 + 512}", ("k", t))
            LP = cfg["LP"]
            VS = {n: g[w] for n, g in cfg["VS4"].items() if g[w] is not None}
            vop = {"km": kmst.replace(f"s{sKM} ", f"s{sKP} "), "pg": prog_ld(vProg)}
            for i in range(4): vop[f"d{i}"] = dmakv(i)
            for i in range(2): vop[f"r{i}"] = f"buffer_store_dwordx4 {v(KMQ, 4)}, v{vWl0}, {S4(rWS)}, s{sPZ} offen offset:{1024 * i}"
            at(LP, lambda: A(f"s_waitcnt vmcnt({sum(x < LP for x in VS.values())})"))
            for n in VS: at(VS[n], lambda n=n: A(vop[n]))
            assert VS["km"] + 3 <= VS["r0"] < VS["r1"] < 43 and VS["km"] + 2 < 32
            for i in range(2): va(VS["km"] + 1 + i, f"v_mov_b64 {v(KMQ + 2 * i, 2)}, -1")
            if w >= 2:
                for i, x in enumerate([f"v_max3_u32 v{vT}, v{ES}, v{ES + 2}, v{ES + 4}", f"v_max_u32 v{vT}, v{vT}, v{ES + 6}", CMP]): va(LP + i, x)
                at(LP + 4, lambda: A(f"s_cbranch_vccnz L_lr{w}\nL_lk{w}:\ns_barrier"))
            else: at(LP + 4, lambda: A("s_barrier"))
            for i in range(4): at(LP + 4 + i, lambda i=i: mrd(4 + i))
            for k, (j, hf) in zip((6, 8, 9, 10, 16, 17, 18, 19), ((4, 0), (4, 1), (5, 0), (5, 1), (6, 0), (6, 1), (7, 0), (7, 1))): at(k, lambda j=j, hf=hf: lwr(j, hf))
            for i in range(4): at(26 + 2 * i, lambda i=i: kfr(i))
            for p in range(1, 4): pre[4 * p] = ("m", p)
            for p in range(4, 8): pre[24 + 2 * (p - 4)] = ("m", p)
            pre[34] = ("w", 7)
            for i, x in enumerate(addh(QA) + addh(QA + 4) + [f"v_cvt_pk_bf16_f32 v{G}, v{QA}, v{QA + 4}", f"v_cvt_pk_bf16_f32 v{G + 1}, v{QA + 1}, v{QA + 5}"]): va(32 + i, x)
            at(38, lambda: L.op(f"ds_write2_b32 v{vQw}, v{G}, v{G + 1} offset1:16", "wq"))
            BQ, BK = cfg["BQ"], cfg["BK"]
            at(BQ, lambda: (L.wait("wq"), A("s_barrier")))
            for t in range(4): at(BQ + t, lambda t=t: qfr(t))
            for i, x in enumerate(addh(QA + 8) + addh(QA + 12) + [f"v_cvt_pk_bf16_f32 v{KMQ}, v{QA + 8}, v{QA + 12}", f"v_cvt_pk_bf16_f32 v{KMQ + 1}, v{QA + 9}, v{QA + 13}"]): va(40 + i, x)
            at(46, lambda: L.op(f"ds_write2_b32 v{vQw}, v{KMQ}, v{KMQ + 1} offset0:128 offset1:144", "wk"))
            for i in range(4): at(cfg['KG'][i], lambda i=i: kfr(4 + i))
            at(BK, lambda: (L.wait("wk"), A("s_barrier")))
            for t in range(4): at(BK + t, lambda t=t: kmf(t))
            for t in range(4): pre[48 + 2 * t] = [("q", t), ("K", 2 * t), ("K", 2 * t + 1)]; pre[56 + t] = ("k", t)
            vq = addh(VA) + addh(VA + 4) + [f"v_cvt_pk_bf16_f32 v{KMQ + 2}, v{VA}, v{VA + 1}", f"v_cvt_pk_bf16_f32 v{KMQ + 3}, v{VA + 4}, v{VA + 5}"]
            for i, x in enumerate(vq): va(cfg['VG'] + i // 2, x)
            at(cfg['VG'] + 3, lambda: A(f"s_cmp_ge_u32 s{sSTEP}, {min(cfg['KEARLY'], cfg.get('LAST', NSEG - 1))}"))
            at(cfg['VG'] + 4, lambda: A(f"L_ch_kmb{w}:" if cfg.get("XL") else f"s_cbranch_scc1 L_ch_km{w}\nL_ch_kmb{w}:"))
            for k in range(cfg['ZG'], 58): va(k, "z"); va(k, "z")
            for b in range(2): at(57 + b, lambda b=b: frag("V", b))
            va(58, f"v_mov_b64 {v(G + 8, 2)}, s[{sONE}:{sONE + 1}]"); va(58, f"v_mov_b64 {v(G + 10, 2)}, s[{sONE}:{sONE + 1}]")
            va(59, "z"); va(59, "z")
            for k, (op, acc, a_, b_) in enumerate(seq):
                if op == SMF: A(f"{SMF} {v(acc, 4)}, {v(a_, 4)}, {b_}, v{vIdx}")
                else: A(f"{MF} {v(acc, 4)}, {v(a_, 4)}, {v(G + 4 * b_, 4)}, {v(acc, 4) if b_ else 0}")
                g = gap.get(k, [])
                for fn in g: fn()
                n = len(g)
                if k + 1 in pre:
                    need = pre[k + 1] if isinstance(pre[k + 1], list) else [pre[k + 1]]
                    L.wait(min((L.need(x), x) for x in need)[1]); n += 1
                if cfg.get("QS") and k in cfg["QS"]: stamp(4 + cfg["QS"].index(k), True); L.n += 2
                if k == 39 and PROF: stamp(2); L.n += 2
                if k == 47 and PROF: stamp(3); L.n += 2
                sal((2 if k in val else 3) - n)
                for x in val.get(k, []): z(1) if x == "z" else A(x)
            assert not sq
        else:
            NV = cfg["NVF"]
            qk = lambda p: [(QA, p, W8(WQ(p, 0))), (QA + 4, p, W8(WQ(p, 1)))] + \
                           [(QA + 8 + 4 * b, p, W8(WK(p, b)) if p % 2 == 0 else v(G + 8 * ((p - 1 + b) % 4), 8)) for b in range(2)]
            vv = lambda p: [(VA + 4 * b, p, W8(WV(p, b))) for b in range(2)]
            seq = sum((qk(p) for p in range(4)), []) + sum((vv(p) for p in range(NV)), []) + sum((qk(p) for p in range(4, 8)), [])
            H = 16 + 2 * NV
            gap = {}; val = {}
            def at(k, fn): gap.setdefault(k, []).append(fn)
            for k, (j, hf) in zip((6, 8, 9, 10), ((4, 0), (4, 1), (5, 0), (5, 1))): at(k, lambda j=j, hf=hf: lwr(j, hf))
            LP = cfg["LP"]
            VS = {n: g[w] for n, g in cfg["VS4"].items() if g[w] is not None}
            NEG = KMQ if VS["r0"] < 100 else QA + 12
            vop = {"km": kmst.replace(f"s{sKM} ", f"s{sKP} "), "pg": prog_ld(vProg)}
            for i in range(4): vop[f"d{i}"] = dmakv(i)
            for i in range(2): vop[f"r{i}"] = f"buffer_store_dwordx4 {v(NEG, 4)}, v{vWl0}, {S4(rWS)}, s{sPZ} offen offset:{1024 * i}"
            def vslot(k):
                for n in sorted(VS):
                    if VS[n] == k: A(vop[n])
                if NEG != KMQ and k in (100, 101): A(f"v_mov_b64 {v(NEG + 2 * (k - 100), 2)}, -1")
            at(LP, lambda: A(f"s_waitcnt vmcnt({sum(x < LP for x in VS.values())})"))
            for n in VS:
                if VS[n] < 100: at(VS[n], lambda n=n: A(vop[n]))
            if NEG == KMQ:
                assert VS["km"] + 3 <= VS["r0"] < VS["r1"] < len(seq)
                for i in range(2): val.setdefault(VS["km"] + 1 + i, []).append(f"v_mov_b64 {v(NEG + 2 * i, 2)}, -1")
            else: assert 102 <= VS["r0"] < VS["r1"]
            if LB:
                CS = cfg["CS4"][w]
                assert CS + 1 < min(VS.values())
                at(CS, lambda: A(cld[0])); at(CS + 1, lambda: A(cld[1] + f"\ns_mov_b32 m0, s{sKVL}"))
            if w >= 2 or LB:
                chk = mx(CR, CN) if LB else [f"v_max3_u32 v{vT}, v{ES}, v{ES + 2}, v{ES + 4}", f"v_max_u32 v{vT}, v{vT}, v{ES + 6}"]
                for i, x in enumerate(chk + [CMP]): val.setdefault(LP + i, []).append(x)
                at(LP + 4, lambda: A(f"s_cbranch_vccnz L_lr{w}\nL_lk{w}:\ns_barrier"))
            else: at(LP + 4, lambda: A("s_barrier"))
            for i in range(4): at(LP + 4 + (i if i < 2 else 2 * i), lambda i=i: mrd(4 + i))
            for k, (j, hf) in zip((H + 1, H + 2, H + 5, H + 6), ((6, 0), (6, 1), (7, 0), (7, 1))): at(k, lambda j=j, hf=hf: lwr(j, hf))
            at(H + 5, lambda: L.wait(("w", 5))); at(H + 13, lambda: L.wait(("w", 7)))
            for i in range(NV): at(H + 9 + 2 * i, lambda i=i: kfr(i))
            for k, (acc, p, wop) in enumerate(seq):
                A(f"{SMF} {v(acc, 4)}, {v(M + 4 * p, 4)}, {wop}, v{vIdx}")
                g = gap.get(k, [])
                for fn in g: fn()
                n = len(g)
                if k + 1 < len(seq) and seq[k + 1][0] == QA: L.wait(("m", seq[k + 1][1])); n += 1
                if cfg.get("QS") and k in cfg["QS"]: stamp(4 + cfg["QS"].index(k), True)
                sal((2 if k in val else 3) - n)
                for x in val.get(k, []): A(x)
            assert not sq
            stamp(2)
            qd = G + 16
            for x in pka(QA) + pka(QA + 4): A(x)
            A(f"v_cvt_pk_bf16_f32 v{qd}, v{QA}, v{QA + 4}\nv_cvt_pk_bf16_f32 v{qd + 1}, v{QA + 1}, v{QA + 5}")
            L.op(f"ds_write2_b32 v{vQw}, v{qd}, v{qd + 1} offset1:16")
            for x in pka(QA + 8) + pka(QA + 12): A(x)
            A(f"v_cvt_pk_bf16_f32 v{KMQ}, v{QA + 8}, v{QA + 12}\nv_cvt_pk_bf16_f32 v{KMQ + 1}, v{QA + 9}, v{QA + 13}")
            L.op(f"ds_write2_b32 v{vQw}, v{KMQ}, v{KMQ + 1} offset0:128 offset1:144", "wk")
            if cfg.get("QS") and 99 in cfg["QS"]: stamp(4 + cfg["QS"].index(99), True)
            rq = [("q", 0), ("k", 0), ("q", 1), ("k", 1), ("K", 4), ("q", 2), ("K", 5), ("k", 2), ("K", 6), ("q", 3), ("K", 7), ("k", 3), ("V", 0), ("V", 1)]
            rest = sum((vv(p) for p in range(NV, 8)), [])
            EB = cfg["EB"]
            for e, (acc, p, wop) in enumerate(rest):
                A(f"{SMF} {v(acc, 4)}, {v(M + 4 * p, 4)}, {wop}, v{vIdx}")
                if (e & 1) and p < 4: kfr(p)
                if e == EB: L.wait("wk"); A("s_barrier")
                if e > EB and rq and (rq[0][0] != "K" or rq[0][1] < p + (e & 1)): frag(*rq.pop(0))
                vslot(100 + e)
                if cfg.get("QS") and 100 + e in cfg["QS"]: stamp(4 + cfg["QS"].index(100 + e), True)
            stamp(3)
            Sm, S0, S1 = QA, QA + 4, QA + 8
            vq = addh(VA) + addh(VA + 4) + [f"v_cvt_pk_bf16_f32 v{KMQ + 2}, v{VA}, v{VA + 1}", f"v_cvt_pk_bf16_f32 v{KMQ + 3}, v{VA + 4}, v{VA + 5}"]
            for t in range(4):
                need = [("q", t), ("k", t), ("K", 2 * t), ("K", 2 * t + 1)]
                while any(x not in L.tags for x in need): frag(*rq.pop(0))
                L.wait(min((L.need(x), x) for x in need)[1])
                for i, (d, a_) in enumerate(((S0, M + 8 * t), (S1, M + 8 * t + 4), (Sm, G + 8 * t + 4))):
                    A(f"{MF} {v(d, 4)}, {v(a_, 4)}, {v(G + 8 * t, 4)}, {v(d, 4) if t else 0}")
                    e = 3 * t + i
                    if rq and (rq[0][0] != "V" or e >= 2): frag(*rq.pop(0))
                    if 2 <= e <= 4: A(vq[2 * (e - 2)] + "\n" + vq[2 * (e - 2) + 1])
                    if e == 4: A(f"s_cmp_ge_u32 s{sSTEP}, {min(cfg['KEARLY'], cfg.get('LAST', NSEG - 1))}")
                    if e == 5 and not cfg.get("XL"): A(f"s_cbranch_scc1 L_ch_km{w}\nL_ch_kmb{w}:")
                    if e == 5 and cfg.get("XL"): A(f"L_ch_kmb{w}:")
                    vslot(200 + e)
                    if e == 7: A(f"v_mov_b64 {v(G + 8, 2)}, s[{sONE}:{sONE + 1}]\nv_mov_b64 {v(G + 10, 2)}, s[{sONE}:{sONE + 1}]")
                    if e >= 8: z(2)
            assert not rq
        stamp(4)
        if cfg.get("XL"): A(f"s_cmp_eq_u32 s{sSTEP}, {NSEG - 1}\ns_cbranch_scc1 L_ch_exit")
        m1, m2, m3, tt = G + 28, G + 29, G + 30, G + 31
        src = [Sm, Sm + 1] + [S0 + i for i in range(8)]
        sv = src
        P = G + 12 if cfg['SCHED'] == 1 else QA + 12
        O0, O1, SU = G + 16, G + 20, G + 24
        scale = [f"v_pk_mul_f32 {v(sv[i], 2)}, {v(src[i], 2)}, s[{sC2}:{sC2 + 1}]" for i in (2, 4, 6, 8, 0)]
        def true_max(fill):
            A(f"""v_max3_f32 v{m1}, v{sv[2]}, v{sv[3]}, v{sv[4]}
            v_max3_f32 v{m2}, v{sv[5]}, v{sv[6]}, v{sv[7]}
            v_max3_f32 v{m3}, v{sv[8]}, v{sv[9]}, v{m1}
            v_max3_f32 v{m1}, v{sv[0]}, v{sv[1]}, v{m2}
            v_max_f32 v{m2}, v{m1}, v{m3}
            v_max_f32 v{tt}, v{m1}, v{m3}""")
            z(fill)
            A(f"v_permlane16_swap_b32 v{m2}, v{tt}\nv_max_f32 v{m1}, v{m2}, v{tt}\nv_max_f32 v{m3}, v{m2}, v{tt}")
            z(fill)
            A(f"v_permlane32_swap_b32 v{m1}, v{m3}\nv_max_f32 v{m1}, v{m1}, v{m3}")
            for i in range(0, 10, 2): A(f"v_pk_add_f32 {v(sv[i], 2)}, {v(sv[i], 2)}, {v(m1, 2)} op_sel_hi:[1,0] neg_lo:[0,1] neg_hi:[0,1]")
        z(1)
        if cfg["NOMAX"]:
            A(f"""v_max3_f32 v{m1}, |v{S0}|, |v{S0 + 1}|, |v{S0 + 2}|
            v_max3_f32 v{m2}, |v{S0 + 3}|, |v{S1}|, |v{S1 + 1}|
            v_max3_f32 v{m3}, |v{S1 + 2}|, |v{S1 + 3}|, v{m1}
            v_max3_f32 v{m1}, |v{Sm}|, |v{Sm + 1}|, v{m2}
            v_max_f32 v{m1}, v{m1}, v{m3}
            v_cmp_nge_f32 vcc, s{sLIM}, v{m1}""")
            for x in scale: A(x)
            A(f"s_cbranch_vccnz L_mx{w}\nL_mxb{w}:")
            def stub():
                A(f"L_mx{w}:"); true_max(0); A(f"s_branch L_mxb{w}")
            stubs.append(stub)
        else:
            for x in scale: A(x)
            true_max(2)
        for i in range(10):
            A(f"v_exp_f32 v{sv[i]}, v{sv[i]}")
            if i == 2: A(f"v_cvt_pk_bf16_f32 v{PM}, v{sv[0]}, v{sv[1]}\nv_cvt_pk_bf16_f32 v{PM + 3}, v{sv[0]}, v{sv[1]}")
            if i in (4, 6, 8): A(f"v_cvt_pk_bf16_f32 v{P + (i - 4) // 2}, v{sv[i - 2]}, v{sv[i - 1]}")
            if i == 3: A(f"{MF16} {v(SU, 4)}, {v(G + 8, 2)}, {v(PM, 2)}, 0")
            if i == 5: A(f"{MF16} {v(O0, 4)}, {v(KMQ + 2, 2)}, {v(PM, 2)}, 0")
            if i == 7: A(f"{MF16} {v(O1, 4)}, {v(KMQ + 2, 2)}, {v(PM + 2, 2)}, 0")
        L.wait(("V", 1))
        A(f"v_cvt_pk_bf16_f32 v{P + 3}, v{sv[8]}, v{sv[9]}")
        stamp(5)
        z(2)
        A(f"{MF} {v(SU, 4)}, {v(G + 8, 4)}, {v(P, 4)}, {v(SU, 4)}"); z(2)
        A(f"{MF} {v(O0, 4)}, {v(G, 4)}, {v(P, 4)}, {v(O0, 4)}"); z(2)
        A(f"{MF} {v(O1, 4)}, {v(G + 4, 4)}, {v(P, 4)}, {v(O1, 4)}"); z(2)
        ost = lambda k: (VA, G, QA + 8, G + 24, G + 8, VA)[k]
        def owr(k, hf): L.op(f"ds_read_b128 {v(ost(k) + 4 * hf, 4)}, v{vWl1} offset:{k * 2048 + hf * 1024}", ("ow", k))
        owr(0, 0)
        A(f"v_rcp_f32 v{SU}, v{SU}")
        owr(0, 1)
        for o in (O0, O1):
            if cfg["PKA"] and o == O1:
                for i in (0, 2): A(f"v_pk_mul_f32 {v(o + i, 2)}, {v(o + i, 2)}, {v(SU, 2)} op_sel_hi:[1,0]")
            else:
                for i in range(4): A(f"v_mul_f32 v{o + i}, v{o + i}, v{SU}")
            for i in range(2): A(f"v_cvt_pk_bf16_f32 v{P + (o - O0) // 2 + i}, v{o + 2 * i}, v{o + 2 * i + 1}")
        L.op(f"ds_write_b128 v{vOw}, {v(P, 4)}", "ow")
        z(99)
        owr(1, 0); owr(1, 1)
        for i in range(8 * cfg["PH"][1]): A("s_nop 0")
        L.wait("ow"); A("s_barrier")
        L.op(f"ds_read_b128 {v(QA, 4)}, v{vOr}", "o0"); L.op(f"ds_read_b128 {v(QA + 4, 4)}, v{vOr} offset:1024", "o1")
        stamp(6)
        L.wait("o0")
        OQ = G + 16
        tile = lambda t: addh(M + 4 * t) + [f"v_cvt_pk_bf16_f32 v{OQ + t}, v{M + 4 * t}, v{M + 4 * t + 1}"]
        def pstore(p): A(f"buffer_store_dwordx2 {v(OQ + 2 * p, 2)}, v{vPartSt}, {S4(rWS)}, s{sPW if p < 2 else sWO} offen offset:{2048 * (p & 1)}")
        rl = "\n".join(f"buffer_load_dwordx4 {v(RD + 4 * i, 4)}, v{vWl0}, {S4(rWS)}, s{sPR} offen offset:{1024 * i} sc1" for i in range(2))
        sq.extend(sc_next)
        for e in range(16):
            t, u = e >> 1, e & 1
            A(f"{SMF} {v(M + 4 * t, 4)}, {v(QA + 4 * u, 4)}, {W8(WO(t, u)) if t < 5 else v(ost(e - 10), 8)}, v{vIdx}")
            if e == 0: L.wait("o1")
            if cfg['OW'] <= e < cfg['OW'] + 6: owr(2 + (e - cfg['OW']) // 2, (e - cfg['OW']) & 1)
            if e == 10: owr(5, 0); owr(5, 1)
            if e == 9: L.wait(("ow", 4))
            if e == 14: L.wait(("ow", 5))
            if e - cfg['PS'][w] in (7, 11, 15): pstore((e - cfg['PS'][w] - 7) // 4)
            if cfg.get("WS") and e in cfg["WS"]: stamp(cfg["WS"].index(e), True)
            if e >= 1: sal(1)
            if e >= 3 and (e & 1): A(tile((e - 3) // 2)[0] + "\n" + tile((e - 3) // 2)[1])
            if e >= 4 and not (e & 1): A(tile((e - 4) // 2)[2])
        assert not sq
        A(tile(6)[2])
        if cfg['PS'][w]: pstore(2)
        for x in pka(M + 28) + tile(7)[2:]: A(x)
        pstore(3)
        stamp(7)
        rmf = lambda i: f"{MF} {v(RA, 4)}, {v(SEL, 4)}, {v(RD + 4 * i, 4)}, {v(RA, 4) if i else 0}"
        def steplog():
            if PROF:
                A(f"""s_memrealtime s[100:101]
                s_waitcnt lgkmcnt(0)
                s_bitcmp1_b32 s{sW}, 0
                s_cselect_b32 s3, s100, s{sTS + 14}
                v_mov_b32 v{vT}, s3
                s_lshl_b32 s{st0}, s{sRK}, 6
                s_add_u32 s{st0}, s{st0}, s{sSTEP}
                s_lshl_b32 s{st0}, s{st0}, 2
                s_add_u32 s{st0}, s{st0}, {WS_DBG + 0x8000}
                s_lshl_b32 s3, s{sW}, 13
                s_add_u32 s{st0}, s{st0}, s3
                s_mov_b64 exec, 1
                buffer_store_dword v{vT}, off, {S4(rWS)}, s{st0}
                s_mov_b64 exec, -1""")
        def progchk():
            A("s_waitcnt vmcnt(4)"); prog_spin(); steplog()
        def odd(n):
            l = A.lab()
            A(f"s_bitcmp1_b32 s{sW}, 0\ns_cbranch_scc0 {l}"); delay(n); A(f"{l}:")
        chores = {"s": lambda: [A(f"v_cndmask_b32 v{SEL + i}, 0, v{vSel}, s[{sMSK + 2 * i}:{sMSK + 2 * i + 1}]") for i in range(4)] +
                               [fill_ones(A, ES, 2)],
                  "p": preload, "z": lambda: (zero_acc(), A(f"v_xor_b32 v{vKr}, 0x3c000, v{vKr}\nv_xor_b32 v{vVr}, 0x3c000, v{vVr}")), "A": lambda: A(rl), "e": lambda: delay(4), "d": lambda: delay(8), "D": lambda: delay(16),
                  "k": progchk, "o": lambda: odd(8), "O": lambda: odd(16)}
        for ch in cfg["RED4"][w]:
            if isinstance(ch, str): chores[ch]()
            else: delay(ch)
        if PROF and w == 2: steplog()
        spin_init(A)
        A(f"s_mov_b64 vcc, -1\nL_red{w}:\n" + masked(rl))
        if PROF: A(f"s_add_u32 s{sTS + 23}, s{sTS + 23}, 1")
        spin_step(A)
        A(f"s_waitcnt vmcnt({2 * cfg['RED4'][w].count('A')})")
        for x in mx(RD, 8)[:2] + [rmf(0)] + mx(RD, 8)[2:] + [rmf(1), CMP]: A(x)
        A(f"s_cbranch_vccnz L_red{w}")
        stamp(8)
        for r in (4, 8):
            for i in range(4): A(f"v_add_f32_dpp v{RA + i}, v{RA + i}, v{RA + i} row_ror:{r} row_mask:0xf bank_mask:0xf")
        A(f"v_cvt_pk_bf16_f32 v{RA}, v{RA}, v{RA + 1}\nv_cvt_pk_bf16_f32 v{RA + 1}, v{RA + 2}, v{RA + 3}")
        if not (LB and w >= 2): A(pub)
        stamp(9)
        A(f"s_branch L_fetch{w}")
    for w in range(4):
        step(w)
        while stubs: stubs.pop()()
    A("L_ch_exit:")
    if cfg.get("XL"): A(f"buffer_store_dwordx4 {v(KMQ, 4)}, v{vWl0}, {S4(rWS)}, s{sKM} offen sc1")
    timeline(A, cfg, 3, vT)
    if PROF:
        A(f"""s_waitcnt lgkmcnt(0)
        s_lshl_b32 s{st0}, s{sRK}, 2
        s_add_u32 s{st0}, s{st0}, s{sW}
        s_lshl_b32 s{st0}, s{st0}, 7
        s_add_u32 s{st0}, s{st0}, {WS_DBG}
        s_mov_b64 exec, 1
        s_memrealtime s[90:91]
        s_waitcnt lgkmcnt(0)
        s_lshr_b32 s92, s90, 10
        s_add_u32 s92, s92, 2
        s_lshl_b32 s92, s92, 10
        L_cal:
        s_memrealtime s[90:91]
        s_memtime s[94:95]
        s_waitcnt lgkmcnt(0)
        s_sub_u32 s93, s90, s92
        s_cmp_lt_i32 s93, 0
        s_cbranch_scc1 L_cal""")
        for i, r in enumerate([sTS + 2 * i for i in range(11)] + [sTS + 23, 2, sTS + 22, 94, 92]): A(f"v_mov_b32 v0, s{r}\nbuffer_store_dword v0, v{vZ}, {S4(rWS)}, s{st0} offen offset:{4 * i}")
    A("s_endpgm")
```
